```python
import torch

def _softmax(x, axis=-1):
    return torch.softmax(x, dim=axis)
def _gelu(x):
    return torch.nn.functional.gelu(x, approximate="tanh")
def _silu(x):
    return torch.nn.functional.silu(x)
def _sigmoid(x):
    return torch.sigmoid(x)
def _layernorm(x, axis=-1, eps=1e-5):
    m = x.mean(dim=axis, keepdim=True)
    v = x.var(dim=axis, keepdim=True, unbiased=False)
    return (x - m) / torch.sqrt(v + eps)
def _scatter_add(tgt, idx, src, axis=0):
    return tgt.clone().index_add_(axis, idx, src)
def _segment_sum(src, seg, n):
    out = torch.zeros((n,) + src.shape[1:], dtype=src.dtype)
    return out.index_add_(0, seg, src)
def _pad(x, pw):
    flat = tuple(v for pair in reversed(pw) for v in pair)
    return torch.nn.functional.pad(x, flat)

kernel_name = 'gated_mix__ssm_conv_h3__compressed_kv_cla__prompt'

def setup_inputs():

    _w = (lambda a: (lambda t: t.to(torch.bfloat16) if t.is_floating_point() else t)(torch.as_tensor(a)))
    def _A_setup():
        B, S, D = 1, 2048, 448
        ks = 4
        return {
            "q": _w((lambda *s: torch.randn(*s, dtype=torch.bfloat16) * 0.05)(B, S, D)),
            "k": _w((lambda *s: torch.randn(*s, dtype=torch.bfloat16) * 0.4)(B, S, D)),
            "v": _w((lambda *s: torch.randn(*s, dtype=torch.bfloat16) * 0.4)(B, S, D)),
            "shift_k": _w((lambda *s: torch.randn(*s, dtype=torch.bfloat16) * 0.4)(D, ks) * 0.5),
            "ssm_k": _w((lambda *s: torch.randn(*s, dtype=torch.bfloat16) * 0.8)(D, S) * (1.0 / S ** 0.5)),
            "ssm_D": _w((lambda *s: torch.randn(*s, dtype=torch.bfloat16) * 0.4)(D)),
        }
    _A_in = _A_setup()

    def _B_setup():
        B, H, Sq, Sk, D, M = 1, 16, 2048, 2048, 256, 448
        Dc = 4 * D
        return {
            "x": _w((lambda *s: torch.randn(*s, dtype=torch.bfloat16) * 0.05)(B, Sq, M)),
            "c_kv": _w((lambda *s: torch.randn(*s, dtype=torch.bfloat16) * 0.4)(B, Sk, Dc)),
            "w_q": _w((lambda *s: torch.randn(*s, dtype=torch.bfloat16) * 6.4)(M, H, D) * (M ** -0.5)),
            "w_uk": _w((lambda *s: torch.randn(*s, dtype=torch.bfloat16) * 6.4)(Dc, H, D) * (Dc ** -0.5)),
            "w_uv": _w((lambda *s: torch.randn(*s, dtype=torch.bfloat16) * 0.4)(Dc, H, D) * (Dc ** -0.5)),
            "w_o": _w((lambda *s: torch.randn(*s, dtype=torch.bfloat16) * 0.4)(H, D, M) * ((H * D) ** -0.5)),
        }
    _B_in = _B_setup()

    return {
        "A_q": _A_in["q"],
        "A_k": _A_in["k"],
        "A_v": _A_in["v"],
        "A_shift_k": _A_in["shift_k"],
        "A_ssm_k": _A_in["ssm_k"],
        "A_ssm_D": _A_in["ssm_D"],
        "B_x": _B_in["x"],
        "B_c_kv": _B_in["c_kv"],
        "B_w_q": _B_in["w_q"],
        "B_w_uk": _B_in["w_uk"],
        "B_w_uv": _B_in["w_uv"],
        "B_w_o": _B_in["w_o"],
        "gate_w": _w((lambda *s: torch.randn(*s, dtype=torch.bfloat16) * 0.05)(448) * 16.0),
    }

def reference(A_q, A_k, A_v, A_shift_k, A_ssm_k, A_ssm_D, B_x, B_c_kv, B_w_q, B_w_uk, B_w_uv, B_w_o, gate_w):
    def _A_ref(q, k, v, shift_k, ssm_k, ssm_D):
        B, S, D = q.shape
        ks = shift_k.shape[-1]
        k_pad = _pad(k, ((0, 0), (ks - 1, 0), (0, 0)))
        k_shift = torch.zeros_like(k)
        for t in range(ks):
            k_shift = k_shift + k_pad[:, t:t + S, :] * shift_k[:, ks - 1 - t][None, None, :]
        kv = k_shift * v
        L = 2 * S
        kv_pad = _pad(kv, ((0, 0), (0, S), (0, 0)))
        kf_pad = _pad(ssm_k, ((0, 0), (0, S)))
        kv_f = (lambda x, axes=(-2,-1): torch.fft.rfft2(x.float(), dim=axes))(kv_pad[:, None, :, :], axes=(1, 2))
        kf_f = (lambda x, axes=(-2,-1): torch.fft.rfft2(x.float(), dim=axes))(kf_pad[:, None, :], axes=(1, 2))
        kf_f = (lambda x, *d: x.permute(*d))(kf_f, 1, 2, 0)
        y_f = kv_f * kf_f[None, :, :, :]
        y = (lambda x, s, axes=(-2,-1): torch.fft.irfft2(x, s=s, dim=axes).to(torch.bfloat16))(y_f, (1, L), axes=(1, 2))[:, 0, :S, :]
        y = y + kv * ssm_D[None, None, :]
        return q * y

    def _B_ref(x, c_kv, w_q, w_uk, w_uv, w_o):
        B, Sq, M = x.shape[0], x.shape[1], x.shape[2]
        Sk = c_kv.shape[1]
        H, D = w_q.shape[1], w_q.shape[2]
        q = torch.einsum("bqm,mhd->bhqd", x, w_q)
        k = torch.einsum("bkc,chd->bhkd", c_kv, w_uk)
        v = torch.einsum("bkc,chd->bhkd", c_kv, w_uv)
        scores = torch.einsum("bhqd,bhkd->bhqk", q, k) * (D ** -0.5)
        off = Sk - Sq
        qi = torch.arange(Sq)[:, None]
        kj = torch.arange(Sk)[None, :]
        cmask = kj <= (qi + off)
        scores = torch.where(cmask[None, None], scores, -1e9)
        p = _softmax(scores, axis=-1)
        ctx = torch.einsum("bhqk,bhkd->bhqd", p, v)
        return torch.einsum("bhqd,hdm->bqm", ctx, w_o)

    x = A_q
    g = _sigmoid((x * gate_w).sum(-1, keepdims=True))
    a = _A_ref(x, A_k, A_v, A_shift_k, A_ssm_k, A_ssm_D)
    b = _B_ref(x, B_c_kv, B_w_q, B_w_uk, B_w_uv, B_w_o)
    return g * a + (1 - g) * b
```

```python
class Asm:
    def __init__(self):
        self.lines = []
        self.uid = 0
    def __call__(self, s):
        for l in s.strip("\n").split("\n"):
            l = l.strip()
            if l:
                self.lines.append("    " + l)
    def raw(self, s):
        self.lines.append(s)
    def label(self, l):
        self.lines.append(l + ":")
    def newlabel(self, p="L"):
        self.uid += 1
        return f"{p}_{self.uid}"
    def text(self):
        return "\n".join(self.lines) + "\n"

def vr(b, n=1):
    return f"v{b}" if n == 1 else f"v[{b}:{b+n-1}]"
def ar(b, n=1):
    return f"a{b}" if n == 1 else f"a[{b}:{b+n-1}]"
def sr(b, n=1):
    return f"s{b}" if n == 1 else f"s[{b}:{b+n-1}]"

def srd(a, d, ptr, off, nbytes):
    if off:
        a(f"s_add_u32 s{d}, s{ptr}, {off}")
        a(f"s_addc_u32 s{d+1}, s{ptr+1}, 0")
    else:
        a(f"s_mov_b32 s{d}, s{ptr}")
        a(f"s_mov_b32 s{d+1}, s{ptr+1}")
    a(f"s_mov_b32 s{d+2}, {nbytes}")
    a(f"s_mov_b32 s{d+3}, 0x00020000")

def kernel_desc(name, vgpr, sgpr=102, accum=None):
    if accum is None:
        accum = (vgpr + 3) // 4 * 4
    return f""".section .rodata,"a"
.p2align 6
.amdhsa_kernel {name}
  .amdhsa_next_free_vgpr {vgpr}
  .amdhsa_next_free_sgpr {sgpr}
  .amdhsa_accum_offset {accum}
  .amdhsa_group_segment_fixed_size 0
  .amdhsa_kernarg_size 128
  .amdhsa_user_sgpr_count 2
  .amdhsa_user_sgpr_kernarg_segment_ptr 1
  .amdhsa_system_sgpr_workgroup_id_x 1
.end_amdhsa_kernel
"""
```

```python
from asmlib import *
from k_proj import WS_Q, WS_K, WS_VT, WS_CTX, WS_PART

PART_SLOT = 4 * 33 * 1024
LANE = 1
VK_OFF = 2
VV_OFF = 10
VKA = 12
VVA = 20
MC = 24; LSUM = 25
QREL = 29
T = 30
P = 48
SA = 64; SB_ = 96
O = 128
AQ = 0; AF = 64; NF = 8
S_K = 8; S_V = 12; S_Q = 16; S_PT = 20; S_C = 24; S_DB = 28
S_WAVE = 32; S_N = 33; S_CNT = 34; S_KOFF = 35; S_VOFF = 36; S_TMP = 37; S_M0 = 38
S_QT = 39; S_PAR = 40; S_HEAD = 41; S_SLOT = 42; S_CC = 43; S_T8 = 44; S_TMP2 = 45; S_NEG = 46
CEXP = 0.0625 * 1.4426950408889634
DEPTH = 4

def f2u(x):
    import struct
    return struct.unpack("<I", struct.pack("<f", x))[0]

def interleave(a, slots, valu):
    n = len(slots); m = len(valu); k = 0
    for i, s in enumerate(slots):
        for ins in s: a(ins)
        tgt = ((i + 1) * m + n - 1) // n
        while k < tgt:
            a(valu[k]); k += 1
    while k < m:
        a(valu[k]); k += 1

def dma_k(a, buf):
    for j in range(8):
        a(f"s_add_u32 m0, s{S_M0}, {buf*32768 + j*1024}")
        a(f"s_add_u32 s{S_TMP}, s{S_KOFF}, {j*1024}")
        a(f"buffer_load_dwordx4 v{VK_OFF+j}, s[{S_K}:{S_K+3}], s{S_TMP} offen lds")
    a(f"s_add_u32 s{S_KOFF}, s{S_KOFF}, {128*512}")
def dma_v(a, buf):
    for j in range(8):
        a(f"s_add_u32 m0, s{S_M0}, {65536 + buf*32768 + j*1024}")
        a(f"s_add_u32 s{S_TMP}, s{S_VOFF}, {j*8*4096}")
        a(f"buffer_load_dwordx4 v{VV_OFF+(j&1)}, s[{S_V}:{S_V+3}], s{S_TMP} offen lds")
    a(f"s_add_u32 s{S_VOFF}, s{S_VOFF}, 256")

def rd_k(kbuf, f):
    kb, ks = f >> 4, f & 15
    return f"v{VKA+(ks&7)} offset:{kbuf*32768 + kb*16384 + (ks>>3)*256}"
def rd_v(vbuf, f):
    ks, db = f >> 3, f & 7
    return f"v{VVA+ks} offset:{vbuf*32768 + db*4096}"

def softmax_valu(S, masked, uid):
    v = []
    if masked:
        for i in range(0, 32, 4):
            blk = []
            for u in range(4):
                e = i + u; kb, r = e >> 4, e & 15
                ko = 32 * kb + 8 * (r >> 2) + (r & 3)
                blk.append(f"v_cmp_lt_i32 s[{60+2*u}:{61+2*u}], v{QREL}, {ko}")
            for u in range(4):
                blk.append(f"v_cndmask_b32 v{S+i+u}, v{S+i+u}, v{T+8}, s[{60+2*u}:{61+2*u}]")
            v.append("\n".join(blk))
    v.append(f"v_max3_f32 v{T}, v{S}, v{S+1}, v{S+2}")
    v.append(f"v_max3_f32 v{T+1}, v{S+3}, v{S+4}, v{S+5}")
    for i in range(6, 30, 4):
        v.append(f"v_max3_f32 v{T}, v{T}, v{S+i}, v{S+i+1}")
        v.append(f"v_max3_f32 v{T+1}, v{T+1}, v{S+i+2}, v{S+i+3}")
    v.append(f"v_max3_f32 v{T}, v{T}, v{S+30}, v{S+31}")
    v.append(f"v_max_f32 v{T}, v{T}, v{T+1}")
    v.append(f"v_mov_b32 v{T+1}, v{T}\ns_nop 1\nv_permlane32_swap_b32 v{T}, v{T+1}\nv_max_f32 v{T}, v{T}, v{T+1}\n"
             f"v_fma_f32 v{T+1}, v{T}, s{S_CC}, -v{MC}\nv_cmp_lt_f32 vcc, s{S_T8}, v{T+1}\ns_cbranch_vccnz L_resc_{uid}\nL_resc_ret_{uid}:")
    for i in range(32):
        v.append(f"v_fma_f32 v{S+i}, v{S+i}, s{S_CC}, -v{MC}")
        if i >= 1:
            v.append(f"v_exp_f32 v{S+i-1}, v{S+i-1}")
        if i >= 3:
            v.append(f"v_add_f32 v{LSUM+((i-3)&3)}, v{LSUM+((i-3)&3)}, v{S+i-3}")
        if i >= 4 and (i & 1) == 0:
            v.append(f"v_cvt_pk_bf16_f32 v{P+(i-4)//2}, v{S+i-4}, v{S+i-3}")
    v.append(f"v_exp_f32 v{S+31}, v{S+31}")
    v.append(f"v_add_f32 v{LSUM+1}, v{LSUM+1}, v{S+29}")
    v.append(f"v_add_f32 v{LSUM+2}, v{LSUM+2}, v{S+30}")
    v.append(f"v_add_f32 v{LSUM+3}, v{LSUM+3}, v{S+31}")
    v.append(f"v_cvt_pk_bf16_f32 v{P+14}, v{S+28}, v{S+29}")
    v.append(f"v_cvt_pk_bf16_f32 v{P+15}, v{S+30}, v{S+31}")
    v.append("s_nop 1")
    return v

def rescale_block(a, uid):
    a.label(f"L_resc_{uid}")
    a(f"v_mul_f32 v{T+1}, s{S_CC}, v{T}")
    a(f"v_max_f32 v{T+1}, v{T+1}, v{MC}")
    a(f"v_sub_f32 v{T+2}, v{MC}, v{T+1}")
    a(f"v_exp_f32 v{T+2}, v{T+2}")
    a(f"v_mov_b32 v{MC}, v{T+1}")
    for i in range(4):
        a(f"v_mul_f32 v{LSUM+i}, v{LSUM+i}, v{T+2}")
    for i in range(128):
        a(f"v_mul_f32 v{O+i}, v{O+i}, v{T+2}")
    a(f"s_branch L_resc_ret_{uid}")

def qk_slots(kbuf, Sn):
    items = []
    for f in range(32):
        kb, ks = f >> 4, f & 15
        def mf(fr, kb=kb, ks=ks):
            c = "0" if ks == 0 else vr(Sn + 16 * kb, 16)
            return f"v_mfma_f32_32x32x16_bf16 {vr(Sn+16*kb,16)}, {ar(fr,4)}, {ar(AQ+4*ks,4)}, {c}"
        items.append((rd_k(kbuf, f), mf))
    return items
def pv_slots(vbuf):
    items = []
    for f in range(32):
        ks, db = f >> 3, f & 7
        def mf(fr, ks=ks, db=db):
            return f"v_mfma_f32_32x32x16_bf16 {vr(O+16*db,16)}, {ar(fr,4)}, {vr(P+4*ks,4)}, {vr(O+16*db,16)}"
        items.append((rd_v(vbuf, f), mf))
    return items

def make_slots(items):
    n = len(items)
    pre = [f"ds_read_b128 {ar(AF+4*(i%NF),4)}, {items[i][0]}" for i in range(min(DEPTH, n))]
    slots = []
    for i in range(n):
        s = []
        outstanding_after = min(DEPTH - 1, n - 1 - i)
        s.append(f"s_waitcnt lgkmcnt({outstanding_after})")
        s.append(items[i][1](AF + 4 * (i % NF)))
        if i + DEPTH < n:
            s.append(f"ds_read_b128 {ar(AF+4*((i+DEPTH)%NF),4)}, {items[i+DEPTH][0]}")
        slots.append(s)
    return pre, slots

def iteration(a, par, last, resc):
    Sc = SA if par == 0 else SB_
    Sn = SB_ if par == 0 else SA
    uid = a.newlabel("a")
    resc.append(uid)
    sm = softmax_valu(Sc, last, uid)
    if not last:
        items = qk_slots(par ^ 1, Sn) + pv_slots(par)
        pre, slots = make_slots(items)
        for p_ in pre: a(p_)
        interleave(a, slots[:32], sm)
        for s in slots[32:]:
            for ins in s: a(ins)
    else:
        items = pv_slots(par)
        pre, slots = make_slots(items)
        for p_ in pre: a(p_)
        for x in sm: a(x)
        for s in slots:
            for ins in s: a(ins)

def sequence(a, tag, resc):
    a(f"s_add_u32 s{S_N}, s{S_QT}, 1")
    a(f"s_lshl_b32 s{S_KOFF}, s{S_PAR}, 6")
    a(f"s_lshl_b32 s{S_TMP}, s{S_WAVE}, 4")
    a(f"s_add_u32 s{S_KOFF}, s{S_KOFF}, s{S_TMP}")
    a(f"s_lshl_b32 s{S_KOFF}, s{S_KOFF}, 9")
    a(f"s_lshl_b32 s{S_VOFF}, s{S_WAVE}, 18")
    a(f"s_lshl_b32 s{S_TMP}, s{S_PAR}, 7")
    a(f"s_add_u32 s{S_VOFF}, s{S_VOFF}, s{S_TMP}")
    a("s_barrier")
    dma_k(a, 0)
    dma_v(a, 0)
    a(f"s_cmp_lt_u32 s{S_N}, 2")
    a(f"s_cbranch_scc1 L_nok1_{tag}")
    dma_k(a, 1)
    a.label(f"L_nok1_{tag}")
    a(f"s_lshl_b32 s{S_TMP}, s{S_QT}, 7")
    a(f"s_lshl_b32 s{S_TMP2}, s{S_WAVE}, 5")
    a(f"s_add_u32 s{S_TMP}, s{S_TMP}, s{S_TMP2}")
    a(f"v_and_b32 v{T}, 31, v{LANE}")
    a(f"v_lshrrev_b32 v{T+1}, 5, v{LANE}")
    a(f"v_add_u32 v{T+2}, s{S_TMP}, v{T}")
    a(f"v_lshlrev_b32 v{T+3}, 9, v{T+2}")
    a(f"v_lshl_add_u32 v{T+3}, v{T+1}, 4, v{T+3}")
    for ks in range(16):
        a(f"buffer_load_dwordx4 {ar(AQ+4*ks,4)}, v{T+3}, s[{S_Q}:{S_Q+3}], 0 offen offset:{ks*32}")
    a(f"s_lshl_b32 s{S_TMP}, s{S_PAR}, 6")
    a(f"s_sub_u32 s{S_TMP}, s{S_TMP2}, s{S_TMP}")
    a(f"v_add_u32 v{QREL}, s{S_TMP}, v{T}")
    a(f"v_lshlrev_b32 v{T+1}, 2, v{T+1}")
    a(f"v_sub_u32 v{QREL}, v{QREL}, v{T+1}")
    a(f"v_mov_b32 v{MC}, s{S_NEG}")
    for i in range(4): a(f"v_mov_b32 v{LSUM+i}, 0")
    for i in range(128): a(f"v_mov_b32 v{O+i}, 0")
    a("s_waitcnt vmcnt(0)")
    a("s_barrier")
    pre, slots = make_slots(qk_slots(0, SA))
    for p_ in pre: a(p_)
    for s in slots:
        for ins in s: a(ins)
    a(f"s_mov_b32 s{S_CNT}, 0")
    for par in range(2):
        a.label(f"L_it{par}_{tag}")
        a("s_waitcnt vmcnt(0)")
        a("s_barrier")
        a(f"s_add_u32 s{S_TMP2}, s{S_CNT}, 2")
        a(f"s_cmp_ge_u32 s{S_TMP2}, s{S_N}")
        a(f"s_cbranch_scc1 L_nk{par}_{tag}")
        dma_k(a, par)
        a.label(f"L_nk{par}_{tag}")
        a(f"s_add_u32 s{S_CNT}, s{S_CNT}, 1")
        a(f"s_cmp_ge_u32 s{S_CNT}, s{S_N}")
        a(f"s_cbranch_scc1 L_last{par}_{tag}")
        dma_v(a, par ^ 1)
        iteration(a, par, False, resc)
        if par == 1:
            a(f"s_branch L_it0_{tag}")
    for par in range(2):
        a.label(f"L_last{par}_{tag}")
        a(f"v_mov_b32 v{T+8}, 0xff800000")
        iteration(a, par, True, resc)
        if par == 0:
            a(f"s_branch L_done_{tag}")
    a.label(f"L_done_{tag}")
    a("s_nop 7\ns_nop 7")

def gen_attn(a, name="attn_kernel", conv=None):
    a.raw(f".globl {name}\n.p2align 8\n.type {name},@function\n{name}:")
    a(f"s_cmp_ge_u32 s2, {256 + (224 if conv else 0)}")
    a("s_cbranch_scc1 L_attn_end")
    a("s_load_dwordx2 s[4:5], s[0:1], 120")
    a("s_load_dwordx2 s[6:7], s[0:1], 112")
    a(f"v_lshrrev_b32 v{T}, 6, v0")
    a(f"v_and_b32 v{LANE}, 63, v0")
    a(f"v_readfirstlane_b32 s{S_WAVE}, v{T}")
    if conv:
        a("s_cmp_ge_u32 s2, 256")
        a("s_cbranch_scc1 L_conv")
    a("s_and_b32 s47, s2, 7")
    a("s_lshr_b32 s48, s2, 3")
    a(f"s_and_b32 s{S_HEAD}, s48, 1")
    a("s_lshl_b32 s47, s47, 1")
    a(f"s_add_u32 s{S_HEAD}, s{S_HEAD}, s47")
    a("s_lshr_b32 s49, s48, 1")
    a("s_and_b32 s49, s49, 7")
    a(f"s_lshr_b32 s{S_PAR}, s48, 4")
    a(f"s_mov_b32 s{S_CC}, {f2u(CEXP)}")
    a(f"s_mov_b32 s{S_T8}, 0x41000000")
    a(f"s_mov_b32 s{S_NEG}, {f2u(-1e30)}")
    a(f"s_lshl_b32 s{S_M0}, s{S_WAVE}, 13")
    a(f"s_lshl_b32 s{S_SLOT}, s{S_HEAD}, 3")
    a(f"s_add_u32 s{S_SLOT}, s{S_SLOT}, s49")
    a(f"s_lshl_b32 s{S_SLOT}, s{S_SLOT}, 1")
    a(f"s_add_u32 s{S_SLOT}, s{S_SLOT}, s{S_PAR}")
    a(f"s_lshl_b32 s50, s{S_HEAD}, 20")
    a("s_waitcnt lgkmcnt(0)")
    def srd_head(d, off):
        a(f"s_add_u32 s{d}, s4, {off}")
        a(f"s_addc_u32 s{d+1}, s5, 0")
        a(f"s_add_u32 s{d}, s{d}, s50")
        a(f"s_addc_u32 s{d+1}, s{d+1}, 0")
        a(f"s_mov_b32 s{d+2}, {1<<20}")
        a(f"s_mov_b32 s{d+3}, 0x00020000")
    srd_head(S_K, WS_K); srd_head(S_V, WS_VT); srd_head(S_Q, WS_Q)
    srd(a, S_PT, 4, WS_PART, 256 * PART_SLOT)
    srd(a, S_C, 4, WS_CTX, 16 << 20)
    srd(a, S_DB, 6, 0, 256)
    a(f"v_lshrrev_b32 v{T}, 5, v{LANE}")
    a(f"v_and_b32 v{T+1}, 31, v{LANE}")
    a(f"v_xor_b32 v{T+1}, v{T+1}, v{T}")
    a(f"v_lshlrev_b32 v{T+2}, 9, v{T}")
    a(f"v_lshl_add_u32 v{VK_OFF}, v{T+1}, 4, v{T+2}")
    for j in range(1, 8):
        a(f"v_xor_b32 v{VK_OFF+j}, {j<<5}, v{VK_OFF}")
    a(f"v_lshrrev_b32 v{T}, 3, v{LANE}")
    a(f"v_lshlrev_b32 v{T+1}, 12, v{T}")
    a(f"v_lshrrev_b32 v{T+2}, 4, v{LANE}")
    a(f"v_and_b32 v{T+3}, 7, v{LANE}")
    a(f"v_xor_b32 v{T+4}, v{T+3}, v{T+2}")
    a(f"v_lshl_add_u32 v{VV_OFF}, v{T+4}, 4, v{T+1}")
    a(f"v_xor_b32 v{T+4}, 4, v{T+4}")
    a(f"v_lshl_add_u32 v{VV_OFF+1}, v{T+4}, 4, v{T+1}")
    a(f"v_and_b32 v{T}, 31, v{LANE}")
    a(f"v_lshrrev_b32 v{T+1}, 5, v{LANE}")
    a(f"v_and_b32 v{T+2}, 15, v{LANE}")
    a(f"v_xor_b32 v{T+2}, v{T+2}, v{T+1}")
    a(f"v_lshlrev_b32 v{T+3}, 9, v{T}")
    a(f"v_lshl_add_u32 v{VKA}, v{T+2}, 4, v{T+3}")
    for ks in range(1, 8):
        a(f"v_xor_b32 v{VKA+ks}, {ks<<5}, v{VKA}")
    a(f"v_bfe_u32 v{T+2}, v{LANE}, 1, 3")
    a(f"v_xor_b32 v{T+2}, v{T+2}, v{T+1}")
    a(f"v_lshlrev_b32 v{T+3}, 7, v{T}")
    a(f"v_lshl_add_u32 v{VVA}, v{T+2}, 4, v{T+3}")
    a(f"v_add_u32 v{VVA}, 0x10000, v{VVA}")
    for ks in range(1, 4):
        a(f"v_xor_b32 v{VVA+ks}, {ks<<5}, v{VVA}")
    resc = []
    a("s_sub_u32 s51, 15, s49")
    a(f"s_cmp_eq_u32 s{S_PAR}, 0")
    a(f"s_cselect_b32 s{S_QT}, s51, s49")
    a(f"s_cselect_b32 s52, s49, s51")
    sequence(a, "x", resc)
    a(f"s_mul_i32 s{S_TMP}, s{S_SLOT}, {PART_SLOT}")
    a(f"s_mul_i32 s{S_TMP2}, s{S_WAVE}, {33*1024}")
    a(f"s_add_u32 s{S_TMP}, s{S_TMP}, s{S_TMP2}")
    a(f"v_lshlrev_b32 v{T+4}, 4, v{LANE}")
    a(f"v_add_f32 v{T+1}, v{LSUM}, v{LSUM+1}")
    a(f"v_add_f32 v{T+2}, v{LSUM+2}, v{LSUM+3}")
    a(f"v_mov_b32 v{T}, v{MC}")
    a(f"v_add_f32 v{T+1}, v{T+1}, v{T+2}")
    for c in range(32):
        if c and c % 4 == 0:
            a(f"s_add_u32 s{S_TMP}, s{S_TMP}, 4096")
        a(f"buffer_store_dwordx4 {vr(O+4*c,4)}, v{T+4}, s[{S_PT}:{S_PT+3}], s{S_TMP} offen offset:{(c%4)*1024} sc1")
    a(f"s_add_u32 s{S_TMP}, s{S_TMP}, 4096")
    a(f"buffer_store_dwordx2 {vr(T,2)}, v{T+4}, s[{S_PT}:{S_PT+3}], s{S_TMP} offen sc1")
    a("s_waitcnt vmcnt(0)")
    a("s_barrier")
    a(f"s_cmp_lg_u32 s{S_WAVE}, 0")
    a("s_cbranch_scc1 L_noflag")
    a(f"v_mov_b32 v{T}, 1")
    a(f"v_mov_b32 v{T+1}, s{S_SLOT}")
    a("s_mov_b64 exec, 1")
    a(f"buffer_store_byte v{T}, v{T+1}, s[{S_DB}:{S_DB+3}], 0 offen sc1")
    a("s_mov_b64 exec, -1")
    a.label("L_noflag")
    a(f"s_mov_b32 s{S_QT}, s52")
    sequence(a, "y", resc)
    a(f"s_xor_b32 s53, s{S_SLOT}, 1")
    a(f"s_cmp_lg_u32 s{S_WAVE}, 0")
    a("s_cbranch_scc1 L_nopoll")
    a(f"v_mov_b32 v{T+1}, s53")
    a.label("L_poll")
    a(f"buffer_load_ubyte v{T}, v{T+1}, s[{S_DB}:{S_DB+3}], 0 offen sc1")
    a("s_waitcnt vmcnt(0)")
    a(f"v_readfirstlane_b32 s{S_TMP}, v{T}")
    a("s_nop 3")
    a(f"s_cmp_lg_u32 s{S_TMP}, 0")
    a("s_cbranch_scc1 L_nopoll")
    a("s_sleep 2")
    a("s_branch L_poll")
    a.label("L_nopoll")
    a("s_barrier")
    a(f"s_mul_i32 s{S_TMP}, s53, {PART_SLOT}")
    a(f"s_mul_i32 s{S_TMP2}, s{S_WAVE}, {33*1024}")
    a(f"s_add_u32 s{S_TMP}, s{S_TMP}, s{S_TMP2}")
    a(f"v_lshlrev_b32 v{T+4}, 4, v{LANE}")
    a(f"s_add_u32 s{S_TMP2}, s{S_TMP}, {32*1024}")
    a(f"buffer_load_dwordx2 {vr(T+6,2)}, v{T+4}, s[{S_PT}:{S_PT+3}], s{S_TMP2} offen sc1")
    def ld(bt):
        for c in range(8):
            cc = bt * 8 + c
            a(f"s_add_u32 s{S_TMP2}, s{S_TMP}, {cc*1024}")
            a(f"buffer_load_dwordx4 {vr(SA+(bt&1)*32+4*c,4)}, v{T+4}, s[{S_PT}:{S_PT+3}], s{S_TMP2} offen sc1")
    ld(0); ld(1)
    a(f"v_add_f32 v{T+1}, v{LSUM}, v{LSUM+1}")
    a(f"v_add_f32 v{T+2}, v{LSUM+2}, v{LSUM+3}")
    a(f"v_add_f32 v{T+1}, v{T+1}, v{T+2}")
    a("s_waitcnt vmcnt(16)")
    a(f"v_max_f32 v{T+2}, v{MC}, v{T+6}")
    a(f"v_sub_f32 v{T+3}, v{MC}, v{T+2}")
    a(f"v_sub_f32 v{T+5}, v{T+6}, v{T+2}")
    a(f"v_exp_f32 v{T+3}, v{T+3}")
    a(f"v_exp_f32 v{T+5}, v{T+5}")
    a("s_nop 0")
    a(f"v_mul_f32 v{T+1}, v{T+1}, v{T+3}")
    a(f"v_fma_f32 v{T+1}, v{T+7}, v{T+5}, v{T+1}")
    a(f"v_mov_b32 v{T+2}, v{T+1}")
    a("s_nop 1")
    a(f"v_permlane32_swap_b32 v{T+1}, v{T+2}")
    a(f"v_add_f32 v{T+1}, v{T+1}, v{T+2}")
    a(f"v_rcp_f32 v{T+1}, v{T+1}")
    a("s_nop 0")
    a(f"v_mul_f32 v{T+3}, v{T+3}, v{T+1}")
    a(f"v_mul_f32 v{T+5}, v{T+5}, v{T+1}")
    for bt in range(4):
        a(f"s_waitcnt vmcnt({8 if bt < 3 else 0})")
        for i in range(32):
            a(f"v_mul_f32 v{O+bt*32+i}, v{O+bt*32+i}, v{T+3}")
            a(f"v_fma_f32 v{O+bt*32+i}, v{SA+(bt&1)*32+i}, v{T+5}, v{O+bt*32+i}")
        if bt + 2 < 4:
            ld(bt + 2)
    a(f"v_and_b32 v{T}, 31, v{LANE}")
    a(f"v_lshrrev_b32 v{T+1}, 5, v{LANE}")
    a(f"v_and_b32 v{T+2}, 15, v{LANE}")
    a(f"v_lshlrev_b32 v{T+3}, 9, v{T}")
    a(f"v_lshl_add_u32 v{T+3}, v{T+2}, 4, v{T+3}")
    a(f"v_lshl_add_u32 v{T+3}, v{T+1}, 3, v{T+3}")
    a(f"s_lshl_b32 s{S_TMP}, s{S_WAVE}, 14")
    a(f"v_add_u32 v{T+3}, s{S_TMP}, v{T+3}")
    n = 0
    for db in range(8):
        for q4 in range(4):
            c = 4 * db + q4
            r = O + 16 * db + 4 * q4
            p = SA + (n % 8) * 2; n += 1
            a(f"v_xor_b32 v{T+4+(n&1)}, {(c&15)<<4}, v{T+3}")
            a(f"v_cvt_pk_bf16_f32 v{p}, v{r}, v{r+1}")
            a(f"v_cvt_pk_bf16_f32 v{p+1}, v{r+2}, v{r+3}")
            a(f"ds_write_b64 v{T+4+(n&1)}, {vr(p,2)} offset:{(c>>4)*256}")
    a(f"v_and_b32 v{T}, 31, v{LANE}")
    a(f"v_xor_b32 v{T+2}, v{T}, v{T+1}")
    a(f"v_lshlrev_b32 v{T+3}, 9, v{T+1}")
    a(f"v_lshl_add_u32 v{T+3}, v{T+2}, 4, v{T+3}")
    a(f"v_add_u32 v{T+3}, s{S_TMP}, v{T+3}")
    a(f"v_lshlrev_b32 v{T+4}, 13, v{T+1}")
    a(f"v_lshl_add_u32 v{T+4}, v{T}, 4, v{T+4}")
    a(f"s_lshl_b32 s{S_TMP}, s{S_QT}, 7")
    a(f"s_lshl_b32 s{S_TMP2}, s{S_WAVE}, 5")
    a(f"s_add_u32 s{S_TMP}, s{S_TMP}, s{S_TMP2}")
    a(f"s_lshl_b32 s{S_TMP}, s{S_TMP}, 13")
    a(f"s_lshl_b32 s{S_TMP2}, s{S_HEAD}, 9")
    a(f"s_add_u32 s{S_TMP}, s{S_TMP}, s{S_TMP2}")
    a("s_waitcnt lgkmcnt(0)")
    for t in range(16):
        a(f"v_xor_b32 v{T+5+(t&1)}, {(t&7)<<5}, v{T+3}")
        a(f"ds_read_b128 {vr(O+4*t,4)}, v{T+5+(t&1)} offset:{t*1024}")
    for t in range(16):
        a(f"s_waitcnt lgkmcnt({15-t})")
        a(f"s_add_u32 s{S_TMP2}, s{S_TMP}, {t*2*8192}")
        a(f"buffer_store_dwordx4 {vr(O+4*t,4)}, v{T+4}, s[{S_C}:{S_C+3}], s{S_TMP2} offen")
    a.label("L_attn_end")
    a("s_endpgm")
    for uid in resc:
        rescale_block(a, uid)
    if conv:
        a.label("L_conv")
        conv(a, LANE, S_WAVE)
        a("s_endpgm")
```

```python
from asmlib import *
from k_proj import WS_CTX, WS_Y2T
WS_G = WS_Y2T + (4 << 20)
WS_UT = WS_Y2T + (2 << 20)

def gen_out(a, name="out_kernel"):
    LANE = 1; VXO = 2; VWO = 4; VXA = 5; VWA = 9; T = 12; FR = 32; ACC = 64
    S_X = 8; S_W = 12; S_O = 16; S_Q = 20; S_Y = 24; S_G = 28
    S_WAVE = 32; S_M0 = 33; S_XOFF = 34; S_WOFF = 35; S_TMP = 36; S_RB = 37; S_CB = 38; S_TMP2 = 39
    a.raw(f".globl {name}\n.p2align 8\n.type {name},@function\n{name}:")
    a("s_cmp_ge_u32 s2, 224")
    a("s_cbranch_scc1 L_out_end")
    a("s_load_dwordx2 s[4:5], s[0:1], 120")
    a("s_load_dwordx2 s[6:7], s[0:1], 88")
    a("s_load_dwordx2 s[40:41], s[0:1], 104")
    a("s_load_dwordx2 s[42:43], s[0:1], 0")
    a(f"v_lshrrev_b32 v{T}, 6, v0")
    a(f"v_and_b32 v{LANE}, 63, v0")
    a(f"v_readfirstlane_b32 s{S_WAVE}, v{T}")
    a("s_and_b32 s44, s2, 7")
    a("s_lshr_b32 s45, s2, 3")
    a("s_mul_i32 s46, s45, 37")
    a("s_lshr_b32 s46, s46, 8")
    a("s_mul_i32 s47, s46, 7")
    a(f"s_sub_u32 s{S_CB}, s45, s47")
    a(f"s_lshl_b32 s{S_RB}, s44, 2")
    a(f"s_add_u32 s{S_RB}, s{S_RB}, s46")
    a("s_waitcnt lgkmcnt(0)")
    srd(a, S_X, 4, WS_CTX, 16 << 20)
    srd(a, S_W, 6, 0, 4096 * 448 * 2)
    srd(a, S_O, 40, 0, 2048 * 448 * 2)
    srd(a, S_Q, 42, 0, 2048 * 448 * 2)
    srd(a, S_Y, 4, WS_Y2T, 448 * 2048 * 2)
    srd(a, S_G, 4, WS_G, 2048 * 4)
    a(f"v_lshrrev_b32 v{T}, 3, v{LANE}")
    a(f"v_lshlrev_b32 v{T+1}, 13, v{T}")
    a(f"v_lshrrev_b32 v{T+2}, 4, v{LANE}")
    a(f"v_and_b32 v{T+3}, 7, v{LANE}")
    a(f"v_xor_b32 v{T+4}, v{T+3}, v{T+2}")
    a(f"v_lshl_add_u32 v{VXO}, v{T+4}, 4, v{T+1}")
    a(f"v_xor_b32 v{T+4}, 4, v{T+4}")
    a(f"v_lshl_add_u32 v{VXO+1}, v{T+4}, 4, v{T+1}")
    a(f"v_mul_u32_u24 v{T+1}, 896, v{T}")
    a(f"v_bfe_u32 v{T+2}, v{LANE}, 4, 1")
    a(f"v_lshlrev_b32 v{T+2}, 2, v{T+2}")
    a(f"v_xor_b32 v{T+4}, v{T+3}, v{T+2}")
    a(f"v_lshl_add_u32 v{VWO}, v{T+4}, 4, v{T+1}")
    a(f"s_lshl_b32 s{S_M0}, s{S_WAVE}, 15")
    a(f"s_lshl_b32 s{S_XOFF}, s{S_RB}, 19")
    a(f"s_lshl_b32 s{S_TMP}, s{S_WAVE}, 7")
    a(f"s_add_u32 s{S_XOFF}, s{S_XOFF}, s{S_TMP}")
    a(f"s_mul_i32 s{S_WOFF}, s{S_WAVE}, {64*896}")
    a(f"s_lshl_b32 s{S_TMP}, s{S_CB}, 7")
    a(f"s_add_u32 s{S_WOFF}, s{S_WOFF}, s{S_TMP}")
    def dma(stage, t):
        for j in range(8):
            a(f"s_add_u32 m0, s{S_M0}, {stage*16384 + j*1024}")
            a(f"s_add_u32 s{S_TMP}, s{S_XOFF}, {t*512 + j*8*8192}")
            a(f"buffer_load_dwordx4 v{VXO+(j&1)}, s[{S_X}:{S_X+3}], s{S_TMP} offen lds")
        for j in range(8):
            a(f"s_add_u32 m0, s{S_M0}, {stage*16384 + 8192 + j*1024}")
            a(f"s_add_u32 s{S_TMP}, s{S_WOFF}, {(t*256 + j*8)*896}")
            a(f"buffer_load_dwordx4 v{VWO}, s[{S_W}:{S_W+3}], s{S_TMP} offen lds")
    dma(0, 0)
    a(f"v_and_b32 v{T}, 31, v{LANE}")
    a(f"v_lshrrev_b32 v{T+1}, 5, v{LANE}")
    a(f"v_bfe_u32 v{T+2}, v{LANE}, 1, 3")
    a(f"v_xor_b32 v{T+2}, v{T+2}, v{T+1}")
    a(f"v_lshlrev_b32 v{T+3}, 7, v{T}")
    a(f"v_add_u32 v{T+3}, s{S_M0}, v{T+3}")
    a(f"v_lshl_add_u32 v{VXA}, v{T+2}, 4, v{T+3}")
    for ks in range(1, 4):
        a(f"v_xor_b32 v{VXA+ks}, {ks<<5}, v{VXA}")
    a(f"v_bfe_u32 v{T}, v{LANE}, 2, 2")
    a(f"v_lshl_add_u32 v{T+2}, v{T+1}, 3, v{T}")
    a(f"v_lshlrev_b32 v{T+2}, 7, v{T+2}")
    a(f"v_bfe_u32 v{T+3}, v{LANE}, 4, 1")
    a(f"v_lshl_add_u32 v{T+2}, v{T+3}, 5, v{T+2}")
    a(f"v_bfe_u32 v{T+3}, v{LANE}, 1, 1")
    a(f"v_lshl_add_u32 v{T+2}, v{T+3}, 4, v{T+2}")
    a(f"v_and_b32 v{T+3}, 1, v{LANE}")
    a(f"v_lshl_add_u32 v{T+2}, v{T+3}, 3, v{T+2}")
    a(f"v_bfe_u32 v{T+3}, v{LANE}, 3, 1")
    a(f"v_lshl_add_u32 v{T+2}, v{T+3}, 6, v{T+2}")
    a(f"v_add_u32 v{T+2}, s{S_M0}, v{T+2}")
    a(f"v_add_u32 v{VWA}, 0x2000, v{T+2}")
    a(f"v_xor_b32 v{VWA+1}, 64, v{VWA}")
    def fx(st, sb): return FR + st * 16 + sb * 4
    def fw(st, nb): return FR + st * 16 + 8 + nb * 4
    def acc(sb, nb): return ACC + (sb * 2 + nb) * 16
    def reads(stage, ks, st):
        for nb in range(2):
            a(f"ds_read_b64_tr_b16 {vr(fw(st,nb),2)}, v{VWA+nb} offset:{stage*16384 + 16*ks*128}")
            a(f"ds_read_b64_tr_b16 {vr(fw(st,nb)+2,2)}, v{VWA+nb} offset:{stage*16384 + (16*ks+4)*128}")
        for sb in range(2):
            a(f"ds_read_b128 {vr(fx(st,sb),4)}, v{VXA+ks} offset:{stage*16384 + sb*4096}")
    for t in range(16):
        stg = t & 1
        if t + 1 < 16:
            dma(stg ^ 1, t + 1)
            a("s_waitcnt vmcnt(16)")
        else:
            a("s_waitcnt vmcnt(0)")
        reads(stg, 0, 0)
        for ks in range(4):
            if ks < 3:
                reads(stg, ks + 1, (ks + 1) & 1)
                a("s_waitcnt lgkmcnt(6)")
            else:
                a("s_waitcnt lgkmcnt(0)")
            for sb in range(2):
                for nb in range(2):
                    c = "0" if (t == 0 and ks == 0) else vr(acc(sb, nb), 16)
                    a(f"v_mfma_f32_32x32x16_bf16 {vr(acc(sb,nb),16)}, {vr(fw(ks&1,nb),4)}, {vr(fx(ks&1,sb),4)}, {c}")
    a(f"s_lshr_b32 s44, s{S_WAVE}, 1")
    a(f"s_and_b32 s45, s{S_WAVE}, 1")
    a(f"v_and_b32 v{T}, 31, v{LANE}")
    a(f"v_lshrrev_b32 v{T+1}, 5, v{LANE}")
    a(f"s_lshl_b32 s46, s{S_RB}, 6")
    a("s_lshl_b32 s47, s44, 5")
    a("s_add_u32 s46, s46, s47")
    a(f"v_add_u32 v{T+2}, s46, v{T}")
    a(f"s_lshl_b32 s47, s{S_CB}, 6")
    a("s_lshl_b32 s48, s45, 5")
    a("s_add_u32 s47, s47, s48")
    a(f"v_lshlrev_b32 v{T+3}, 2, v{T+2}")
    a(f"buffer_load_dword v{T+8}, v{T+3}, s[{S_G}:{S_G+3}], 0 offen")
    a(f"v_mul_u32_u24 v{T+3}, 896, v{T+2}")
    a(f"v_lshl_add_u32 v{T+3}, v{T+1}, 3, v{T+3}")
    a("s_lshl_b32 s48, s47, 1")
    a(f"v_add_u32 v{T+3}, s48, v{T+3}")
    XQ = FR
    for q4 in range(4):
        a(f"buffer_load_dwordx2 {vr(XQ+2*q4,2)}, v{T+3}, s[{S_Q}:{S_Q+3}], 0 offen offset:{q4*16}")
    a(f"v_lshlrev_b32 v{T+4}, 14, v{T+1}")
    a(f"v_lshl_add_u32 v{T+4}, v{T+2}, 1, v{T+4}")
    a("s_lshl_b32 s48, s47, 12")
    YQ = FR + 8
    for q4 in range(4):
        for i in range(4):
            a(f"s_add_u32 s{S_TMP}, s48, {(8*q4+i)*4096}")
            a(f"buffer_load_ushort v{YQ+4*q4+i}, v{T+4}, s[{S_Y}:{S_Y+3}], s{S_TMP} offen")
    a("s_nop 7")
    a(f"v_lshlrev_b32 v{T+5}, 4, v{LANE}")
    a(f"v_add_u32 v{T+6}, s{S_M0}, v{T+5}")
    for c in range(16):
        a(f"ds_write_b128 v{T+6}, {vr(ACC+4*c,4)} offset:{c*1024}")
    a("s_waitcnt lgkmcnt(0)")
    a("s_barrier")
    a(f"s_lshl_b32 s{S_TMP}, s{S_WAVE}, 12")
    a(f"v_add_u32 v{T+6}, s{S_TMP}, v{T+5}")
    a(f"v_add_u32 v{T+7}, 0x10000, v{T+6}")
    for w in range(4):
        for c in range(4):
            a(f"ds_read_b128 {vr(ACC+16*w+4*c,4)}, v{T+6+(w>>1)} offset:{(w&1)*32768 + c*1024}")
    a("s_waitcnt lgkmcnt(0)")
    for i in range(16):
        a(f"v_add_f32 v{ACC+i}, v{ACC+i}, v{ACC+16+i}")
        a(f"v_add_f32 v{ACC+32+i}, v{ACC+32+i}, v{ACC+48+i}")
        a(f"v_add_f32 v{ACC+i}, v{ACC+i}, v{ACC+32+i}")
    a("s_waitcnt vmcnt(0)")
    G = T + 8; G1 = T + 9
    a(f"v_sub_f32 v{G1}, 1.0, v{G}")
    a(f"v_cvt_pk_bf16_f32 v{G1}, v{G1}, v{G1}")
    a(f"v_lshlrev_b32 v{G1}, 16, v{G1}")
    U = ACC + 16
    for q4 in range(4):
        for pr in range(2):
            i0 = 4 * q4 + 2 * pr
            xr = XQ + 2 * q4 + pr
            a(f"v_cvt_pk_bf16_f32 v{U}, v{ACC+i0}, v{ACC+i0+1}")
            a(f"v_lshlrev_b32 v{U+1}, 16, v{U}")
            a(f"v_and_b32 v{U+2}, 0xffff0000, v{U}")
            a(f"v_mul_f32 v{U+1}, v{U+1}, v{G1}")
            a(f"v_mul_f32 v{U+2}, v{U+2}, v{G1}")
            a(f"v_cvt_pk_bf16_f32 v{U}, v{U+1}, v{U+2}")
            a(f"v_lshlrev_b32 v{U+3}, 16, v{xr}")
            a(f"v_and_b32 v{U+4}, 0xffff0000, v{xr}")
            a(f"v_lshlrev_b32 v{U+5}, 16, v{YQ+i0}")
            a(f"v_lshlrev_b32 v{U+6}, 16, v{YQ+i0+1}")
            a(f"v_mul_f32 v{U+3}, v{U+3}, v{U+5}")
            a(f"v_mul_f32 v{U+4}, v{U+4}, v{U+6}")
            a(f"v_cvt_pk_bf16_f32 v{U+3}, v{U+3}, v{U+4}")
            a(f"v_lshlrev_b32 v{U+4}, 16, v{U+3}")
            a(f"v_and_b32 v{U+5}, 0xffff0000, v{U+3}")
            a(f"v_mul_f32 v{U+4}, v{U+4}, v{G}")
            a(f"v_mul_f32 v{U+5}, v{U+5}, v{G}")
            a(f"v_cvt_pk_bf16_f32 v{U+3}, v{U+4}, v{U+5}")
            a(f"v_lshlrev_b32 v{U+4}, 16, v{U+3}")
            a(f"v_and_b32 v{U+5}, 0xffff0000, v{U+3}")
            a(f"v_lshlrev_b32 v{U+1}, 16, v{U}")
            a(f"v_and_b32 v{U+2}, 0xffff0000, v{U}")
            a(f"v_add_f32 v{U+4}, v{U+4}, v{U+1}")
            a(f"v_add_f32 v{U+5}, v{U+5}, v{U+2}")
            a(f"v_cvt_pk_bf16_f32 v{U+8+2*q4+pr}, v{U+4}, v{U+5}")
        a(f"buffer_store_dwordx2 {vr(U+8+2*q4,2)}, v{T+3}, s[{S_O}:{S_O+3}], 0 offen offset:{q4*16}")
    a.label("L_out_end")
    a("s_endpgm")
```

```python
from asmlib import *

WS_Q = 0
WS_K = 16 << 20
WS_VT = 32 << 20
WS_CTX = 48 << 20
WS_Y2T = 64 << 20
WS_PART = 72 << 20

V_LANE = 1
V_XOFF = 2
V_WOFF = 4
V_XA = 6
V_WA = 14
V_T = 18
V_FR = 32
V_ACC = 128
S_X = 8; S_W = 12; S_O = 16
S_WAVE = 30; S_M0X = 31; S_M0W = 32; S_XOFF = 33; S_WOFF = 34; S_TMP = 35; S_OB = 36
S_WS_ = 37; S_WN_ = 38

def gemm_job(a, TS, KT, ldx, vtype, side=None):
    SB = TS // 64
    XI = TS // 64
    T = V_T
    a(f"v_lshrrev_b32 v{T}, 3, v{V_LANE}")
    a(f"s_mov_b32 s{S_TMP}, {ldx}")
    a(f"v_mul_lo_u32 v{T+1}, v{T}, s{S_TMP}")
    a(f"v_lshrrev_b32 v{T+2}, 4, v{V_LANE}")
    a(f"v_and_b32 v{T+3}, 7, v{V_LANE}")
    a(f"v_xor_b32 v{T+4}, v{T+3}, v{T+2}")
    a(f"v_lshl_add_u32 v{V_XOFF}, v{T+4}, 4, v{T+1}")
    a(f"v_xor_b32 v{T+4}, 4, v{T+4}")
    a(f"v_lshl_add_u32 v{V_XOFF+1}, v{T+4}, 4, v{T+1}")
    a(f"v_lshrrev_b32 v{T}, 5, v{V_LANE}")
    a(f"v_and_b32 v{T+1}, 31, v{V_LANE}")
    a(f"v_lshlrev_b32 v{T+2}, 2, v{T}")
    a(f"v_xor_b32 v{T+1}, v{T+1}, v{T+2}")
    a(f"v_lshlrev_b32 v{T+3}, 13, v{T}")
    a(f"v_lshl_add_u32 v{V_WOFF}, v{T+1}, 4, v{T+3}")
    a(f"v_xor_b32 v{T+1}, 8, v{T+1}")
    a(f"v_lshl_add_u32 v{V_WOFF+1}, v{T+1}, 4, v{T+3}")
    a(f"s_mul_i32 s{S_M0X}, s{S_WAVE}, {TS//8*128}")
    a(f"s_lshl_b32 s{S_M0W}, s{S_WAVE}, 12")
    a(f"s_mul_i32 s{S_XOFF}, s{S_WAVE}, {TS//8}")
    a(f"s_add_u32 s{S_XOFF}, s{S_XOFF}, s40")
    a(f"s_mul_i32 s{S_XOFF}, s{S_XOFF}, {ldx}")
    a(f"s_lshl_b32 s{S_WOFF}, s{S_WAVE}, 16")
    a(f"s_add_u32 s{S_WOFF}, s{S_WOFF}, s41")

    def dma(stage, kt):
        for j in range(XI):
            a(f"s_add_u32 m0, s{S_M0X}, {stage*65536 + j*1024}")
            a(f"s_add_u32 s{S_TMP}, s{S_XOFF}, {kt*128 + j*8*ldx}")
            a(f"buffer_load_dwordx4 v{V_XOFF+(j&1)}, s[{S_X}:{S_X+3}], s{S_TMP} offen lds")
        for j in range(4):
            a(f"s_add_u32 m0, s{S_M0W}, {stage*65536 + 32768 + j*1024}")
            a(f"s_add_u32 s{S_TMP}, s{S_WOFF}, {(kt*64 + 2*j)*8192}")
            a(f"buffer_load_dwordx4 v{V_WOFF+(j&1)}, s[{S_W}:{S_W+3}], s{S_TMP} offen lds")
    dma(0, 0)
    a(f"v_and_b32 v{T}, 31, v{V_LANE}")
    a(f"v_lshrrev_b32 v{T+1}, 5, v{V_LANE}")
    a(f"v_bfe_u32 v{T+2}, v{V_LANE}, 1, 3")
    a(f"v_xor_b32 v{T+2}, v{T+2}, v{T+1}")
    a(f"s_mul_i32 s{S_TMP}, s{S_WS_}, {TS//2*128}")
    a(f"v_lshlrev_b32 v{T+3}, 7, v{T}")
    a(f"v_add_u32 v{T+3}, s{S_TMP}, v{T+3}")
    a(f"v_lshl_add_u32 v{V_XA}, v{T+2}, 4, v{T+3}")
    for ks in range(1, 4):
        a(f"v_xor_b32 v{V_XA+ks}, {ks<<5}, v{V_XA}")
    for ks in range(4):
        a(f"v_add_u32 v{V_XA+4+ks}, 0x10000, v{V_XA+ks}")
    a(f"v_bfe_u32 v{T}, v{V_LANE}, 2, 2")
    a(f"v_lshl_add_u32 v{T+2}, v{T+1}, 3, v{T}")
    a(f"v_lshlrev_b32 v{T+2}, 9, v{T+2}")
    a(f"v_bfe_u32 v{T+3}, v{V_LANE}, 4, 1")
    a(f"v_lshlrev_b32 v{T+3}, 5, v{T+3}")
    a(f"v_add_u32 v{T+2}, v{T+2}, v{T+3}")
    a(f"v_bfe_u32 v{T+3}, v{V_LANE}, 1, 1")
    a(f"v_lshl_add_u32 v{T+2}, v{T+3}, 4, v{T+2}")
    a(f"v_and_b32 v{T+3}, 1, v{V_LANE}")
    a(f"v_lshl_add_u32 v{T+2}, v{T+3}, 3, v{T+2}")
    a(f"v_add_u32 v{T+2}, 0x8000, v{T+2}")
    for nb in range(2):
        a(f"s_lshl_b32 s{S_TMP}, s{S_WN_}, 1")
        a(f"s_add_u32 s{S_TMP}, s{S_TMP}, {nb}")
        a(f"v_xor_b32 v{T+3}, s{S_TMP}, v{T}")
        a(f"v_lshl_add_u32 v{V_WA+nb}, v{T+3}, 6, v{T+2}")
        a(f"v_add_u32 v{V_WA+2+nb}, 0x10000, v{V_WA+nb}")

    if side: side(a, V_LANE, S_WAVE, V_ACC)
    def fx(st, sb): return V_FR + st * 24 + sb * 4
    def fw(st, nb): return V_FR + st * 24 + 16 + nb * 4
    def acc(sb, nb): return V_ACC + (sb * 2 + nb) * 16
    def reads(stage, ks, st):
        for nb in range(2):
            a(f"ds_read_b64_tr_b16 {vr(fw(st,nb),2)}, v{V_WA+stage*2+nb} offset:{(16*ks)*512}")
            a(f"ds_read_b64_tr_b16 {vr(fw(st,nb)+2,2)}, v{V_WA+stage*2+nb} offset:{(16*ks+4)*512}")
        for sb in range(SB):
            a(f"ds_read_b128 {vr(fx(st,sb),4)}, v{V_XA+stage*4+ks} offset:{sb*4096}")
    def mfmas(st, first):
        for sb in range(SB):
            for nb in range(2):
                c = "0" if first else vr(acc(sb, nb), 16)
                if vtype:
                    a(f"v_mfma_f32_32x32x16_bf16 {vr(acc(sb,nb),16)}, {vr(fx(st,sb),4)}, {vr(fw(st,nb),4)}, {c}")
                else:
                    a(f"v_mfma_f32_32x32x16_bf16 {vr(acc(sb,nb),16)}, {vr(fw(st,nb),4)}, {vr(fx(st,sb),4)}, {c}")
    for t in range(KT):
        stg = t & 1
        a("s_waitcnt vmcnt(0)")
        a("s_barrier")
        if t + 1 < KT:
            dma(stg ^ 1, t + 1)
        reads(stg, 0, 0)
        for ks in range(4):
            if ks < 3:
                reads(stg, ks + 1, (ks + 1) & 1)
                a(f"s_waitcnt lgkmcnt({SB+4})")
            else:
                a("s_waitcnt lgkmcnt(0)")
            mfmas(ks & 1, t == 0 and ks == 0)
    a("s_barrier")
    a("s_nop 7")
    a("s_nop 7")
    P = V_FR
    a(f"s_lshl_b32 s{S_TMP}, s{S_WAVE}, 14")
    if not vtype:
        a(f"v_and_b32 v{T}, 31, v{V_LANE}")
        a(f"v_lshrrev_b32 v{T+1}, 5, v{V_LANE}")
        a(f"v_and_b32 v{T+2}, 7, v{V_LANE}")
        a(f"v_lshlrev_b32 v{T+3}, 7, v{T}")
        a(f"v_lshl_add_u32 v{T+3}, v{T+2}, 4, v{T+3}")
        a(f"v_lshl_add_u32 v{T+3}, v{T+1}, 3, v{T+3}")
        a(f"v_add_u32 v{T+3}, s{S_TMP}, v{T+3}")
        WA = V_XA
        for c in range(8):
            a(f"v_xor_b32 v{WA+c}, {c<<4}, v{T+3}")
        n = 0
        for sb in range(SB):
            for nb in range(2):
                for q4 in range(4):
                    r = acc(sb, nb) + 4 * q4
                    p = P + (n % 8) * 2; n += 1
                    a(f"v_cvt_pk_bf16_f32 v{p}, v{r}, v{r+1}")
                    a(f"v_cvt_pk_bf16_f32 v{p+1}, v{r+2}, v{r+3}")
                    a(f"ds_write_b64 v{WA+4*nb+q4}, {vr(p,2)} offset:{sb*4096}")
        a(f"v_lshrrev_b32 v{T}, 3, v{V_LANE}")
        a(f"v_and_b32 v{T+1}, 7, v{V_LANE}")
        a(f"v_xor_b32 v{T+2}, v{T}, v{T+1}")
        a(f"v_lshlrev_b32 v{T+3}, 7, v{T}")
        a(f"v_lshl_add_u32 v{T+3}, v{T+2}, 4, v{T+3}")
        a(f"v_add_u32 v{T+3}, s{S_TMP}, v{T+3}")
        a(f"v_lshlrev_b32 v{T+4}, 9, v{T}")
        a(f"v_lshl_add_u32 v{T+4}, v{T+1}, 4, v{T+4}")
        a(f"s_mul_i32 s{S_OB}, s{S_WS_}, {TS//2*512}")
        a(f"s_add_u32 s{S_OB}, s{S_OB}, s42")
        a(f"s_lshl_b32 s{S_TMP}, s{S_WN_}, 7")
        a(f"s_add_u32 s{S_OB}, s{S_OB}, s{S_TMP}")
        a("s_waitcnt lgkmcnt(0)")
        NT = SB * 4
        for t in range(NT):
            a(f"ds_read_b128 {vr(V_ACC+4*t,4)}, v{T+3} offset:{t*1024}")
        for t in range(NT):
            a(f"s_waitcnt lgkmcnt({min(15,NT-1-t)})")
            a(f"s_add_u32 s{S_TMP}, s{S_OB}, {t*4096}")
            a(f"buffer_store_dwordx4 {vr(V_ACC+4*t,4)}, v{T+4}, s[{S_O}:{S_O+3}], s{S_TMP} offen")
    else:
        assert SB == 4
        a(f"v_and_b32 v{T}, 31, v{V_LANE}")
        a(f"v_lshrrev_b32 v{T+1}, 5, v{V_LANE}")
        a(f"v_and_b32 v{T+2}, 15, v{V_LANE}")
        a(f"v_xor_b32 v{T+2}, v{T+2}, v{T+1}")
        a(f"v_lshlrev_b32 v{T+3}, 8, v{T}")
        a(f"v_lshl_add_u32 v{T+3}, v{T+2}, 4, v{T+3}")
        a(f"v_add_u32 v{T+3}, s{S_TMP}, v{T+3}")
        WA = V_XA
        for c2 in range(8):
            a(f"v_xor_b32 v{WA+c2}, {c2<<5}, v{T+3}")
        n = 0
        for sb in range(SB):
            for nb in range(2):
                for tp in range(2):
                    r = acc(sb, nb) + 8 * tp
                    p = P + (n % 4) * 4; n += 1
                    for u in range(4):
                        a(f"v_cvt_pk_bf16_f32 v{p+u}, v{r+2*u}, v{r+2*u+1}")
                    a(f"ds_write_b128 v{WA+2*sb+tp}, {vr(p,4)} offset:{nb*8192}")
        a(f"v_lshrrev_b32 v{T}, 4, v{V_LANE}")
        a(f"v_and_b32 v{T+1}, 15, v{V_LANE}")
        a(f"v_xor_b32 v{T+2}, v{T}, v{T+1}")
        a(f"v_lshlrev_b32 v{T+3}, 8, v{T}")
        a(f"v_lshl_add_u32 v{T+3}, v{T+2}, 4, v{T+3}")
        a(f"v_add_u32 v{T+3}, s{S_TMP}, v{T+3}")
        RA = V_XA
        for u in range(4):
            a(f"v_xor_b32 v{RA+u}, {u<<6}, v{T+3}")
        a(f"v_lshlrev_b32 v{T+4}, 12, v{T}")
        a(f"v_lshl_add_u32 v{T+4}, v{T+1}, 4, v{T+4}")
        a(f"s_lshl_b32 s{S_OB}, s{S_WN_}, 18")
        a(f"s_add_u32 s{S_OB}, s{S_OB}, s42")
        a(f"s_lshl_b32 s{S_TMP}, s{S_WS_}, 8")
        a(f"s_add_u32 s{S_OB}, s{S_OB}, s{S_TMP}")
        a("s_waitcnt lgkmcnt(0)")
        for t in range(16):
            a(f"ds_read_b128 {vr(V_ACC+4*t,4)}, v{RA+(t&3)} offset:{t*1024}")
        for t in range(16):
            a(f"s_waitcnt lgkmcnt({15-t})")
            a(f"s_add_u32 s{S_TMP}, s{S_OB}, {t*4*4096}")
            a(f"buffer_store_dwordx4 {vr(V_ACC+4*t,4)}, v{T+4}, s[{S_O}:{S_O+3}], s{S_TMP} offen")

def gen_proj(a, name="proj_kernel", conv=None, side=None):
    a.raw(f".globl {name}\n.p2align 8\n.type {name},@function\n{name}:")
    NCONV = 224 if conv else 0
    a(f"s_cmp_ge_u32 s2, {256+NCONV}")
    a("s_cbranch_scc1 L_proj_end")
    a("s_load_dwordx2 s[4:5], s[0:1], 0")
    a("s_load_dwordx2 s[6:7], s[0:1], 56")
    a("s_load_dwordx2 s[20:21], s[0:1], 64")
    a("s_load_dwordx2 s[22:23], s[0:1], 72")
    a("s_load_dwordx2 s[24:25], s[0:1], 80")
    a("s_load_dwordx2 s[26:27], s[0:1], 120")
    a(f"v_lshrrev_b32 v{V_T}, 6, v0")
    a(f"v_and_b32 v{V_LANE}, 63, v0")
    a(f"v_readfirstlane_b32 s{S_WAVE}, v{V_T}")
    if conv:
        a("s_cmp_ge_u32 s2, 256")
        a("s_cbranch_scc1 L_conv")
    a(f"s_lshr_b32 s{S_WS_}, s{S_WAVE}, 2")
    a(f"s_and_b32 s{S_WN_}, s{S_WAVE}, 3")
    a("s_and_b32 s44, s2, 7")
    a("s_lshr_b32 s45, s2, 3")
    a("s_and_b32 s46, s45, 3")
    a("s_lshl_b32 s47, s44, 2")
    a("s_add_u32 s46, s46, s47")
    a("s_lshr_b32 s47, s45, 2")
    a("s_lshl_b32 s40, s47, 8")
    a("s_and_b32 s48, s46, 15")
    a("s_lshl_b32 s41, s48, 9")
    a("s_waitcnt lgkmcnt(0)")
    srd(a, S_X, 6, 0, 2048 * 1024 * 2)
    a("s_cmp_ge_u32 s46, 16")
    a("s_cbranch_scc1 L_proj_v")
    srd(a, S_W, 22, 0, 1024 * 4096 * 2)
    srd(a, S_O, 26, WS_K, 16 << 20)
    a("s_lshl_b32 s42, s48, 20")
    a("s_lshl_b32 s49, s40, 9")
    a("s_add_u32 s42, s42, s49")
    gemm_job(a, 256, 16, 2048, False, side)
    a("s_branch L_proj_q")
    a.label("L_proj_v")
    srd(a, S_W, 24, 0, 1024 * 4096 * 2)
    srd(a, S_O, 26, WS_VT, 16 << 20)
    a("s_lshl_b32 s42, s48, 20")
    a("s_lshl_b32 s49, s40, 1")
    a("s_add_u32 s42, s42, s49")
    gemm_job(a, 256, 16, 2048, True, side)
    a.label("L_proj_q")
    a("s_and_b32 s48, s45, 1")
    a("s_lshl_b32 s47, s44, 1")
    a("s_add_u32 s48, s48, s47")
    a("s_lshr_b32 s47, s45, 1")
    a("s_lshl_b32 s40, s47, 7")
    a("s_lshl_b32 s41, s48, 9")
    srd(a, S_X, 4, 0, 2048 * 448 * 2)
    srd(a, S_W, 20, 0, 448 * 4096 * 2)
    srd(a, S_O, 26, WS_Q, 16 << 20)
    a("s_lshl_b32 s42, s48, 20")
    a("s_lshl_b32 s49, s40, 9")
    a("s_add_u32 s42, s42, s49")
    a("s_barrier")
    gemm_job(a, 128, 7, 896, False)
    if conv:
        a("s_endpgm")
        a.label("L_conv")
        conv(a)
    a.label("L_proj_end")
    a("s_endpgm")
```

```python
from asmlib import *
from k_proj import WS_Y2T
from k_out import WS_G, WS_UT

def side_job(a, LANE, S_WAVE, R):
    a("s_load_dwordx2 s[56:57], s[0:1], 8")
    a("s_load_dwordx2 s[58:59], s[0:1], 16")
    a("s_load_dwordx2 s[60:61], s[0:1], 24")
    a("s_load_dwordx2 s[62:63], s[0:1], 96")
    a("s_lshl_b32 s80, s2, 3")
    a("s_waitcnt lgkmcnt(0)")
    a(f"s_cmp_eq_u32 s{S_WAVE}, 7")
    a("s_cbranch_scc1 L_side_gate_" + str(a.uid))
    tag = a.uid; a.uid += 1
    srd(a, 64, 56, 0, 2048 * 448 * 2)
    srd(a, 68, 58, 0, 2048 * 448 * 2)
    srd(a, 72, 60, 0, 448 * 8)
    srd(a, 76, 26, WS_UT, 448 * 4096)
    K = R; V = R + 11; W = R + 20; A0 = R + 24; TT = R + 40
    a("s_mul_i32 s81, s80, 896")
    a("s_sub_u32 s82, s81, 2688")
    a(f"v_lshlrev_b32 v{TT}, 1, v0")
    a(f"v_add_u32 v{TT+1}, s82, v{TT}")
    for j in range(11):
        a(f"buffer_load_ushort v{K+j}, v{TT+1}, s[64:67], 0 offen")
        if j < 10: a(f"v_add_u32 v{TT+1}, 896, v{TT+1}")
    a(f"v_add_u32 v{TT+1}, s81, v{TT}")
    for j in range(8):
        a(f"buffer_load_ushort v{V+j}, v{TT+1}, s[68:71], 0 offen")
        if j < 7: a(f"v_add_u32 v{TT+1}, 896, v{TT+1}")
    a(f"v_lshlrev_b32 v{TT+2}, 3, v0")
    a(f"buffer_load_dwordx2 {vr(TT+4,2)}, v{TT+2}, s[72:75], 0 offen")
    a("s_waitcnt vmcnt(0)")
    for j in range(11): a(f"v_lshlrev_b32 v{K+j}, 16, v{K+j}")
    for j in range(8): a(f"v_lshlrev_b32 v{V+j}, 16, v{V+j}")
    a(f"v_lshlrev_b32 v{W}, 16, v{TT+4}")
    a(f"v_and_b32 v{W+1}, 0xffff0000, v{TT+4}")
    a(f"v_lshlrev_b32 v{W+2}, 16, v{TT+5}")
    a(f"v_and_b32 v{W+3}, 0xffff0000, v{TT+5}")
    for i in range(0, 8, 2):
        p0, p1, pk, c0, c1 = TT + 6, TT + 7, TT + 8, TT + 9, TT + 10
        a(f"v_mul_f32 v{p0}, v{K+i}, v{W+3}")
        a(f"v_mul_f32 v{p1}, v{K+i+1}, v{W+3}")
        a(f"v_cvt_pk_bf16_f32 v{pk}, v{p0}, v{p1}")
        a(f"v_lshlrev_b32 v{c0}, 16, v{pk}")
        a(f"v_and_b32 v{c1}, 0xffff0000, v{pk}")
        for off, w in ((1, 2), (2, 1), (3, 0)):
            a(f"v_mul_f32 v{p0}, v{K+i+off}, v{W+w}")
            a(f"v_mul_f32 v{p1}, v{K+i+1+off}, v{W+w}")
            a(f"v_cvt_pk_bf16_f32 v{pk}, v{p0}, v{p1}")
            a(f"v_lshlrev_b32 v{p0}, 16, v{pk}")
            a(f"v_and_b32 v{p1}, 0xffff0000, v{pk}")
            a(f"v_add_f32 v{c0}, v{c0}, v{p0}")
            a(f"v_add_f32 v{c1}, v{c1}, v{p1}")
            a(f"v_cvt_pk_bf16_f32 v{pk}, v{c0}, v{c1}")
            a(f"v_lshlrev_b32 v{c0}, 16, v{pk}")
            a(f"v_and_b32 v{c1}, 0xffff0000, v{pk}")
        a(f"v_mul_f32 v{c0}, v{c0}, v{V+i}")
        a(f"v_mul_f32 v{c1}, v{c1}, v{V+i+1}")
        a(f"v_cvt_pk_bf16_f32 v{A0+3-i//2}, v{c1}, v{c0}")
    a(f"v_lshlrev_b32 v{TT+1}, 12, v0")
    a("s_lshl_b32 s81, s80, 1")
    a(f"buffer_store_dwordx4 {vr(A0,4)}, v{TT+1}, s[76:79], s81 offen")
    a(f"s_branch L_side_end_{tag}")
    a.label(f"L_side_gate_{tag}")
    srd(a, 64, 4, 0, 2048 * 448 * 2)
    srd(a, 68, 62, 0, 448 * 2)
    srd(a, 76, 26, WS_G, 2048 * 4)
    X = R; Wg = R + 28; TT = R + 56
    a(f"v_lshrrev_b32 v{TT}, 3, v{LANE}")
    a(f"v_and_b32 v{TT+1}, 7, v{LANE}")
    a(f"v_mul_u32_u24 v{TT+1}, 112, v{TT+1}")
    a(f"v_add_u32 v{TT}, s80, v{TT}")
    a(f"v_mul_u32_u24 v{TT+2}, 896, v{TT}")
    a(f"v_add_u32 v{TT+2}, v{TT+2}, v{TT+1}")
    for j in range(7):
        a(f"buffer_load_dwordx4 {vr(X+4*j,4)}, v{TT+2}, s[64:67], 0 offen offset:{16*j}")
        a(f"buffer_load_dwordx4 {vr(Wg+4*j,4)}, v{TT+1}, s[68:71], 0 offen offset:{16*j}")
    a(f"v_mov_b32 v{TT+3}, 0")
    a("s_waitcnt vmcnt(0)")
    for j in range(28):
        a(f"v_lshlrev_b32 v{TT+4}, 16, v{X+j}")
        a(f"v_lshlrev_b32 v{TT+5}, 16, v{Wg+j}")
        a(f"v_and_b32 v{TT+6}, 0xffff0000, v{X+j}")
        a(f"v_and_b32 v{TT+7}, 0xffff0000, v{Wg+j}")
        a(f"v_mul_f32 v{TT+4}, v{TT+4}, v{TT+5}")
        a(f"v_mul_f32 v{TT+6}, v{TT+6}, v{TT+7}")
        a(f"v_cvt_pk_bf16_f32 v{TT+4}, v{TT+4}, v{TT+6}")
        a(f"v_lshlrev_b32 v{TT+5}, 16, v{TT+4}")
        a(f"v_and_b32 v{TT+6}, 0xffff0000, v{TT+4}")
        a(f"v_add_f32 v{TT+3}, v{TT+3}, v{TT+5}")
        a(f"v_add_f32 v{TT+3}, v{TT+3}, v{TT+6}")
    for off in (0x041F, 0x081F, 0x101F):
        a(f"ds_swizzle_b32 v{TT+4}, v{TT+3} offset:{off}")
        a("s_waitcnt lgkmcnt(0)")
        a(f"v_add_f32 v{TT+3}, v{TT+3}, v{TT+4}")
    a(f"v_cvt_pk_bf16_f32 v{TT+3}, v{TT+3}, v{TT+3}")
    a(f"v_lshlrev_b32 v{TT+3}, 16, v{TT+3}")
    a(f"v_mul_f32 v{TT+3}, 0xbfb8aa3b, v{TT+3}")
    a(f"v_exp_f32 v{TT+3}, v{TT+3}")
    a("s_nop 0")
    a(f"v_add_f32 v{TT+3}, 1.0, v{TT+3}")
    a(f"v_rcp_f32 v{TT+3}, v{TT+3}")
    a("s_nop 0")
    a(f"v_cvt_pk_bf16_f32 v{TT+3}, v{TT+3}, v{TT+3}")
    a(f"v_lshlrev_b32 v{TT+3}, 16, v{TT+3}")
    a(f"v_lshlrev_b32 v{TT}, 2, v{TT}")
    a(f"buffer_store_dword v{TT+3}, v{TT}, s[76:79], 0 offen")
    a.label(f"L_side_end_{tag}")

HS = 4352 + 64
UB = 8 * HS
UPAD = 32 * 80
RB = UB + UPAD + 64 * 80

def conv_job(a, LANE, S_WAVE):
    T = 2; HA = 10; UA = 11; FA = 16; FB = 32; ACC = 64
    a("s_load_dwordx2 s[8:9], s[0:1], 32")
    a("s_load_dwordx2 s[10:11], s[0:1], 40")
    a("s_sub_u32 s12, s2, 256")
    a("s_lshl_b32 s12, s12, 1")
    a("s_waitcnt lgkmcnt(0)")
    srd(a, 16, 8, 0, 448 * 4096)
    srd(a, 20, 4, WS_UT, 448 * 4096)
    srd(a, 24, 4, WS_Y2T, 448 * 4096)
    srd(a, 28, 10, 0, 896)
    a(f"v_and_b32 v{T}, 31, v{LANE}")
    a(f"v_lshrrev_b32 v{T+1}, 5, v{LANE}")
    a(f"v_add_u32 v{T+2}, 1, v{T}")
    a(f"v_and_b32 v{T+2}, 7, v{T+2}")
    a(f"v_mul_u32_u24 v{HA}, {HS-2}, v{T+2}")
    a(f"v_lshl_add_u32 v{HA}, v{T}, 1, v{HA}")
    a(f"v_lshlrev_b32 v{T+3}, 4, v{T+1}")
    a(f"v_sub_u32 v{HA}, v{HA}, v{T+3}")
    a(f"v_add_u32 v{HA}, {114-32}, v{HA}")
    a(f"s_lshl_b32 s13, s{S_WAVE}, 6")
    a(f"v_add_u32 v{HA}, s13, v{HA}")
    a(f"v_mul_u32_u24 v{UA}, 80, v{T}")
    a(f"v_add_u32 v{UA}, v{UA}, v{T+3}")
    a(f"s_mul_i32 s13, s{S_WAVE}, 80")
    a(f"s_sub_u32 s13, {UB+UPAD-60*80}, s13")
    a(f"v_add_u32 v{UA}, s13, v{UA}")
    a(f"v_lshlrev_b32 v{T+4}, 4, v0")
    a(f"v_mov_b32 v{FA}, 0\nv_mov_b32 v{FA+1}, 0\nv_mov_b32 v{FA+2}, 0\nv_mov_b32 v{FA+3}, 0")
    for ch in range(2):
        a(f"s_add_u32 s14, s12, {ch}")
        a("s_lshl_b32 s15, s14, 12")
        a(f"buffer_load_dwordx4 {vr(FB,4)}, v{T+4}, s[16:19], s15 offen")
        a(f"buffer_load_dwordx4 {vr(FB+4,4)}, v{T+4}, s[20:23], s15 offen")
        a("s_lshl_b32 s15, s14, 1")
        a(f"v_mov_b32 v{T+5}, s15")
        a(f"buffer_load_ushort v{T+6}, v{T+5}, s[28:31], 0 offen")
        if ch == 0:
            a(f"v_lshrrev_b32 v{T+5}, 3, v0")
            a(f"v_mul_u32_u24 v{T+5}, {HS}, v{T+5}")
            a(f"v_and_b32 v{T+7}, 7, v0")
            a(f"v_lshl_add_u32 v{T+5}, v{T+7}, 4, v{T+5}")
            a("v_cmp_gt_u32 vcc, 64, v0")
            a("s_and_saveexec_b64 s[34:35], vcc")
            a(f"ds_write_b128 v{T+5}, {vr(FA,4)}")
            a("s_mov_b64 exec, s[34:35]")
            a(f"v_add_u32 v{T+5}, {UB}, v{T+4}")
            a("v_cmp_gt_u32 vcc, 160, v0")
            a("s_and_saveexec_b64 s[34:35], vcc")
            a(f"ds_write_b128 v{T+5}, {vr(FA,4)}")
            a("s_mov_b64 exec, s[34:35]")
            a("s_waitcnt lgkmcnt(0)")
        a("s_barrier")
        a("s_waitcnt vmcnt(0)")
        a(f"v_add_u32 v{T+5}, 128, v{T+4}")
        for c in range(8):
            for i in range(8):
                op = "ds_write_b16" if i % 2 == 0 else "ds_write_b16_d16_hi"
                a(f"{op} v{T+5}, v{FB+i//2} offset:{c*(HS-2) + 2*i}")
        a(f"v_lshrrev_b32 v{T+5}, 2, v0")
        a(f"v_mul_u32_u24 v{T+5}, 80, v{T+5}")
        a(f"v_and_b32 v{T+7}, 3, v0")
        a(f"v_lshl_add_u32 v{T+5}, v{T+7}, 4, v{T+5}")
        a(f"ds_write_b128 v{T+5}, {vr(FB+4,4)} offset:{UB+UPAD}")
        a("s_waitcnt lgkmcnt(0)")
        a("s_barrier")
        steps = [(i, ks) for i in range(16) for ks in range(2)]
        def issue(n):
            i, ks = steps[n]
            st = n & 1
            a(f"ds_read_b128 {vr(FA+4*st,4)}, v{HA} offset:{256*i + (32 if ks == 0 else 0)}")
            a(f"ds_read_b128 {vr(FB+8*st+4,4)}, v{UA} offset:{(60-4*i)*80 + 2560 + ks*32}")
            if i < 8:
                a(f"ds_read_b128 {vr(FB+8*st,4)}, v{UA} offset:{(60-4*i)*80 + ks*32}")
        issue(0)
        for n in range(32):
            i, ks = steps[n]
            st = n & 1
            if n + 1 < 32:
                issue(n + 1)
                a(f"s_waitcnt lgkmcnt({3 if steps[n+1][0] < 8 else 2})")
            else:
                a("s_waitcnt lgkmcnt(0)")
            c1 = "0" if n == 0 else vr(ACC + 16, 16)
            a(f"v_mfma_f32_32x32x16_bf16 {vr(ACC+16,16)}, {vr(FA+4*st,4)}, {vr(FB+8*st+4,4)}, {c1}")
            if i < 8:
                c0 = "0" if n == 0 else vr(ACC, 16)
                a(f"v_mfma_f32_32x32x16_bf16 {vr(ACC,16)}, {vr(FA+4*st,4)}, {vr(FB+8*st,4)}, {c0}")
        a("s_nop 7\ns_nop 7")
        a(f"v_lshlrev_b32 v{T+5}, 4, v{LANE}")
        a(f"v_add_u32 v{T+5}, {RB}, v{T+5}")
        a(f"s_lshl_b32 s13, s{S_WAVE}, 13")
        a(f"v_add_u32 v{T+7}, s13, v{T+5}")
        for c in range(8):
            a(f"ds_write_b128 v{T+7}, {vr(ACC+4*c,4)} offset:{c*1024}")
        a("s_waitcnt lgkmcnt(0)")
        a("s_barrier")
        a(f"s_lshl_b32 s13, s{S_WAVE}, 11")
        a(f"v_add_u32 v{T+7}, s13, v{T+5}")
        for w in range(4):
            for c in range(2):
                a(f"ds_read_b128 {vr(ACC+8*w+4*c,4)}, v{T+7} offset:{w*8192 + c*1024}")
        a(f"s_lshr_b32 s13, s{S_WAVE}, 1")
        a(f"s_mul_i32 s13, s13, 2560")
        a(f"s_and_b32 s15, s{S_WAVE}, 1")
        a("s_lshl_b32 s15, s15, 5")
        a("s_add_u32 s13, s13, s15")
        a(f"v_mul_u32_u24 v{T+7}, 80, v{T}")
        a(f"v_lshlrev_b32 v{T+3}, 3, v{T+1}")
        a(f"v_sub_u32 v{T+7}, v{T+7}, v{T+3}")
        a(f"v_add_u32 v{T+7}, s13, v{T+7}")
        a(f"ds_read_b64 {vr(FB,2)}, v{T+7} offset:{UB+UPAD+8}")
        a(f"ds_read_b64 {vr(FB+2,2)}, v{T+7} offset:{UB+UPAD+8+16}")
        a(f"v_lshlrev_b32 v{T+6}, 16, v{T+6}")
        a("s_waitcnt lgkmcnt(0)")
        for i in range(8):
            a(f"v_add_f32 v{ACC+i}, v{ACC+i}, v{ACC+8+i}")
            a(f"v_add_f32 v{ACC+16+i}, v{ACC+16+i}, v{ACC+24+i}")
            a(f"v_add_f32 v{ACC+i}, v{ACC+i}, v{ACC+16+i}")
        X = ACC + 32
        for c in range(2):
            for pr in range(2):
                ud = FB + 2 * c + (1 - pr)
                a(f"v_and_b32 v{X}, 0xffff0000, v{ud}")
                a(f"v_lshlrev_b32 v{X+1}, 16, v{ud}")
                a(f"v_mul_f32 v{X}, v{X}, v{T+6}")
                a(f"v_mul_f32 v{X+1}, v{X+1}, v{T+6}")
                a(f"v_cvt_pk_bf16_f32 v{X}, v{X}, v{X+1}")
                a(f"v_cvt_pk_bf16_f32 v{X+2}, v{ACC+4*c+2*pr}, v{ACC+4*c+2*pr+1}")
                a(f"v_lshlrev_b32 v{X+1}, 16, v{X}")
                a(f"v_and_b32 v{X}, 0xffff0000, v{X}")
                a(f"v_lshlrev_b32 v{X+3}, 16, v{X+2}")
                a(f"v_and_b32 v{X+2}, 0xffff0000, v{X+2}")
                a(f"v_add_f32 v{X+1}, v{X+1}, v{X+3}")
                a(f"v_add_f32 v{X}, v{X}, v{X+2}")
                a(f"v_cvt_pk_bf16_f32 v{X+4+2*c+pr}, v{X+1}, v{X}")
        a(f"v_lshlrev_b32 v{T+7}, 6, v{T}")
        a(f"v_lshl_add_u32 v{T+7}, v{T+1}, 3, v{T+7}")
        a(f"s_lshr_b32 s13, s{S_WAVE}, 1")
        a("s_lshl_b32 s13, s13, 11")
        a("s_add_u32 s13, s13, s15")
        a("s_lshl_b32 s15, s14, 12")
        a("s_add_u32 s13, s13, s15")
        a(f"buffer_store_dwordx2 {vr(X+4,2)}, v{T+7}, s[24:27], s13 offen")
        a(f"buffer_store_dwordx2 {vr(X+6,2)}, v{T+7}, s[24:27], s13 offen offset:16")
        if ch == 0:
            a(f"v_lshrrev_b32 v{T+1}, 5, v{LANE}")
            a(f"v_lshlrev_b32 v{T+3}, 4, v{T+1}")
```

```python
import sys
from asmlib import *
from k_proj import *
from k_attn import *
from k_out import *
from k_side import *

HDR = open("gated_mix__ssm_conv_h3__compressed_kv_cla__prompt.s.ref").read().split("; Override launch")[0]

def main(out):
    a = Asm()
    gen_proj(a, side=side_job)
    gen_attn(a, conv=conv_job)
    gen_out(a)
    s = HDR
    s += "; @launch kernel=proj_kernel grid=(256,1,1) block=(512,1,1) lds=131072\n"
    s += "; @launch kernel=attn_kernel grid=(480,1,1) block=(256,1,1) lds=131072\n"
    s += "; @launch kernel=out_kernel grid=(224,1,1) block=(256,1,1) lds=131072\n"
    s += '.amdgcn_target "amdgcn-amd-amdhsa--gfx950"\n.text\n'
    s += a.text()
    s += kernel_desc("proj_kernel", 256)
    s += kernel_desc("attn_kernel", 256 + 96, accum=256)
    s += kernel_desc("out_kernel", 128)
    open(out, "w").write(s)

main(sys.argv[1] if len(sys.argv) > 1 else "k.s")
```

```python
import os
from asmlib import *
from k_conv2 import conv_issue, conv_run
from k_proj2 import WS_Q, WS_K, WS_VT, WS_CTX, WS_PART

PART_SLOT = 4 * 17 * 1024
LANE = 1
VK_OFF = 2
VV_OFF = 10
VKA = 12
VVA = 20
MC = 24; LSUM = 25
QREL = 29
T = 30
P = 48
SA = 64; SB_ = 96
O = 128
AQX = 0; AQY = 64; AF = 128; NF = 8
S_K = 8; S_V = 12; S_Q = 16; S_PT = 20; S_C = 24; S_DB = 28
S_WAVE = 32; S_N = 33; S_CNT = 34; S_KOFF = 35; S_VOFF = 36; S_TMP = 37; S_M0K = 38
S_QT = 39; S_PAR = 40; S_HEAD = 41; S_SLOT = 42; S_CC = 43; S_T8 = 44; S_TMP2 = 45; S_NEG = 46
S_KB = 47; S_VB = 48; S_KL = 49; S_VL = 50; S_KT = 51; S_VT = 52; S_QY = 53; S_KROT = 54; S_KDEL = 55; S_M0V = 56; S_SIG = 57
S_PS = 58; S_NY = 59; S_TMPK = 68; S_SIGP = 69
CEXP = 0.0625 * 1.4426950408889634
DEPTH = 4
KBUF = 0; VBUF = 98304
STAMPA = int(os.environ.get("STAMPA", "0"))
_stn = [0]
def stamp(a):
    if not STAMPA: return
    i = _stn[0]; _stn[0] += 1
    a("s_memtime s[90:91]\ns_memrealtime s[92:93]\ns_waitcnt lgkmcnt(0)\nv_mov_b32 v46, s90\nv_mov_b32 v47, s92")
    a(f"s_lshl_b32 s94, s2, 8\ns_add_u32 s94, s94, {i*8}\nv_mov_b32 v45, s94")
    a(f"s_cmp_lg_u32 s{S_WAVE}, 0\ns_cbranch_scc1 L_sta_{i}")
    a("buffer_store_dwordx2 v[46:47], v45, s[96:99], 0 offen")
    a.label(f"L_sta_{i}")

def f2u(x):
    import struct
    return struct.unpack("<I", struct.pack("<f", x))[0]

def dmak_list():
    u = []
    for j in range(8):
        pre = ""
        if j % 4 == 0:
            pre = f"s_add_u32 m0, s{S_M0K}, {j*1024}\ns_add_u32 s{S_TMPK}, s{S_KOFF}, {j*1024}\n"
        u.append(pre + f"buffer_load_dwordx4 v{VK_OFF}, s[{S_K}:{S_K+3}], s{S_TMPK} offen offset:{(j%4)*1024} lds")
    u.append(f"s_add_u32 s{S_KOFF}, s{S_KOFF}, 65536\ns_sub_u32 s{S_KL}, s{S_KL}, 1\ns_cmp_eq_u32 s{S_KL}, 0\n"
             f"s_cselect_b32 s{S_KOFF}, s{S_KB}, s{S_KOFF}\ns_sub_u32 s{S_KT}, s{S_KT}, 1\ns_cmp_eq_u32 s{S_KT}, 0\n"
             f"s_cselect_b32 s{S_KOFF}, 0x80000000, s{S_KOFF}\ns_cselect_b32 s{S_KB}, 0x80000000, s{S_KB}")
    u.append(f"s_add_u32 s{S_M0K}, s{S_M0K}, 32768\ns_cmp_ge_u32 s{S_M0K}, 98304\ns_cselect_b32 s{S_TMPK}, 98304, 0\n"
             f"s_sub_u32 s{S_M0K}, s{S_M0K}, s{S_TMPK}")
    return u
def dmav_list(buf):
    u = []
    for j in range(8):
        pre = ""
        if j % 4 == 0:
            pre = f"s_add_u32 m0, s{S_M0V}, {VBUF + buf*32768 + j*1024}\ns_add_u32 s{S_TMPK}, s{S_VOFF}, {j*1024}\n"
        u.append(pre + f"buffer_load_dwordx4 v{VK_OFF}, s[{S_V}:{S_V+3}], s{S_TMPK} offen offset:{(j%4)*1024} lds")
    u.append(f"s_add_u32 s{S_VOFF}, s{S_VOFF}, 65536\ns_sub_u32 s{S_VL}, s{S_VL}, 1\ns_cmp_eq_u32 s{S_VL}, 0\n"
             f"s_cselect_b32 s{S_VOFF}, s{S_VB}, s{S_VOFF}\ns_sub_u32 s{S_VT}, s{S_VT}, 1\ns_cmp_eq_u32 s{S_VT}, 0\n"
             f"s_cselect_b32 s{S_VOFF}, 0x80000000, s{S_VOFF}\ns_cselect_b32 s{S_VB}, 0x80000000, s{S_VB}")
    return u
def krot_list():
    u = [f"s_add_u32 s{S_KROT}, s{S_KROT}, 1\ns_mov_b32 s{S_KDEL}, 32768\ns_cmp_eq_u32 s{S_KROT}, 3\ns_cselect_b32 s{S_KDEL}, 0xffff0000, s{S_KDEL}\n"
         f"s_cselect_b32 s{S_KROT}, 0, s{S_KROT}"]
    u.append(f"v_add_u32 v{VKA}, s{S_KDEL}, v{VKA}")
    return u

def rd_k(f):
    return f"v{VKA} offset:{f*1024}"
def rd_v(vbuf, f):
    ks, db = f >> 3, f & 7
    return f"v{VVA} offset:{vbuf*32768 + (db*4+ks)*1024}"

def softmax_valu(S, masked, uid):
    v = []
    if masked:
        v.append(f"v_mov_b32 v{T+8}, 0xff800000")
        for i in range(0, 32, 4):
            blk = []
            for u in range(4):
                e = i + u; kb, r = e >> 4, e & 15
                ko = 32 * kb + 8 * (r >> 2) + (r & 3)
                blk.append(f"v_cmp_lt_i32 s[{60+2*u}:{61+2*u}], v{QREL}, {ko}")
            for u in range(4):
                blk.append(f"v_cndmask_b32 v{S+i+u}, v{S+i+u}, v{T+8}, s[{60+2*u}:{61+2*u}]")
            v.append("\n".join(blk))
    v.append(f"v_max3_f32 v{T}, v{S}, v{S+1}, v{S+2}")
    v.append(f"v_max3_f32 v{T+1}, v{S+3}, v{S+4}, v{S+5}")
    for i in range(6, 30, 4):
        v.append(f"v_max3_f32 v{T}, v{T}, v{S+i}, v{S+i+1}")
        v.append(f"v_max3_f32 v{T+1}, v{T+1}, v{S+i+2}, v{S+i+3}")
    v.append(f"v_max3_f32 v{T}, v{T}, v{S+30}, v{S+31}")
    v.append(f"v_max_f32 v{T}, v{T}, v{T+1}")
    v.append(f"v_mov_b32 v{T+1}, v{T}\ns_nop 1\nv_permlane32_swap_b32 v{T}, v{T+1}\nv_max_f32 v{T}, v{T}, v{T+1}\n"
             f"v_fma_f32 v{T+1}, v{T}, s{S_CC}, -v{MC}\nv_cmp_lt_f32 vcc, s{S_T8}, v{T+1}\ns_cbranch_vccnz L_resc_{uid}\nL_resc_ret_{uid}:")
    nmax = len(v)
    for i in range(32):
        v.append(f"v_fma_f32 v{S+i}, v{S+i}, s{S_CC}, -v{MC}")
        if i >= 1: v.append(f"v_exp_f32 v{S+i-1}, v{S+i-1}")
        if i >= 3: v.append(f"v_add_f32 v{LSUM+((i-3)&3)}, v{LSUM+((i-3)&3)}, v{S+i-3}")
        if i >= 4 and (i & 1) == 0: v.append(f"v_cvt_pk_bf16_f32 v{P+(i-4)//2}, v{S+i-4}, v{S+i-3}")
    v.append(f"v_exp_f32 v{S+31}, v{S+31}")
    v.append(f"v_add_f32 v{LSUM+1}, v{LSUM+1}, v{S+29}")
    v.append(f"v_add_f32 v{LSUM+2}, v{LSUM+2}, v{S+30}")
    v.append(f"v_add_f32 v{LSUM+3}, v{LSUM+3}, v{S+31}")
    v.append(f"v_cvt_pk_bf16_f32 v{P+14}, v{S+28}, v{S+29}")
    v.append(f"v_cvt_pk_bf16_f32 v{P+15}, v{S+30}, v{S+31}")
    return v, nmax

def rescale_block(a, uid):
    a.label(f"L_resc_{uid}")
    a(f"v_mul_f32 v{T+1}, s{S_CC}, v{T}")
    a(f"v_max_f32 v{T+1}, v{T+1}, v{MC}")
    a(f"v_sub_f32 v{T+2}, v{MC}, v{T+1}")
    a(f"v_exp_f32 v{T+2}, v{T+2}")
    a(f"v_mov_b32 v{MC}, v{T+1}")
    for i in range(4): a(f"v_mul_f32 v{LSUM+i}, v{LSUM+i}, v{T+2}")
    for i in range(128): a(f"v_mul_f32 v{O+i}, v{O+i}, v{T+2}")
    a(f"s_branch L_resc_ret_{uid}")

def qk_items(Sn, AQ):
    items = []
    for f in range(32):
        kb, ks = f >> 4, f & 15
        def mf(fr, kb=kb, ks=ks):
            c = "0" if ks == 0 else vr(Sn + 16 * kb, 16)
            return f"v_mfma_f32_32x32x16_bf16 {vr(Sn+16*kb,16)}, {ar(fr,4)}, {ar(AQ+4*ks,4)}, {c}"
        items.append((rd_k(f), mf))
    return items
def pv_items(vbuf):
    items = []
    for f in range(32):
        ks, db = f >> 3, f & 7
        def mf(fr, ks=ks, db=db):
            return f"v_mfma_f32_32x32x16_bf16 {vr(O+16*db,16)}, {ar(fr,4)}, {vr(P+4*ks,4)}, {vr(O+16*db,16)}"
        items.append((rd_v(vbuf, f), mf))
    return items

def emit_stream(a, items, extras, preread_done, next_pre):
    n = len(items)
    assert n % NF == 0
    if not preread_done:
        for i in range(DEPTH): a(f"ds_read_b128 {ar(AF+4*(i%NF),4)}, {items[i][0]}")
    for i in range(n):
        tail = next_pre is not None
        outstanding = DEPTH - 1 if (tail or i + DEPTH <= n) else n - 1 - i
        if i % 2 == 0:
            o2 = DEPTH - 2 if (tail or i + DEPTH <= n) else max(0, n - 2 - i)
            a(f"s_waitcnt lgkmcnt({o2})")
        a(items[i][1](AF + 4 * (i % NF)))
        j = i + DEPTH
        if j < n:
            a(f"ds_read_b128 {ar(AF+4*(j%NF),4)}, {items[j][0]}")
        elif tail:
            for x in extras.get(("pre", j - n), []): a(x)
            a(f"ds_read_b128 {ar(AF+4*(j%NF),4)}, {next_pre[j-n]}")
        for x in extras.get(i, []): a(x)

def spread(extras, units, lo, hi):
    n = len(units)
    for k, u in enumerate(units):
        s = lo + (k * (hi - lo)) // n
        extras.setdefault(s, []).append(u)

def step(a, par, kind, resc):
    Sc = SA if par == 0 else SB_
    Sn = SB_ if par == 0 else SA
    uid = a.newlabel("a"); resc.append(uid)
    last = kind[1] == 'l'
    sm, nmax = softmax_valu(Sc, last, uid)
    extras = {}
    dk = dmak_list(); dv = dmav_list(par ^ 1); kr = krot_list()
    AB = int(os.environ.get("ABLA", "0"))
    if AB & 1: dk = []; dv = []
    if AB & 2: sm = sm[:nmax]
    if AB & 4: sm = []; nmax = 0
    if kind != 'yl':
        AQ = AQY if kind in ('xl', 'yn') else AQX
        items = qk_items(Sn, AQ) + pv_items(par)
        spread(extras, sm[:nmax], 0, 6 if not last else 12)
        spread(extras, sm[nmax:], 6 if not last else 12, 54)
        spread(extras, dv, 2, 30)
        spread(extras, dk, 36, 62)
        spread(extras, kr, 50, 56)
        emit_stream(a, items, extras, True, [rd_k(f) for f in range(DEPTH)])
    else:
        a(f"v_mov_b32 v{T+13}, s{S_PS}")
        a(f"buffer_load_ubyte v{T+12}, v{T+13}, s[{S_DB}:{S_DB+3}], 0 offen sc1")
        a("s_waitcnt lgkmcnt(0)")
        items = pv_items(par)
        for i in range(DEPTH): a(f"ds_read_b128 {ar(AF+4*(i%NF),4)}, {items[i][0]}")
        for x in sm: a(x)
        uid2 = a.newlabel("fs")
        a(f"s_cmp_eq_u32 s{S_SIGP}, 0")
        a(f"s_cbranch_scc1 L_ns_{uid2}")
        a("s_waitcnt vmcnt(0)")
        a("s_barrier")
        send_flag(a)
        a.label(f"L_ns_{uid2}")
        partner_prefetch(a)
        emit_stream(a, items, extras, True, None)

def partner_prefetch(a):
    uid = a.newlabel("pp")
    a.label(f"L_poll_{uid}")
    a("s_waitcnt vmcnt(0)")
    a(f"v_readfirstlane_b32 s{S_TMP}, v{T+12}")
    a("s_nop 3")
    a(f"s_cmp_lg_u32 s{S_TMP}, 0")
    a(f"s_cbranch_scc1 L_pok_{uid}")
    a("s_sleep 1")
    a(f"buffer_load_ubyte v{T+12}, v{T+13}, s[{S_DB}:{S_DB+3}], 0 offen sc1")
    a(f"s_branch L_poll_{uid}")
    a.label(f"L_pok_{uid}")
    a(f"s_mul_i32 s{S_TMP}, s{S_PS}, {PART_SLOT}")
    a(f"s_mul_i32 s{S_TMP2}, s{S_WAVE}, {17*1024}")
    a(f"s_add_u32 s{S_TMP}, s{S_TMP}, s{S_TMP2}")
    a(f"v_lshlrev_b32 v{T+4}, 4, v{LANE}")
    for c in range(16):
        if c and c % 4 == 0: a(f"s_add_u32 s{S_TMP}, s{S_TMP}, 4096")
        a(f"buffer_load_dwordx4 {vr(SA+4*c,4)}, v{T+4}, s[{S_PT}:{S_PT+3}], s{S_TMP} offen offset:{(c%4)*1024} sc1")
    a(f"s_add_u32 s{S_TMP}, s{S_TMP}, 4096")
    a(f"buffer_load_dwordx2 {vr(T+6,2)}, v{T+4}, s[{S_PT}:{S_PT+3}], s{S_TMP} offen sc1")

def send_flag(a):
    uid = a.newlabel("sg")
    a(f"s_mov_b32 s{S_SIGP}, 0")
    a(f"s_cmp_lg_u32 s{S_WAVE}, 0")
    a(f"s_cbranch_scc1 L_nosig_{uid}")
    a(f"v_mov_b32 v{T}, 1\nv_mov_b32 v{T+1}, s{S_SLOT}")
    a("s_mov_b64 exec, 1")
    a(f"buffer_store_byte v{T}, v{T+1}, s[{S_DB}:{S_DB+3}], 0 offen sc1")
    a("s_mov_b64 exec, -1")
    a.label(f"L_nosig_{uid}")

def top(a, sig):
    a("s_waitcnt vmcnt(8)")
    a("s_barrier")
    if sig:
        uid = a.newlabel("tp")
        a(f"s_cmp_eq_u32 s{S_SIGP}, 0")
        a(f"s_cbranch_scc1 L_ns_{uid}")
        send_flag(a)
        a.label(f"L_ns_{uid}")

def gen_attn(a, name="attn_kernel", conv=None):
    a.raw(f".globl {name}\n.p2align 8\n.type {name},@function\n{name}:")
    a("s_cmp_ge_u32 s2, 256")
    a("s_cbranch_scc1 L_attn_end")
    a("s_load_dwordx2 s[4:5], s[0:1], 120")
    a("s_load_dwordx2 s[6:7], s[0:1], 112")
    a("s_load_dwordx2 s[82:83], s[0:1], 32")
    a("s_load_dwordx2 s[84:85], s[0:1], 40")
    a(f"v_lshrrev_b32 v{T}, 6, v0")
    a(f"v_and_b32 v{LANE}, 63, v0")
    a(f"v_readfirstlane_b32 s{S_WAVE}, v{T}")
    a("s_and_b32 s70, s2, 7")
    a("s_lshr_b32 s71, s2, 3")
    a(f"s_and_b32 s{S_HEAD}, s71, 1")
    a("s_lshl_b32 s70, s70, 1")
    a(f"s_add_u32 s{S_HEAD}, s{S_HEAD}, s70")
    a("s_lshr_b32 s72, s71, 1")
    a("s_and_b32 s72, s72, 7")
    a(f"s_lshr_b32 s{S_PAR}, s71, 4")
    a(f"s_mov_b32 s{S_CC}, {f2u(CEXP)}")
    a(f"s_mov_b32 s{S_T8}, 0x41000000")
    a(f"s_mov_b32 s{S_NEG}, {f2u(-1e30)}")
    a(f"s_lshl_b32 s{S_M0K}, s{S_WAVE}, 13")
    a(f"s_lshl_b32 s{S_M0V}, s{S_WAVE}, 13")
    a(f"s_lshl_b32 s{S_SLOT}, s{S_HEAD}, 3")
    a(f"s_add_u32 s{S_SLOT}, s{S_SLOT}, s72")
    a(f"s_lshl_b32 s{S_SLOT}, s{S_SLOT}, 1")
    a(f"s_add_u32 s{S_SLOT}, s{S_SLOT}, s{S_PAR}")
    a(f"s_xor_b32 s{S_PS}, s{S_SLOT}, 1")
    a(f"s_lshl_b32 s73, s{S_HEAD}, 20")
    a("s_sub_u32 s74, 15, s72")
    a(f"s_cmp_eq_u32 s{S_PAR}, 0")
    a(f"s_cselect_b32 s{S_QT}, s74, s72")
    a(f"s_cselect_b32 s{S_QY}, s72, s74")
    a(f"s_add_u32 s{S_N}, s{S_QT}, 1")
    a(f"s_add_u32 s{S_NY}, s{S_QY}, 1")
    a(f"s_mov_b32 s{S_KL}, s{S_N}\ns_mov_b32 s{S_VL}, s{S_N}\ns_mov_b32 s{S_KT}, 17\ns_mov_b32 s{S_VT}, 17")
    a(f"s_mov_b32 s{S_KROT}, 0\ns_mov_b32 s{S_SIGP}, 0\ns_mov_b32 s{S_CNT}, 0")
    a(f"s_lshl_b32 s{S_VB}, s{S_WAVE}, 13")
    a(f"s_lshl_b32 s{S_TMP}, s{S_PAR}, 15")
    a(f"s_add_u32 s{S_VB}, s{S_VB}, s{S_TMP}")
    a(f"s_mov_b32 s{S_KB}, s{S_VB}\ns_mov_b32 s{S_KOFF}, s{S_KB}\ns_mov_b32 s{S_VOFF}, s{S_VB}")
    a(f"v_lshlrev_b32 v{VK_OFF}, 4, v{LANE}")
    a(f"v_mov_b32 v{VKA}, v{VK_OFF}")
    a(f"v_add_u32 v{VVA}, {VBUF}, v{VK_OFF}")
    a("s_waitcnt lgkmcnt(0)")
    def srd_head(d, off):
        a(f"s_add_u32 s{d}, s4, {off}\ns_addc_u32 s{d+1}, s5, 0\ns_add_u32 s{d}, s{d}, s73\ns_addc_u32 s{d+1}, s{d+1}, 0")
        a(f"s_mov_b32 s{d+2}, {1<<20}\ns_mov_b32 s{d+3}, 0x00020000")
    srd_head(S_K, WS_K); srd_head(S_V, WS_VT); srd_head(S_Q, WS_Q)
    a("s_cmp_ge_u32 s2, 224")
    a("s_cbranch_scc1 L_noconv1")
    conv_issue(a, LANE)
    a("s_waitcnt vmcnt(0)")
    a.label("L_noconv1")
    if STAMPA: srd(a, 96, 4, 200 << 20, 1 << 20)
    stamp(a)
    for u in dmak_list(): a(u)
    a(f"v_and_b32 v{T}, 31, v{LANE}")
    a(f"v_lshrrev_b32 v{T+1}, 5, v{LANE}")
    a(f"s_lshl_b32 s{S_TMP2}, s{S_WAVE}, 5")
    a(f"v_add_u32 v{T+2}, s{S_TMP2}, v{T}")
    a(f"s_lshl_b32 s76, s{S_WAVE}, 14")
    a(f"s_lshl_b32 s75, s{S_QT}, 16")
    a("s_add_u32 s75, s75, s76")
    for ks in range(16):
        if ks and ks % 4 == 0: a("s_add_u32 s75, s75, 4096")
        a(f"buffer_load_dwordx4 {ar(AQX+4*ks,4)}, v{VK_OFF}, s[{S_Q}:{S_Q+3}], s75 offen offset:{(ks%4)*1024}")
    for u in dmav_list(0): a(u)
    for u in dmak_list(): a(u)
    a(f"s_lshl_b32 s{S_TMP}, s{S_PAR}, 6")
    a(f"v_subrev_u32 v{QREL}, s{S_TMP}, v{T+2}")
    a(f"v_lshlrev_b32 v{T+4}, 2, v{T+1}")
    a(f"v_sub_u32 v{QREL}, v{QREL}, v{T+4}")
    a("s_cmp_ge_u32 s2, 224")
    a("s_cbranch_scc1 L_noconv2")
    conv_run(a, LANE, S_WAVE, 40, stamp)
    a("s_nop 1")
    a.label("L_noconv2")
    srd(a, S_PT, 4, WS_PART, 256 * PART_SLOT)
    srd(a, S_C, 4, WS_CTX, 16 << 20)
    srd(a, S_DB, 6, 0, 256)
    a(f"v_mov_b32 v{MC}, s{S_NEG}")
    for i in range(4): a(f"v_mov_b32 v{LSUM+i}, 0")
    for i in range(128): a(f"v_mov_b32 v{O+i}, 0")
    a("s_waitcnt vmcnt(16)")
    a("s_barrier")
    stamp(a)
    ex = {}
    spread(ex, dmak_list(), 0, 10)
    spread(ex, [f"s_lshl_b32 s75, s{S_QY}, 16\ns_add_u32 s75, s75, s76"] + [("s_add_u32 s75, s75, 4096\n" if (ks and ks % 4 == 0) else "") + f"buffer_load_dwordx4 {ar(AQY+4*ks,4)}, v{VK_OFF}, s[{S_Q}:{S_Q+3}], s75 offen offset:{(ks%4)*1024}" for ks in range(16)], 10, 28)
    spread(ex, krot_list(), 30, 32)
    emit_stream(a, qk_items(SA, AQX), ex, False, None)
    stamp(a)
    resc = []
    a("s_waitcnt vmcnt(0)")
    a("s_barrier")
    for i in range(DEPTH): a(f"ds_read_b128 {ar(AF+4*i,4)}, {rd_k(i)}")
    a("s_branch L_x0_entry")
    for par in range(2):
        a.label(f"L_x{par}")
        top(a, False)
        if par == 0: a.label("L_x0_entry")
        a(f"s_add_u32 s{S_CNT}, s{S_CNT}, 1")
        a(f"s_cmp_ge_u32 s{S_CNT}, s{S_N}")
        a(f"s_cbranch_scc1 L_xl{par}")
        step(a, par, 'xn', resc)
        if par == 1: a("s_branch L_x0")
    for par in range(2):
        a.label(f"L_xl{par}")
        step(a, par, 'xl', resc)
        stamp(a)
        a(f"s_mul_i32 s{S_TMP}, s{S_SLOT}, {PART_SLOT}")
        a(f"s_mul_i32 s{S_TMP2}, s{S_WAVE}, {17*1024}")
        a(f"s_add_u32 s{S_TMP}, s{S_TMP}, s{S_TMP2}")
        a(f"v_lshlrev_b32 v{T+4}, 4, v{LANE}")
        a(f"v_add_f32 v{T+1}, v{LSUM}, v{LSUM+1}")
        a(f"v_add_f32 v{T+2}, v{LSUM+2}, v{LSUM+3}")
        a(f"v_mov_b32 v{T}, v{MC}")
        a(f"v_add_f32 v{T+1}, v{T+1}, v{T+2}")
        a(f"s_add_u32 s{S_TMP2}, s{S_TMP}, {16*1024}")
        a(f"buffer_store_dwordx2 {vr(T,2)}, v{T+4}, s[{S_PT}:{S_PT+3}], s{S_TMP2} offen sc1")
        a(f"v_mov_b32 v{MC}, s{S_NEG}")
        for i in range(4): a(f"v_mov_b32 v{LSUM+i}, 0")
        a("s_nop 4")
        Sc = SA if par == 0 else SB_
        for c in range(16):
            pk = Sc + (c % 8) * 4
            for u in range(4):
                a(f"v_cvt_pk_bf16_f32 v{pk+u}, v{O+8*c+2*u}, v{O+8*c+2*u+1}")
            if c and c % 4 == 0: a(f"s_add_u32 s{S_TMP}, s{S_TMP}, 4096")
            a(f"buffer_store_dwordx4 {vr(pk,4)}, v{T+4}, s[{S_PT}:{S_PT+3}], s{S_TMP} offen offset:{(c%4)*1024} sc1")
        a(f"s_mov_b32 s{S_CNT}, 0")
        a(f"s_mov_b32 s{S_N}, s{S_NY}")
        a(f"s_mov_b32 s{S_SIGP}, 1")
        a("s_waitcnt vmcnt(25)")
        a("s_barrier")
        a(f"s_branch L_y{par^1}_entry")
    for par in range(2):
        a.label(f"L_y{par}")
        top(a, True)
        a.label(f"L_y{par}_entry")
        a(f"s_add_u32 s{S_CNT}, s{S_CNT}, 1")
        a(f"s_cmp_ge_u32 s{S_CNT}, s{S_N}")
        a(f"s_cbranch_scc1 L_yl{par}")
        step(a, par, 'yn', resc)
        if par == 1: a("s_branch L_y0")
    for par in range(2):
        a.label(f"L_yl{par}")
        step(a, par, 'yl', resc)
        if par == 0: a("s_branch L_fin")
    a.label("L_fin")
    stamp(a)
    a(f"v_add_f32 v{T+1}, v{LSUM}, v{LSUM+1}")
    a(f"v_add_f32 v{T+2}, v{LSUM+2}, v{LSUM+3}")
    a(f"v_add_f32 v{T+1}, v{T+1}, v{T+2}")
    a("s_waitcnt vmcnt(0)")
    a(f"v_max_f32 v{T+2}, v{MC}, v{T+6}")
    a(f"v_sub_f32 v{T+3}, v{MC}, v{T+2}")
    a(f"v_sub_f32 v{T+5}, v{T+6}, v{T+2}")
    a(f"v_exp_f32 v{T+3}, v{T+3}")
    a(f"v_exp_f32 v{T+5}, v{T+5}")
    a("s_nop 0")
    a(f"v_mul_f32 v{T+1}, v{T+1}, v{T+3}")
    a(f"v_fma_f32 v{T+1}, v{T+7}, v{T+5}, v{T+1}")
    a(f"v_mov_b32 v{T+2}, v{T+1}")
    a("s_nop 1")
    a(f"v_permlane32_swap_b32 v{T+1}, v{T+2}")
    a(f"v_add_f32 v{T+1}, v{T+1}, v{T+2}")
    a(f"v_rcp_f32 v{T+1}, v{T+1}")
    a("s_nop 0")
    a(f"v_mul_f32 v{T+8}, v{T+3}, v{T+1}")
    a(f"v_mul_f32 v{T+10}, v{T+5}, v{T+1}")
    a(f"v_mov_b32 v{T+9}, v{T+8}\nv_mov_b32 v{T+11}, v{T+10}")
    a(f"v_lshlrev_b32 v{T+4}, 4, v{LANE}")
    a(f"s_lshl_b32 s{S_TMP}, s{S_QY}, 2")
    a(f"s_add_u32 s{S_TMP}, s{S_TMP}, s{S_WAVE}")
    a(f"s_lshl_b32 s{S_TMP}, s{S_TMP}, 18")
    a(f"s_lshl_b32 s{S_TMP2}, s{S_HEAD}, 14")
    a(f"s_add_u32 s{S_TMP}, s{S_TMP}, s{S_TMP2}")
    for c in range(16):
        r = O + 8 * c; pr = SA + 4 * c
        u = P + (c % 2) * 8
        for i in range(4):
            a(f"v_lshlrev_b32 v{u+2*i}, 16, v{pr+i}")
            a(f"v_and_b32 v{u+2*i+1}, 0xffff0000, v{pr+i}")
        for i in range(4):
            a(f"v_pk_mul_f32 {vr(r+2*i,2)}, {vr(r+2*i,2)}, {vr(T+8,2)}")
        for i in range(4):
            a(f"v_pk_fma_f32 {vr(r+2*i,2)}, {vr(u+2*i,2)}, {vr(T+10,2)}, {vr(r+2*i,2)}")
        for i in range(4):
            a(f"v_cvt_pk_bf16_f32 v{pr+i}, v{r+2*i}, v{r+2*i+1}")
        if c and c % 4 == 0: a(f"s_add_u32 s{S_TMP}, s{S_TMP}, 4096")
        a(f"buffer_store_dwordx4 {vr(pr,4)}, v{T+4}, s[{S_C}:{S_C+3}], s{S_TMP} offen offset:{(c%4)*1024}")
    if STAMPA:
        a("s_waitcnt vmcnt(0)")
        stamp(a)
    a.label("L_attn_end")
    a("s_endpgm")
    for uid in resc: rescale_block(a, uid)
```

```python
from asmlib import *
from k_proj2 import WS_Y2T, WS_UT

HS = 4416
RA = 65536; RBB = 131072
UB = RA + 4 * HS
UPAD = 32 * 80
R0 = 128
T = R0; HA = R0 + 10; UA = R0 + 11; LD = R0 + 12
FA = R0 + 32; FB = R0 + 48; ACC = R0 + 80; HO = R0 + 120
S1 = 20; S2 = 24; S3 = 28; S4 = 76
ST = 80

def conv_issue(a, LANE):
    srd(a, S1, 82, 0, 448 * 4096)
    srd(a, S2, 4, WS_UT, 448 * 4096)
    srd(a, S4, 84, 0, 896)
    a(f"v_lshlrev_b32 v{T+4}, 4, v0")
    for ch in range(2):
        a(f"s_lshl_b32 s{ST}, s2, 1")
        a(f"s_add_u32 s{ST}, s{ST}, {ch}")
        a(f"s_lshl_b32 s{ST+1}, s{ST}, 12")
        a(f"buffer_load_dwordx4 {vr(LD+10*ch,4)}, v{T+4}, s[{S1}:{S1+3}], s{ST+1} offen")
        a(f"buffer_load_dwordx4 {vr(LD+10*ch+4,4)}, v{T+4}, s[{S2}:{S2+3}], s{ST+1} offen")
        a(f"buffer_load_dword v{LD+10*ch+9}, v{T+4}, s[{S1}:{S1+3}], s{ST+1} offen offset:16")
        a(f"s_lshl_b32 s{ST+1}, s{ST}, 1")
        a(f"v_mov_b32 v{T+5}, s{ST+1}")
        a(f"buffer_load_ushort v{LD+10*ch+8}, v{T+5}, s[{S4}:{S4+3}], 0 offen")

def conv_run(a, LANE, S_WAVE, nyounger, stamp=lambda a: None):
    stamp(a)
    srd(a, S3, 4, WS_Y2T, 448 * 4096)
    a(f"v_and_b32 v{T}, 31, v{LANE}")
    a(f"v_lshrrev_b32 v{T+1}, 5, v{LANE}")
    a(f"v_add_u32 v{T+2}, 1, v{T}")
    a(f"v_and_b32 v{T+2}, 7, v{T+2}")
    a(f"v_mul_u32_u24 v{HA}, {HS-2}, v{T+2}")
    a(f"v_lshrrev_b32 v{T+3}, 2, v{T+2}")
    a(f"v_mul_u32_u24 v{T+3}, {RBB-RA-4*HS}, v{T+3}")
    a(f"v_add_u32 v{HA}, v{HA}, v{T+3}")
    a(f"v_lshl_add_u32 v{HA}, v{T}, 1, v{HA}")
    a(f"v_lshlrev_b32 v{T+3}, 4, v{T+1}")
    a(f"v_sub_u32 v{HA}, v{HA}, v{T+3}")
    a(f"s_lshl_b32 s{ST+2}, s{S_WAVE}, 6")
    a(f"s_add_u32 s{ST+2}, s{ST+2}, {RA+114-32}")
    a(f"v_add_u32 v{HA}, s{ST+2}, v{HA}")
    a(f"v_mul_u32_u24 v{UA}, 80, v{T}")
    a(f"v_add_u32 v{UA}, v{UA}, v{T+3}")
    a(f"s_mul_i32 s{ST+2}, s{S_WAVE}, 80")
    a(f"s_sub_u32 s{ST+2}, {UB+UPAD-60*80}, s{ST+2}")
    a(f"v_add_u32 v{UA}, s{ST+2}, v{UA}")
    for i in range(4): a(f"v_mov_b32 v{FA+i}, 0")
    a(f"v_add_u32 v{T+5}, {UB}, v{T+4}")
    a("v_cmp_gt_u32 vcc, 160, v0")
    a("s_and_saveexec_b64 s[86:87], vcc")
    a(f"ds_write_b128 v{T+5}, {vr(FA,4)}")
    a("s_mov_b64 exec, s[86:87]")
    a(f"v_lshrrev_b32 v{T+6}, 3, v0")
    a(f"v_mul_u32_u24 v{T+8}, {HS}, v{T+6}")
    a(f"v_lshrrev_b32 v{T+6}, 2, v{T+6}")
    a(f"v_mul_u32_u24 v{T+6}, {RBB-RA-4*HS}, v{T+6}")
    a(f"v_add_u32 v{T+8}, v{T+8}, v{T+6}")
    a(f"v_and_b32 v{T+7}, 7, v0")
    a(f"v_lshl_add_u32 v{T+8}, v{T+7}, 4, v{T+8}")
    a(f"v_add_u32 v{T+8}, {RA}, v{T+8}")
    for ch in range(2):
        H = LD + 10 * ch; U = H + 4; D = H + 8
        if ch == 1:
            for i in range(4): a(f"v_mov_b32 v{FA+i}, 0")
            a("s_barrier")
        a("v_cmp_gt_u32 vcc, 64, v0")
        a("s_and_saveexec_b64 s[86:87], vcc")
        a(f"ds_write_b128 v{T+8}, {vr(FA,4)}")
        a("s_mov_b64 exec, s[86:87]")
        a("s_waitcnt lgkmcnt(0)")
        a("s_barrier")
        if ch == 0: a(f"s_waitcnt vmcnt({nyounger})")
        a(f"v_add_u32 v{T+5}, {RA+128-8}, v{T+4}")
        a(f"v_add_u32 v{T+6}, {RBB+128-16}, v{T+4}")
        for j in range(3): a(f"v_alignbit_b32 v{HO+j}, v{H+j+1}, v{H+j}, 16")
        a(f"v_alignbit_b32 v{HO+3}, v{H+9}, v{H+3}, 16")
        for c in range(8):
            src = H if c % 2 == 0 else HO
            byte = ((c*HS + 8) if c < 4 else ((c-4)*HS + 16)) - 2*c + (2 if c % 2 else 0)
            reg = T + 5 if c < 4 else T + 6
            assert byte % 4 == 0
            a(f"v_add_u32 v{T+9}, {byte}, v{reg}")
            a(f"ds_write2_b32 v{T+9}, v{src}, v{src+1} offset0:0 offset1:1")
            a(f"ds_write2_b32 v{T+9}, v{src+2}, v{src+3} offset0:2 offset1:3")
        a("v_cmp_eq_u32 vcc, 0, v0")
        a("s_and_saveexec_b64 s[86:87], vcc")
        for c in (1, 3, 5, 7):
            byte = ((c*HS + 8) if c < 4 else ((c-4)*HS + 16)) - 2*c
            a(f"ds_write_b16 v{T+5 if c < 4 else T+6}, v{H} offset:{byte}")
        a("s_mov_b64 exec, s[86:87]")
        a(f"v_lshrrev_b32 v{T+5}, 2, v0")
        a(f"v_mul_u32_u24 v{T+5}, 80, v{T+5}")
        a(f"v_and_b32 v{T+7}, 3, v0")
        a(f"v_lshl_add_u32 v{T+5}, v{T+7}, 4, v{T+5}")
        a(f"v_add_u32 v{T+5}, {UB+UPAD}, v{T+5}")
        a(f"ds_write_b128 v{T+5}, {vr(U,4)}")
        a("s_waitcnt lgkmcnt(0)")
        a("s_barrier")
        stamp(a)
        steps = [(i, ks) for i in range(16) for ks in range(2)]
        PD = 3
        cnt = []
        def issue(n):
            i, ks = steps[n]; st = n & 3
            a(f"ds_read_b128 {vr(FA+4*st,4)}, v{HA} offset:{256*i + (32 if ks == 0 else 0)}")
            a(f"ds_read_b128 {vr(FB+8*st+4,4)}, v{UA} offset:{(60-4*i)*80 + 2560 + ks*32}")
            if i < 8: a(f"ds_read_b128 {vr(FB+8*st,4)}, v{UA} offset:{(60-4*i)*80 + ks*32}")
            cnt.append(3 if i < 8 else 2)
        for n in range(PD): issue(n)
        for n in range(32):
            i, ks = steps[n]; st = n & 3
            if n + PD < 32: issue(n + PD)
            a(f"s_waitcnt lgkmcnt({sum(cnt[n+1:])})")
            c1 = "0" if n == 0 else vr(ACC + 16, 16)
            a(f"v_mfma_f32_32x32x16_bf16 {vr(ACC+16,16)}, {vr(FA+4*st,4)}, {vr(FB+8*st+4,4)}, {c1}")
            if i < 8:
                c0 = "0" if n == 0 else vr(ACC, 16)
                a(f"v_mfma_f32_32x32x16_bf16 {vr(ACC,16)}, {vr(FA+4*st,4)}, {vr(FB+8*st,4)}, {c0}")
        a("s_barrier")
        stamp(a)
        a("s_nop 7\ns_nop 3")
        a(f"v_lshlrev_b32 v{T+5}, 4, v{LANE}")
        a(f"v_add_u32 v{T+5}, {RBB}, v{T+5}")
        a(f"s_lshl_b32 s{ST+2}, s{S_WAVE}, 13")
        a(f"v_add_u32 v{T+7}, s{ST+2}, v{T+5}")
        for c in range(8): a(f"ds_write_b128 v{T+7}, {vr(ACC+4*c,4)} offset:{c*1024}")
        a("s_waitcnt lgkmcnt(0)")
        a("s_barrier")
        a(f"s_lshl_b32 s{ST+2}, s{S_WAVE}, 11")
        a(f"v_add_u32 v{T+7}, s{ST+2}, v{T+5}")
        for w in range(4):
            for c in range(2): a(f"ds_read_b128 {vr(ACC+8*w+4*c,4)}, v{T+7} offset:{w*8192 + c*1024}")
        a(f"s_lshr_b32 s{ST+2}, s{S_WAVE}, 1")
        a(f"s_mul_i32 s{ST+2}, s{ST+2}, 2560")
        a(f"s_and_b32 s{ST+3}, s{S_WAVE}, 1")
        a(f"s_lshl_b32 s{ST+3}, s{ST+3}, 5")
        a(f"s_add_u32 s{ST+2}, s{ST+2}, s{ST+3}")
        a(f"s_add_u32 s{ST+2}, s{ST+2}, {UB+UPAD+8}")
        a(f"v_mul_u32_u24 v{T+7}, 80, v{T}")
        a(f"v_lshlrev_b32 v{T+3}, 3, v{T+1}")
        a(f"v_sub_u32 v{T+7}, v{T+7}, v{T+3}")
        a(f"v_add_u32 v{T+7}, s{ST+2}, v{T+7}")
        a(f"ds_read_b64 {vr(FB,2)}, v{T+7}")
        a(f"ds_read_b64 {vr(FB+2,2)}, v{T+7} offset:16")
        a(f"v_lshlrev_b32 v{D}, 16, v{D}")
        a("s_waitcnt lgkmcnt(0)")
        for i in range(8):
            a(f"v_add_f32 v{ACC+i}, v{ACC+i}, v{ACC+8+i}")
            a(f"v_add_f32 v{ACC+16+i}, v{ACC+16+i}, v{ACC+24+i}")
            a(f"v_add_f32 v{ACC+i}, v{ACC+i}, v{ACC+16+i}")
        X = ACC + 32
        for c in range(2):
            for pr in range(2):
                ud = FB + 2 * c + (1 - pr)
                a(f"v_and_b32 v{X}, 0xffff0000, v{ud}")
                a(f"v_lshlrev_b32 v{X+1}, 16, v{ud}")
                a(f"v_mul_f32 v{X}, v{X}, v{D}")
                a(f"v_mul_f32 v{X+1}, v{X+1}, v{D}")
                a(f"v_cvt_pk_bf16_f32 v{X}, v{X}, v{X+1}")
                a(f"v_cvt_pk_bf16_f32 v{X+2}, v{ACC+4*c+2*pr}, v{ACC+4*c+2*pr+1}")
                a(f"v_lshlrev_b32 v{X+1}, 16, v{X}")
                a(f"v_and_b32 v{X}, 0xffff0000, v{X}")
                a(f"v_lshlrev_b32 v{X+3}, 16, v{X+2}")
                a(f"v_and_b32 v{X+2}, 0xffff0000, v{X+2}")
                a(f"v_add_f32 v{X+1}, v{X+1}, v{X+3}")
                a(f"v_add_f32 v{X}, v{X}, v{X+2}")
                a(f"v_cvt_pk_bf16_f32 v{X+4+2*c+pr}, v{X+1}, v{X}")
        a(f"v_lshlrev_b32 v{T+7}, 6, v{T}")
        a(f"v_lshl_add_u32 v{T+7}, v{T+1}, 3, v{T+7}")
        a(f"s_lshr_b32 s{ST+2}, s{S_WAVE}, 1")
        a(f"s_lshl_b32 s{ST+2}, s{ST+2}, 11")
        a(f"s_add_u32 s{ST+2}, s{ST+2}, s{ST+3}")
        a(f"s_lshl_b32 s{ST}, s2, 1")
        a(f"s_add_u32 s{ST}, s{ST}, {ch}")
        a(f"s_lshl_b32 s{ST+3}, s{ST}, 12")
        a(f"s_add_u32 s{ST+2}, s{ST+2}, s{ST+3}")
        a(f"buffer_store_dwordx2 {vr(X+4,2)}, v{T+7}, s[{S3}:{S3+3}], s{ST+2} offen")
        a(f"buffer_store_dwordx2 {vr(X+6,2)}, v{T+7}, s[{S3}:{S3+3}], s{ST+2} offen offset:16")
```

```python
from asmlib import *
from k_proj2 import WS_CTX, WS_Y2T, WS_G, WS_UT, WS_WO

import os
STAMPO = int(os.environ.get("STAMPO", "0"))
_sto = [0]
def stamp(a):
    if not STAMPO: return
    i = _sto[0]; _sto[0] += 1
    a("s_memtime s[90:91]\ns_memrealtime s[92:93]\ns_waitcnt lgkmcnt(0)\nv_mov_b32 v30, s90\nv_mov_b32 v31, s92")
    a(f"s_lshl_b32 s94, s2, 8\ns_add_u32 s94, s94, {i*8}\nv_mov_b32 v29, s94")
    a(f"s_cmp_lg_u32 s32, 0\ns_cbranch_scc1 L_sto_{i}")
    a("buffer_store_dwordx2 v[30:31], v29, s[96:99], 0 offen")
    a.label(f"L_sto_{i}")
def gen_out(a, name="out_kernel"):
    LANE = 1; VXO = 2; VWO = 4; VXA = 5; VWA = 9; T = 12; FR = 32; ACC = 64
    S_X = 8; S_W = 12; S_O = 16; S_Q = 20; S_Y = 24; S_G = 28
    S_WAVE = 32; S_M0 = 33; S_XOFF = 34; S_WOFF = 35; S_TMP = 36; S_RB = 37; S_CB = 38; S_TMP2 = 39
    a.raw(f".globl {name}\n.p2align 8\n.type {name},@function\n{name}:")
    a("s_cmp_ge_u32 s2, 224")
    a("s_cbranch_scc1 L_out_end")
    a("s_load_dwordx2 s[4:5], s[0:1], 120")
    a("s_load_dwordx2 s[6:7], s[0:1], 88")
    a("s_load_dwordx2 s[40:41], s[0:1], 104")
    a("s_load_dwordx2 s[42:43], s[0:1], 0")
    a(f"v_lshrrev_b32 v{T}, 6, v0")
    a(f"v_and_b32 v{LANE}, 63, v0")
    a(f"v_readfirstlane_b32 s{S_WAVE}, v{T}")
    a("s_and_b32 s44, s2, 7")
    a("s_lshr_b32 s45, s2, 3")
    a("s_mul_i32 s46, s45, 37")
    a("s_lshr_b32 s46, s46, 8")
    a("s_mul_i32 s47, s46, 7")
    a(f"s_sub_u32 s{S_CB}, s45, s47")
    a(f"s_lshl_b32 s{S_RB}, s44, 2")
    a(f"s_add_u32 s{S_RB}, s{S_RB}, s46")
    a("s_waitcnt lgkmcnt(0)")
    srd(a, S_X, 4, WS_CTX, 16 << 20)
    srd(a, S_W, 4, WS_WO, 14 * 256 * 1024)
    srd(a, S_O, 40, 0, 2048 * 448 * 2)
    srd(a, S_Q, 42, 0, 2048 * 448 * 2)
    srd(a, S_Y, 4, WS_Y2T, 448 * 2048 * 2)
    srd(a, S_G, 4, WS_G, 2048 * 4)
    if STAMPO: srd(a, 96, 4, 202 << 20, 1 << 20)
    stamp(a)
    XR = 128; XD = 8
    a(f"v_lshlrev_b32 v{VXO}, 4, v{LANE}")
    a(f"s_lshl_b32 s{S_TMP}, s{S_WAVE}, 16")
    a(f"s_lshl_b32 s{S_XOFF}, s{S_RB}, 19")
    a(f"s_add_u32 s{S_XOFF}, s{S_XOFF}, s{S_TMP}")
    a(f"s_add_u32 s{S_TMP2}, s{S_XOFF}, {256*1024}")
    a(f"s_lshl_b32 s{S_WOFF}, s{S_CB}, 19")
    a(f"s_add_u32 s{S_WOFF}, s{S_WOFF}, s{S_TMP}")
    a(f"s_add_u32 s{S_M0}, s{S_WOFF}, {256*1024}")
    def ld(k):
        r = XR + (k % XD) * 16
        if k % 4 == 0 and k:
            for sreg in (S_XOFF, S_TMP2, S_WOFF, S_M0): a(f"s_add_u32 s{sreg}, s{sreg}, 4096")
        a(f"buffer_load_dwordx4 {vr(r,4)}, v{VXO}, s[{S_X}:{S_X+3}], s{S_XOFF} offen offset:{(k%4)*1024}")
        a(f"buffer_load_dwordx4 {vr(r+8,4)}, v{VXO}, s[{S_W}:{S_W+3}], s{S_WOFF} offen offset:{(k%4)*1024}")
        a(f"buffer_load_dwordx4 {vr(r+4,4)}, v{VXO}, s[{S_X}:{S_X+3}], s{S_TMP2} offen offset:{(k%4)*1024}")
        a(f"buffer_load_dwordx4 {vr(r+12,4)}, v{VXO}, s[{S_W}:{S_W+3}], s{S_M0} offen offset:{(k%4)*1024}")
    for k in range(XD - 1): ld(k)
    a(f"s_lshr_b32 s44, s{S_WAVE}, 1")
    a(f"s_and_b32 s45, s{S_WAVE}, 1")
    a(f"v_and_b32 v{T}, 31, v{LANE}")
    a(f"v_lshrrev_b32 v{T+1}, 5, v{LANE}")
    a(f"s_lshl_b32 s46, s{S_RB}, 6")
    a("s_lshl_b32 s47, s44, 5")
    a("s_add_u32 s46, s46, s47")
    a(f"v_add_u32 v{T+2}, s46, v{T}")
    a(f"s_lshl_b32 s47, s{S_CB}, 6")
    a("s_lshl_b32 s48, s45, 5")
    a("s_add_u32 s47, s47, s48")
    a(f"v_lshlrev_b32 v{T+3}, 2, v{T+2}")
    a(f"buffer_load_dword v{T+8}, v{T+3}, s[{S_G}:{S_G+3}], 0 offen")
    a(f"v_mul_u32_u24 v{T+3}, 896, v{T+2}")
    a(f"v_lshl_add_u32 v{T+3}, v{T+1}, 3, v{T+3}")
    a("s_lshl_b32 s48, s47, 1")
    a(f"v_add_u32 v{T+3}, s48, v{T+3}")
    XQ = FR
    for q4 in range(4):
        a(f"buffer_load_dwordx2 {vr(XQ+2*q4,2)}, v{T+3}, s[{S_Q}:{S_Q+3}], 0 offen offset:{q4*16}")
    a(f"v_lshlrev_b32 v{T+4}, 14, v{T+1}")
    a(f"v_lshl_add_u32 v{T+4}, v{T+2}, 1, v{T+4}")
    a("s_lshl_b32 s48, s47, 12")
    YQ = FR + 8
    for q4 in range(4):
        for i in range(4):
            a(f"s_add_u32 s49, s48, {(8*q4+i)*4096}")
            a(f"buffer_load_ushort v{YQ+4*q4+i}, v{T+4}, s[{S_Y}:{S_Y+3}], s49 offen")
    def acc(sb, nb): return ACC + (sb * 2 + nb) * 16
    NE = 21
    for k in range(64):
        if k + XD - 1 < 64: ld(k + XD - 1)
        younger = 4 * (min(63, k + XD - 1) - k) + (NE if k < XD - 1 else 0)
        a(f"s_waitcnt vmcnt({younger})")
        if k % 16 == 0: stamp(a)
        r = XR + (k % XD) * 16
        for sb in range(2):
            for nb in range(2):
                c = "0" if k == 0 else vr(acc(sb, nb), 16)
                a(f"v_mfma_f32_32x32x16_bf16 {vr(acc(sb,nb),16)}, {vr(r+8+4*nb,4)}, {vr(r+4*sb,4)}, {c}")
    stamp(a)
    a("s_nop 7\ns_nop 3")
    a(f"v_lshlrev_b32 v{T+5}, 4, v{LANE}")
    a(f"s_lshl_b32 s{S_TMP}, s{S_WAVE}, 15")
    a(f"v_add_u32 v{T+6}, s{S_TMP}, v{T+5}")
    for c in range(16):
        a(f"ds_write_b128 v{T+6}, {vr(ACC+4*c,4)} offset:{c*1024}")
    a("s_waitcnt lgkmcnt(0)")
    a("s_barrier")
    a(f"s_lshl_b32 s{S_TMP}, s{S_WAVE}, 12")
    a(f"v_add_u32 v{T+6}, s{S_TMP}, v{T+5}")
    a(f"v_add_u32 v{T+7}, 0x10000, v{T+6}")
    for w in range(4):
        for c in range(4):
            a(f"ds_read_b128 {vr(ACC+16*w+4*c,4)}, v{T+6+(w>>1)} offset:{(w&1)*32768 + c*1024}")
    a("s_waitcnt lgkmcnt(0)")
    for i in range(16):
        a(f"v_add_f32 v{ACC+i}, v{ACC+i}, v{ACC+16+i}")
        a(f"v_add_f32 v{ACC+32+i}, v{ACC+32+i}, v{ACC+48+i}")
        a(f"v_add_f32 v{ACC+i}, v{ACC+i}, v{ACC+32+i}")
    a("s_waitcnt vmcnt(0)")
    G = T + 8; G1 = T + 9
    a(f"v_sub_f32 v{G1}, 1.0, v{G}")
    a(f"v_cvt_pk_bf16_f32 v{G1}, v{G1}, v{G1}")
    a(f"v_lshlrev_b32 v{G1}, 16, v{G1}")
    U = ACC + 16
    for q4 in range(4):
        for pr in range(2):
            i0 = 4 * q4 + 2 * pr
            xr = XQ + 2 * q4 + pr
            a(f"v_cvt_pk_bf16_f32 v{U}, v{ACC+i0}, v{ACC+i0+1}")
            a(f"v_lshlrev_b32 v{U+1}, 16, v{U}")
            a(f"v_and_b32 v{U+2}, 0xffff0000, v{U}")
            a(f"v_mul_f32 v{U+1}, v{U+1}, v{G1}")
            a(f"v_mul_f32 v{U+2}, v{U+2}, v{G1}")
            a(f"v_cvt_pk_bf16_f32 v{U}, v{U+1}, v{U+2}")
            a(f"v_lshlrev_b32 v{U+3}, 16, v{xr}")
            a(f"v_and_b32 v{U+4}, 0xffff0000, v{xr}")
            a(f"v_lshlrev_b32 v{U+5}, 16, v{YQ+i0}")
            a(f"v_lshlrev_b32 v{U+6}, 16, v{YQ+i0+1}")
            a(f"v_mul_f32 v{U+3}, v{U+3}, v{U+5}")
            a(f"v_mul_f32 v{U+4}, v{U+4}, v{U+6}")
            a(f"v_cvt_pk_bf16_f32 v{U+3}, v{U+3}, v{U+4}")
            a(f"v_lshlrev_b32 v{U+4}, 16, v{U+3}")
            a(f"v_and_b32 v{U+5}, 0xffff0000, v{U+3}")
            a(f"v_mul_f32 v{U+4}, v{U+4}, v{G}")
            a(f"v_mul_f32 v{U+5}, v{U+5}, v{G}")
            a(f"v_cvt_pk_bf16_f32 v{U+3}, v{U+4}, v{U+5}")
            a(f"v_lshlrev_b32 v{U+4}, 16, v{U+3}")
            a(f"v_and_b32 v{U+5}, 0xffff0000, v{U+3}")
            a(f"v_lshlrev_b32 v{U+1}, 16, v{U}")
            a(f"v_and_b32 v{U+2}, 0xffff0000, v{U}")
            a(f"v_add_f32 v{U+4}, v{U+4}, v{U+1}")
            a(f"v_add_f32 v{U+5}, v{U+5}, v{U+2}")
            a(f"v_cvt_pk_bf16_f32 v{U+8+2*q4+pr}, v{U+4}, v{U+5}")
        a(f"buffer_store_dwordx2 {vr(U+8+2*q4,2)}, v{T+3}, s[{S_O}:{S_O+3}], 0 offen offset:{q4*16}")
    if STAMPO:
        a("s_waitcnt vmcnt(0)")
        stamp(a)
    a.label("L_out_end")
    a("s_endpgm")
```

```python
import os
from asmlib import *

WS_Q = 0
WS_K = 16 << 20
WS_VT = 32 << 20
WS_CTX = 48 << 20
WS_Y2T = 64 << 20
WS_UT = WS_Y2T + (2 << 20)
WS_G = WS_Y2T + (4 << 20)
WS_WO = WS_Y2T + (5 << 20)
WS_PART = 76 << 20

V_LANE = 1; V_XOFF = 2; V_WOFF = 4; V_XA = 6; V_WA = 14; V_T = 18; V_FR = 32; V_SD = 80; V_ACC = 128
S_X = 8; S_W = 12; S_O = 16
S_WAVE = 30; S_M0X = 31; S_M0W = 32; S_XOFF = 33; S_WOFF = 34; S_TMP = 35; S_OB = 36; S_WS_ = 37; S_WN_ = 38
SC1 = int(os.environ.get("SC1", "1"))
STAMP = int(os.environ.get("STAMP", "0"))
_stn = [0]
def stamp(a):
    if not STAMP: return
    i = _stn[0]; _stn[0] += 1
    a("s_memtime s[90:91]\ns_memrealtime s[92:93]\ns_waitcnt lgkmcnt(0)\nv_mov_b32 v30, s90\nv_mov_b32 v31, s92")
    a(f"s_lshl_b32 s94, s2, 8\ns_add_u32 s94, s94, {i*8}\nv_mov_b32 v29, s94")
    a(f"s_cmp_lg_u32 s{S_WAVE}, 0\ns_cbranch_scc1 L_st_{i}")
    a("buffer_store_dwordx2 v[30:31], v29, s[96:99], 0 offen")
    a.label(f"L_st_{i}")

class Job:
    def __init__(self, a, TS, KT, ldx, vtype, sx, sw, so):
        self.a = a; self.TS = TS; self.KT = KT; self.ldx = ldx; self.vtype = vtype
        self.SB = TS // 64; self.sx = sx; self.sw = sw; self.so = so
    def setup_dma(self, s_m0, s_n0):
        a = self.a; T = V_T; TS = self.TS; ldx = self.ldx
        a(f"v_lshrrev_b32 v{T}, 3, v{V_LANE}")
        a(f"v_mul_u32_u24 v{T+1}, {ldx}, v{T}")
        a(f"v_lshrrev_b32 v{T+2}, 4, v{V_LANE}")
        a(f"v_and_b32 v{T+3}, 7, v{V_LANE}")
        a(f"v_xor_b32 v{T+4}, v{T+3}, v{T+2}")
        a(f"v_lshl_add_u32 v{V_XOFF}, v{T+4}, 4, v{T+1}")
        a(f"v_xor_b32 v{T+4}, 4, v{T+4}")
        a(f"v_lshl_add_u32 v{V_XOFF+1}, v{T+4}, 4, v{T+1}")
        a(f"s_mul_i32 s{S_M0X}, s{S_WAVE}, {TS//8*128}")
        a(f"s_mul_i32 s{S_XOFF}, s{S_WAVE}, {TS//8}")
        a(f"s_add_u32 s{S_XOFF}, s{S_XOFF}, s{s_m0}")
        a(f"s_mul_i32 s{S_XOFF}, s{S_XOFF}, {ldx}")
        a(f"s_lshl_b32 s{S_WOFF}, s{S_WAVE}, 16")
        a(f"s_add_u32 s{S_WOFF}, s{S_WOFF}, s{s_n0}")
    def dma(self, stage, kt):
        a = self.a
        for j in range(self.TS // 64):
            a(f"s_add_u32 m0, s{S_M0X}, {stage*65536 + j*1024}")
            a(f"s_add_u32 s{S_TMP}, s{S_XOFF}, {kt*128 + j*8*self.ldx}")
            a(f"buffer_load_dwordx4 v{V_XOFF+(j&1)}, s[{self.sx}:{self.sx+3}], s{S_TMP} offen lds")
        for j in range(4):
            a(f"s_add_u32 m0, s{S_M0W}, {stage*65536 + 32768 + j*1024}")
            a(f"s_add_u32 s{S_TMP}, s{S_WOFF}, {(kt*64 + 2*j)*8192}")
            a(f"buffer_load_dwordx4 v{V_WOFF+(j&1)}, s[{self.sw}:{self.sw+3}], s{S_TMP} offen lds")
    def setup_xa(self):
        a = self.a; T = V_T
        a(f"v_and_b32 v{T}, 31, v{V_LANE}")
        a(f"v_lshrrev_b32 v{T+1}, 5, v{V_LANE}")
        a(f"v_bfe_u32 v{T+2}, v{V_LANE}, 1, 3")
        a(f"v_xor_b32 v{T+2}, v{T+2}, v{T+1}")
        a(f"s_mul_i32 s{S_TMP}, s{S_WS_}, {self.TS//2*128}")
        a(f"v_lshlrev_b32 v{T+3}, 7, v{T}")
        a(f"v_add_u32 v{T+3}, s{S_TMP}, v{T+3}")
        a(f"v_lshl_add_u32 v{V_XA}, v{T+2}, 4, v{T+3}")
        for ks in range(1, 4): a(f"v_xor_b32 v{V_XA+ks}, {ks<<5}, v{V_XA}")
        for ks in range(4): a(f"v_add_u32 v{V_XA+4+ks}, 0x10000, v{V_XA+ks}")
    def fx(self, st, sb): return V_FR + st * 24 + sb * 4
    def fw(self, st, nb): return V_FR + st * 24 + 16 + nb * 4
    def acc(self, sb, nb): return V_ACC + (sb * 2 + nb) * 16
    def reads(self, stage, ks, st):
        a = self.a
        for nb in range(2):
            a(f"ds_read_b64_tr_b16 {vr(self.fw(st,nb),2)}, v{V_WA+stage*2+nb} offset:{(16*ks)*512}")
            a(f"ds_read_b64_tr_b16 {vr(self.fw(st,nb)+2,2)}, v{V_WA+stage*2+nb} offset:{(16*ks+4)*512}")
        for sb in range(self.SB):
            a(f"ds_read_b128 {vr(self.fx(st,sb),4)}, v{V_XA+stage*4+ks} offset:{sb*4096}")
    def mfmas(self, st, first):
        a = self.a
        for sb in range(self.SB):
            for nb in range(2):
                c = "0" if first else vr(self.acc(sb, nb), 16)
                A, B = (self.fx(st, sb), self.fw(st, nb)) if self.vtype else (self.fw(st, nb), self.fx(st, sb))
                a(f"v_mfma_f32_32x32x16_bf16 {vr(self.acc(sb,nb),16)}, {vr(A,4)}, {vr(B,4)}, {c}")
    def tile(self, t, wait, do_dma, after=None):
        a = self.a; stg = t & 1
        a(f"s_waitcnt vmcnt({wait})")
        a("s_barrier")
        if not self.vtype and (t % 4 == 0): stamp(a)
        if do_dma: self.dma(stg ^ 1, t + 1)
        self.reads(stg, 0, 0)
        for ks in range(4):
            if ks < 3:
                self.reads(stg, ks + 1, (ks + 1) & 1)
                a(f"s_waitcnt lgkmcnt({self.SB+4})")
            else:
                a("s_waitcnt lgkmcnt(0)")
            self.mfmas(ks & 1, t == 0 and ks == 0)
        if after: after()
    def epilogue(self, s_ob):
        a = self.a; T = V_T
        a(f"v_lshlrev_b32 v{T}, 4, v{V_LANE}")
        n = 0
        for sb in range(self.SB):
            for nb in range(2):
                for tp in range(2):
                    r = self.acc(sb, nb) + 8 * tp
                    p = V_FR + (n % 8) * 4; n += 1
                    for u in range(4):
                        a(f"v_cvt_pk_bf16_f32 v{p+u}, v{r+2*u}, v{r+2*u+1}")
                    if self.vtype:
                        off = (sb >> 1) * 32768 + (nb * 4 + 2 * (sb & 1) + tp) * 1024
                    else:
                        off = sb * 16384 + (2 * nb + tp) * 1024
                    a(f"s_add_u32 s{S_TMP}, s{s_ob}, {off}")
                    a(f"buffer_store_dwordx4 {vr(p,4)}, v{T}, s[{self.so}:{self.so+3}], s{S_TMP} offen" + (" sc1" if self.TS == 256 and SC1 else ""))

def side_issue(a):
    R = V_SD; K = R; V = R + 11; SK = R + 20; GX = R + 24; GW = R + 28; TT = R + 32
    a("s_lshl_b32 s80, s2, 3")
    srd(a, 64, 56, 0, 2048 * 448 * 2)
    srd(a, 68, 58, 0, 2048 * 448 * 2)
    srd(a, 72, 60, 0, 448 * 8)
    srd(a, 76, 62, 0, 448 * 2)
    srd(a, 84, 86, 0, 4096 * 448 * 2)
    srd(a, 44, 4, 0, 2048 * 448 * 2)
    a(f"v_lshlrev_b32 v{TT}, 4, v{V_LANE}")
    a("s_mul_i32 s81, s2, 14336")
    a(f"s_lshl_b32 s82, s{S_WAVE}, 10")
    a("s_add_u32 s81, s81, s82")
    a("s_add_u32 m0, s82, 131072")
    a("s_nop 0")
    a(f"buffer_load_dwordx4 v{TT}, s[84:87], s81 offen lds")
    a(f"s_cmp_ge_u32 s{S_WAVE}, 6")
    a("s_cbranch_scc1 L_sd_now2_" + str(a.uid))
    a("s_add_u32 m0, s82, 139264")
    a("s_add_u32 s81, s81, 8192")
    a(f"buffer_load_dwordx4 v{TT}, s[84:87], s81 offen lds")
    a.label("L_sd_now2_" + str(a.uid))
    a(f"s_add_u32 s81, s80, s{S_WAVE}")
    a("s_mul_i32 s81, s81, 896")
    a(f"v_cmp_gt_u32 vcc, 56, v{V_LANE}")
    a(f"v_mov_b32 v{TT+1}, 0x7f000000")
    a(f"v_cndmask_b32 v{TT+1}, v{TT+1}, v{TT}, vcc")
    a(f"buffer_load_dwordx4 {vr(GX,4)}, v{TT+1}, s[44:47], s81 offen")
    a(f"buffer_load_dwordx4 {vr(GW,4)}, v{TT+1}, s[76:79], 0 offen")
    a(f"s_cmp_eq_u32 s{S_WAVE}, 7")
    a("s_cbranch_scc1 L_sd_nou_" + str(a.uid))
    a("s_mul_i32 s81, s80, 896")
    a("s_sub_u32 s82, s81, 2688")
    a(f"v_lshlrev_b32 v{TT}, 1, v0")
    a(f"v_add_u32 v{TT+1}, s82, v{TT}")
    for j in range(11):
        a(f"buffer_load_ushort v{K+j}, v{TT+1}, s[64:67], 0 offen")
        if j < 10: a(f"v_add_u32 v{TT+1}, 896, v{TT+1}")
    a(f"v_add_u32 v{TT+1}, s81, v{TT}")
    for j in range(8):
        a(f"buffer_load_ushort v{V+j}, v{TT+1}, s[68:71], 0 offen")
        if j < 7: a(f"v_add_u32 v{TT+1}, 896, v{TT+1}")
    a(f"v_lshlrev_b32 v{TT+2}, 3, v0")
    a(f"buffer_load_dwordx2 {vr(SK,2)}, v{TT+2}, s[72:75], 0 offen")
    a.label("L_sd_nou_" + str(a.uid))
    a.uid += 1

def side_compute(a):
    R = V_SD; K = R; V = R + 11; SK = R + 20; W = R + 32; GX = R + 24; GW = R + 28; TT = R + 36; A0 = R + 44
    tag = a.uid; a.uid += 1
    srd(a, 64, 26, WS_UT, 448 * 4096)
    srd(a, 68, 26, WS_G, 2048 * 4)
    srd(a, 72, 26, WS_WO, 14 * 256 * 1024)
    a(f"v_lshrrev_b32 v{TT}, 5, v{V_LANE}")
    a(f"v_bfe_u32 v{TT+1}, v{V_LANE}, 2, 2")
    a(f"v_lshl_add_u32 v{TT}, v{TT}, 2, v{TT+1}")
    a(f"v_mul_u32_u24 v{TT}, 896, v{TT}")
    a(f"v_bfe_u32 v{TT+1}, v{V_LANE}, 4, 1")
    a(f"v_lshl_add_u32 v{TT}, v{TT+1}, 5, v{TT}")
    a(f"v_and_b32 v{TT+1}, 3, v{V_LANE}")
    a(f"v_lshl_add_u32 v{TT}, v{TT+1}, 3, v{TT}")
    a(f"s_lshl_b32 s81, s{S_WAVE}, 6")
    a("s_add_u32 s81, s81, 131072")
    a(f"v_add_u32 v{TT}, s81, v{TT}")
    a(f"ds_read_b64_tr_b16 {vr(A0,2)}, v{TT}")
    a(f"ds_read_b64_tr_b16 {vr(A0+2,2)}, v{TT} offset:{8*896}")
    a(f"ds_read_b64_tr_b16 {vr(W,2)}, v{TT} offset:512")
    a(f"ds_read_b64_tr_b16 {vr(W+2,2)}, v{TT} offset:{8*896+512}")
    a(f"v_lshlrev_b32 v{TT+1}, 4, v{V_LANE}")
    a(f"s_lshl_b32 s81, s{S_WAVE}, 18")
    a("s_lshl_b32 s82, s2, 10")
    a("s_add_u32 s81, s81, s82")
    a("s_waitcnt lgkmcnt(0)")
    a(f"buffer_store_dwordx4 {vr(A0,4)}, v{TT+1}, s[72:75], s81 offen")
    a(f"s_add_u32 s81, s81, {8<<18}")
    a(f"buffer_store_dwordx4 {vr(W,4)}, v{TT+1}, s[72:75], s81 offen")
    a(f"v_mov_b32 v{TT+3}, 0")
    for j in range(4):
        a(f"v_lshlrev_b32 v{TT+4}, 16, v{GX+j}")
        a(f"v_lshlrev_b32 v{TT+5}, 16, v{GW+j}")
        a(f"v_and_b32 v{TT+6}, 0xffff0000, v{GX+j}")
        a(f"v_and_b32 v{TT+7}, 0xffff0000, v{GW+j}")
        a(f"v_mul_f32 v{TT+4}, v{TT+4}, v{TT+5}")
        a(f"v_mul_f32 v{TT+6}, v{TT+6}, v{TT+7}")
        a(f"v_cvt_pk_bf16_f32 v{TT+4}, v{TT+4}, v{TT+6}")
        a(f"v_lshlrev_b32 v{TT+5}, 16, v{TT+4}")
        a(f"v_and_b32 v{TT+6}, 0xffff0000, v{TT+4}")
        a(f"v_add_f32 v{TT+3}, v{TT+3}, v{TT+5}")
        a(f"v_add_f32 v{TT+3}, v{TT+3}, v{TT+6}")
    for off in (0x041F, 0x081F, 0x101F, 0x201F, 0x401F):
        a(f"ds_swizzle_b32 v{TT+4}, v{TT+3} offset:{off}")
        a("s_waitcnt lgkmcnt(0)")
        a(f"v_add_f32 v{TT+3}, v{TT+3}, v{TT+4}")
    a(f"v_mov_b32 v{TT+4}, v{TT+3}")
    a("s_nop 1")
    a(f"v_permlane32_swap_b32 v{TT+3}, v{TT+4}")
    a(f"v_add_f32 v{TT+3}, v{TT+3}, v{TT+4}")
    a(f"v_cvt_pk_bf16_f32 v{TT+3}, v{TT+3}, v{TT+3}")
    a(f"v_lshlrev_b32 v{TT+3}, 16, v{TT+3}")
    a(f"v_mul_f32 v{TT+3}, 0xbfb8aa3b, v{TT+3}")
    a(f"v_exp_f32 v{TT+3}, v{TT+3}")
    a("s_nop 0")
    a(f"v_add_f32 v{TT+3}, 1.0, v{TT+3}")
    a(f"v_rcp_f32 v{TT+3}, v{TT+3}")
    a("s_nop 0")
    a(f"v_cvt_pk_bf16_f32 v{TT+3}, v{TT+3}, v{TT+3}")
    a(f"v_lshlrev_b32 v{TT+3}, 16, v{TT+3}")
    a(f"s_add_u32 s81, s80, s{S_WAVE}")
    a("s_lshl_b32 s81, s81, 2")
    a(f"v_mov_b32 v{TT+4}, s81")
    a(f"buffer_store_dword v{TT+3}, v{TT+4}, s[68:71], 0 offen")
    a(f"s_cmp_eq_u32 s{S_WAVE}, 7")
    a(f"s_cbranch_scc1 L_sc_end_{tag}")
    for j in range(11): a(f"v_lshlrev_b32 v{K+j}, 16, v{K+j}")
    for j in range(8): a(f"v_lshlrev_b32 v{V+j}, 16, v{V+j}")
    a("s_nop 0")
    a(f"v_lshlrev_b32 v{W}, 16, v{SK}")
    a(f"v_and_b32 v{W+1}, 0xffff0000, v{SK}")
    a(f"v_lshlrev_b32 v{W+2}, 16, v{SK+1}")
    a(f"v_and_b32 v{W+3}, 0xffff0000, v{SK+1}")
    for i in range(0, 8, 2):
        p0, p1, pk, c0, c1 = TT, TT + 1, TT + 2, TT + 3, TT + 4
        a(f"v_mul_f32 v{p0}, v{K+i}, v{W+3}")
        a(f"v_mul_f32 v{p1}, v{K+i+1}, v{W+3}")
        a(f"v_cvt_pk_bf16_f32 v{pk}, v{p0}, v{p1}")
        a(f"v_lshlrev_b32 v{c0}, 16, v{pk}")
        a(f"v_and_b32 v{c1}, 0xffff0000, v{pk}")
        for off, w in ((1, 2), (2, 1), (3, 0)):
            a(f"v_mul_f32 v{p0}, v{K+i+off}, v{W+w}")
            a(f"v_mul_f32 v{p1}, v{K+i+1+off}, v{W+w}")
            a(f"v_cvt_pk_bf16_f32 v{pk}, v{p0}, v{p1}")
            a(f"v_lshlrev_b32 v{p0}, 16, v{pk}")
            a(f"v_and_b32 v{p1}, 0xffff0000, v{pk}")
            a(f"v_add_f32 v{c0}, v{c0}, v{p0}")
            a(f"v_add_f32 v{c1}, v{c1}, v{p1}")
            a(f"v_cvt_pk_bf16_f32 v{pk}, v{c0}, v{c1}")
            a(f"v_lshlrev_b32 v{c0}, 16, v{pk}")
            a(f"v_and_b32 v{c1}, 0xffff0000, v{pk}")
        a(f"v_mul_f32 v{c0}, v{c0}, v{V+i}")
        a(f"v_mul_f32 v{c1}, v{c1}, v{V+i+1}")
        a(f"v_cvt_pk_bf16_f32 v{A0+3-i//2}, v{c1}, v{c0}")
    a(f"v_lshlrev_b32 v{TT+1}, 12, v0")
    a("s_lshl_b32 s81, s80, 1")
    a(f"buffer_store_dwordx4 {vr(A0,4)}, v{TT+1}, s[64:67], s81 offen")
    a.label(f"L_sc_end_{tag}")

def gen_proj(a, name="proj_kernel"):
    T = V_T
    a.raw(f".globl {name}\n.p2align 8\n.type {name},@function\n{name}:")
    a("s_cmp_ge_u32 s2, 256")
    a("s_cbranch_scc1 L_proj_end")
    a("s_load_dwordx2 s[4:5], s[0:1], 0")
    a("s_load_dwordx2 s[6:7], s[0:1], 56")
    a("s_load_dwordx2 s[20:21], s[0:1], 64")
    a("s_load_dwordx2 s[22:23], s[0:1], 72")
    a("s_load_dwordx2 s[24:25], s[0:1], 80")
    a("s_load_dwordx2 s[26:27], s[0:1], 120")
    a("s_load_dwordx2 s[56:57], s[0:1], 8")
    a("s_load_dwordx2 s[58:59], s[0:1], 16")
    a("s_load_dwordx2 s[60:61], s[0:1], 24")
    a("s_load_dwordx2 s[62:63], s[0:1], 96")
    a("s_load_dwordx2 s[86:87], s[0:1], 88")
    a(f"v_lshrrev_b32 v{T}, 6, v0")
    a(f"v_and_b32 v{V_LANE}, 63, v0")
    a(f"v_readfirstlane_b32 s{S_WAVE}, v{T}")
    a("s_nop 3")
    a(f"s_lshr_b32 s{S_WS_}, s{S_WAVE}, 2")
    a(f"s_and_b32 s{S_WN_}, s{S_WAVE}, 3")
    a(f"s_lshl_b32 s{S_M0W}, s{S_WAVE}, 12")
    a("s_and_b32 s48, s2, 7")
    a("s_lshr_b32 s49, s2, 3")
    a("s_and_b32 s50, s49, 3")
    a("s_lshl_b32 s51, s48, 2")
    a("s_add_u32 s50, s50, s51")
    a("s_lshr_b32 s51, s49, 2")
    a("s_lshl_b32 s40, s51, 8")
    a("s_and_b32 s52, s50, 15")
    a("s_lshl_b32 s41, s52, 9")
    a(f"v_lshrrev_b32 v{T}, 5, v{V_LANE}")
    a(f"v_and_b32 v{T+1}, 31, v{V_LANE}")
    a(f"v_lshlrev_b32 v{T+2}, 2, v{T}")
    a(f"v_xor_b32 v{T+1}, v{T+1}, v{T+2}")
    a(f"v_lshlrev_b32 v{T+3}, 13, v{T}")
    a(f"v_lshl_add_u32 v{V_WOFF}, v{T+1}, 4, v{T+3}")
    a(f"v_xor_b32 v{T+1}, 8, v{T+1}")
    a(f"v_lshl_add_u32 v{V_WOFF+1}, v{T+1}, 4, v{T+3}")
    a(f"v_lshrrev_b32 v{T+1}, 5, v{V_LANE}")
    a(f"v_bfe_u32 v{T}, v{V_LANE}, 2, 2")
    a(f"v_lshl_add_u32 v{T+2}, v{T+1}, 3, v{T}")
    a(f"v_lshlrev_b32 v{T+2}, 9, v{T+2}")
    a(f"v_bfe_u32 v{T+3}, v{V_LANE}, 4, 1")
    a(f"v_lshl_add_u32 v{T+2}, v{T+3}, 5, v{T+2}")
    a(f"v_bfe_u32 v{T+3}, v{V_LANE}, 1, 1")
    a(f"v_lshl_add_u32 v{T+2}, v{T+3}, 4, v{T+2}")
    a(f"v_and_b32 v{T+3}, 1, v{V_LANE}")
    a(f"v_lshl_add_u32 v{T+2}, v{T+3}, 3, v{T+2}")
    a(f"v_add_u32 v{T+2}, 0x8000, v{T+2}")
    for nb in range(2):
        a(f"s_lshl_b32 s{S_TMP}, s{S_WN_}, 1")
        a(f"s_add_u32 s{S_TMP}, s{S_TMP}, {nb}")
        a(f"v_xor_b32 v{T+3}, s{S_TMP}, v{T}")
        a(f"v_lshl_add_u32 v{V_WA+nb}, v{T+3}, 6, v{T+2}")
        a(f"v_add_u32 v{V_WA+2+nb}, 0x10000, v{V_WA+nb}")
    a("s_waitcnt lgkmcnt(0)")
    if STAMP: srd(a, 96, 26, 200 << 20, 1 << 20)
    stamp(a)
    srd(a, S_X, 6, 0, 2048 * 1024 * 2)
    a("s_and_b32 s53, s49, 1")
    a("s_lshl_b32 s54, s48, 1")
    a("s_add_u32 s53, s53, s54")
    a("s_lshr_b32 s54, s49, 1")
    a("s_lshl_b32 s54, s54, 7")
    a("s_lshl_b32 s55, s53, 9")
    jq = Job(a, 128, 7, 896, False, S_X, S_W, S_O)
    def q_prefetch():
        srd(a, S_X, 4, 0, 2048 * 448 * 2)
        srd(a, S_W, 20, 0, 448 * 4096 * 2)
        jq.setup_dma(54, 55)
        jq.dma(0, 0); jq.dma(1, 1)
    a("s_cmp_ge_u32 s50, 16")
    a("s_cbranch_scc1 L_proj_v")
    for vtype in (False, True):
        if vtype: a.label("L_proj_v")
        srd(a, S_W, 24 if vtype else 22, 0, 1024 * 4096 * 2)
        srd(a, S_O, 26, WS_VT if vtype else WS_K, 16 << 20)
        j = Job(a, 256, 16, 2048, vtype, S_X, S_W, S_O)
        j.setup_dma(40, 41)
        j.dma(0, 0)
        side_issue(a)
        j.setup_xa()
        for t in range(16):
            j.tile(t, 0, t + 1 < 16, after=(lambda: side_compute(a)) if t == 0 else None)
        a("s_barrier")
        if not vtype: stamp(a)
        q_prefetch()
        a("s_lshl_b32 s42, s52, 20")
        a(f"s_lshl_b32 s{S_TMP}, s{S_WS_}, 7")
        a(f"s_add_u32 s{S_TMP}, s{S_TMP}, s40")
        a(f"s_lshl_b32 s{S_TMP}, s{S_TMP}, 9")
        a(f"s_add_u32 s42, s42, s{S_TMP}")
        a(f"s_lshl_b32 s{S_TMP}, s{S_WN_}, {13 if vtype else 12}")
        a(f"s_add_u32 s42, s42, s{S_TMP}")
        j.epilogue(42)
        if not vtype: a("s_branch L_proj_q")
    a.label("L_proj_q")
    stamp(a)
    srd(a, S_O, 26, WS_Q, 16 << 20)
    jq.setup_xa()
    for t in range(7):
        jq.tile(t, {0: 22, 1: 16}.get(t, 0), 1 <= t < 6)
    a("s_lshl_b32 s42, s53, 20")
    a(f"s_lshl_b32 s{S_TMP}, s{S_WS_}, 6")
    a(f"s_add_u32 s{S_TMP}, s{S_TMP}, s54")
    a(f"s_lshl_b32 s{S_TMP}, s{S_TMP}, 9")
    a(f"s_add_u32 s42, s42, s{S_TMP}")
    a(f"s_lshl_b32 s{S_TMP}, s{S_WN_}, 12")
    a(f"s_add_u32 s42, s42, s{S_TMP}")
    a("s_nop 7")
    stamp(a)
    jq.epilogue(42)
    if STAMP:
        a("s_waitcnt vmcnt(0)")
        stamp(a)
    a.label("L_proj_end")
    a("s_endpgm")
```

```python
import sys
from asmlib import *
from k_proj2 import *
from k_attn4 import gen_attn
from k_out2 import gen_out

HDR = open("gated_mix__ssm_conv_h3__compressed_kv_cla__prompt.s.ref").read().split("; Override launch")[0]

def main(out):
    a = Asm()
    gen_proj(a)
    gen_attn(a)
    gen_out(a)
    s = HDR
    s += "; @launch kernel=proj_kernel grid=(256,1,1) block=(512,1,1) lds=147456\n"
    s += "; @launch kernel=attn_kernel grid=(256,1,1) block=(256,1,1) lds=163840\n"
    s += "; @launch kernel=out_kernel grid=(224,1,1) block=(256,1,1) lds=131072\n"
    s += '.amdgcn_target "amdgcn-amd-amdhsa--gfx950"\n.text\n'
    s += a.text()
    s += kernel_desc("proj_kernel", 256)
    s += kernel_desc("attn_kernel", 256 + 224, accum=256)
    s += kernel_desc("out_kernel", 384, accum=256)
    open(out, "w").write(s)

main(sys.argv[1] if len(sys.argv) > 1 else "k.s")
```

```python
import os
from asmlib import *
from k_conv3 import conv_issue, conv_run, conv_pre
from k_proj2 import WS_Q, WS_K, WS_VT, WS_CTX, WS_PART

PART_SLOT = 4 * 17 * 1024
LANE = 1
VK_OFF = 2
VV_OFF = 10
VKA = 12
VVA = 20
MC = 24; LSUM = 25
QREL = 29
T = 30
P = 48
SA = 64; SB_ = 96
O = 128
AQX = 0; AQY = 64; AF = 128; NF = 8
S_K = 8; S_V = 12; S_Q = 16; S_PT = 20; S_C = 24; S_DB = 28
S_WAVE = 32; S_N = 33; S_CNT = 34; S_KOFF = 35; S_VOFF = 36; S_TMP = 37; S_M0K = 38
S_QT = 39; S_PAR = 40; S_HEAD = 41; S_SLOT = 42; S_CC = 43; S_T8 = 44; S_TMP2 = 45; S_NEG = 46
S_KB = 47; S_VB = 48; S_KL = 49; S_VL = 50; S_KT = 51; S_VT = 52; S_QY = 53; S_KROT = 54; S_KDEL = 55; S_M0V = 56; S_SIG = 57
S_PS = 58; S_NY = 59; S_TMPK = 68; S_SIGP = 69
CEXP = 0.0625 * 1.4426950408889634
DEPTH = int(os.environ.get('DEPTH', '4'))
CW = int(os.environ.get('CW', '1'))
SV = int(os.environ.get('SV', '0'))
KBUF = 0; VBUF = 98304
STAMPA = int(os.environ.get("STAMPA", "0"))
_stn = [0]
def stamp(a):
    if not STAMPA: return
    i = _stn[0]; _stn[0] += 1
    a("s_memtime s[90:91]\ns_memrealtime s[92:93]\ns_waitcnt lgkmcnt(0)\nv_mov_b32 v46, s90\nv_mov_b32 v47, s92")
    a(f"s_lshl_b32 s94, s2, 8\ns_add_u32 s94, s94, {i*8}\nv_mov_b32 v41, s94")
    a(f"s_cmp_lg_u32 s{S_WAVE}, 0\ns_cbranch_scc1 L_sta_{i}")
    a("buffer_store_dwordx2 v[46:47], v41, s[96:99], 0 offen")
    a.label(f"L_sta_{i}")

def f2u(x):
    import struct
    return struct.unpack("<I", struct.pack("<f", x))[0]

def dmak_list():
    u = []
    for j in range(8):
        pre = ""
        if j % 4 == 0:
            pre = f"s_add_u32 m0, s{S_M0K}, {j*1024}\ns_add_u32 s{S_TMPK}, s{S_KOFF}, {j*1024}\n"
        u.append(pre + f"buffer_load_dwordx4 v{VK_OFF}, s[{S_K}:{S_K+3}], s{S_TMPK} offen offset:{(j%4)*1024} lds")
    u.append(f"s_add_u32 s{S_KOFF}, s{S_KOFF}, 32768\ns_sub_u32 s{S_KL}, s{S_KL}, 1\ns_cmp_eq_u32 s{S_KL}, 0\n"
             f"s_cselect_b32 s{S_KOFF}, s{S_KB}, s{S_KOFF}\ns_sub_u32 s{S_KT}, s{S_KT}, 1\ns_cmp_eq_u32 s{S_KT}, 0\n"
             f"s_cselect_b32 s{S_KOFF}, 0x80000000, s{S_KOFF}\ns_cselect_b32 s{S_KB}, 0x80000000, s{S_KB}")
    u.append(f"s_add_u32 s{S_M0K}, s{S_M0K}, 32768\ns_cmp_ge_u32 s{S_M0K}, 98304\ns_cselect_b32 s{S_TMPK}, 98304, 0\n"
             f"s_sub_u32 s{S_M0K}, s{S_M0K}, s{S_TMPK}")
    return u
def dmav_list(buf):
    u = []
    for j in range(8):
        pre = ""
        if j % 4 == 0:
            pre = f"s_add_u32 m0, s{S_M0V}, {VBUF + buf*32768 + j*1024}\ns_add_u32 s{S_TMPK}, s{S_VOFF}, {j*1024}\n"
        u.append(pre + f"buffer_load_dwordx4 v{VK_OFF}, s[{S_V}:{S_V+3}], s{S_TMPK} offen offset:{(j%4)*1024} lds")
    u.append(f"s_add_u32 s{S_VOFF}, s{S_VOFF}, 32768\ns_sub_u32 s{S_VL}, s{S_VL}, 1\ns_cmp_eq_u32 s{S_VL}, 0\n"
             f"s_cselect_b32 s{S_VOFF}, s{S_VB}, s{S_VOFF}\ns_sub_u32 s{S_VT}, s{S_VT}, 1\ns_cmp_eq_u32 s{S_VT}, 0\n"
             f"s_cselect_b32 s{S_VOFF}, 0x80000000, s{S_VOFF}\ns_cselect_b32 s{S_VB}, 0x80000000, s{S_VB}")
    return u
def krot_list():
    u = [f"s_add_u32 s{S_KROT}, s{S_KROT}, 1\ns_mov_b32 s{S_KDEL}, 32768\ns_cmp_eq_u32 s{S_KROT}, 3\ns_cselect_b32 s{S_KDEL}, 0xffff0000, s{S_KDEL}\n"
         f"s_cselect_b32 s{S_KROT}, 0, s{S_KROT}"]
    u.append(f"v_add_u32 v{VKA}, s{S_KDEL}, v{VKA}")
    return u

def rd_k(f):
    return f"v{VKA} offset:{f*1024}"
def rd_v(vbuf, f):
    ks, db = f >> 3, f & 7
    return f"v{VVA} offset:{vbuf*32768 + (db*4+ks)*1024}"

def softmax_valu(S, masked, uid):
    v = []
    if masked:
        v.append(f"v_mov_b32 v{T+8}, 0xff800000")
        for i in range(0, 32, 4):
            blk = []
            for u in range(4):
                e = i + u; kb, r = e >> 4, e & 15
                ko = 32 * kb + 8 * (r >> 2) + (r & 3)
                blk.append(f"v_cmp_lt_i32 s[{60+2*u}:{61+2*u}], v{QREL}, {ko}")
            for u in range(4):
                blk.append(f"v_cndmask_b32 v{S+i+u}, v{S+i+u}, v{T+8}, s[{60+2*u}:{61+2*u}]")
            v.append("\n".join(blk))
    v.append(f"v_max3_f32 v{T}, v{S}, v{S+1}, v{S+2}")
    v.append(f"v_max3_f32 v{T+1}, v{S+3}, v{S+4}, v{S+5}")
    for i in range(6, 30, 4):
        v.append(f"v_max3_f32 v{T}, v{T}, v{S+i}, v{S+i+1}")
        v.append(f"v_max3_f32 v{T+1}, v{T+1}, v{S+i+2}, v{S+i+3}")
    v.append(f"v_max3_f32 v{T}, v{T}, v{S+30}, v{S+31}")
    v.append(f"v_max_f32 v{T}, v{T}, v{T+1}")
    v.append(f"v_mov_b32 v{T+1}, v{T}\ns_nop 1\nv_permlane32_swap_b32 v{T}, v{T+1}\nv_max_f32 v{T}, v{T}, v{T+1}\n"
             f"v_fma_f32 v{T+1}, v{T}, s{S_CC}, -v{MC}\nv_cmp_lt_f32 vcc, s{S_T8}, v{T+1}\ns_cbranch_vccnz L_resc_{uid}\nL_resc_ret_{uid}:")
    nmax = len(v)
    for i in range(32):
        v.append(f"v_fma_f32 v{S+i}, v{S+i}, s{S_CC}, -v{MC}")
        if i >= 1: v.append(f"v_exp_f32 v{S+i-1}, v{S+i-1}")
        if i >= 3: v.append(f"v_add_f32 v{LSUM+((i-3)&3)}, v{LSUM+((i-3)&3)}, v{S+i-3}")
        if i >= 4 and (i & 1) == 0: v.append(f"v_cvt_pk_bf16_f32 v{P+(i-4)//2}, v{S+i-4}, v{S+i-3}")
    v.append(f"v_exp_f32 v{S+31}, v{S+31}")
    v.append(f"v_add_f32 v{LSUM+1}, v{LSUM+1}, v{S+29}")
    v.append(f"v_add_f32 v{LSUM+2}, v{LSUM+2}, v{S+30}")
    v.append(f"v_add_f32 v{LSUM+3}, v{LSUM+3}, v{S+31}")
    v.append(f"v_cvt_pk_bf16_f32 v{P+14}, v{S+28}, v{S+29}")
    v.append(f"v_cvt_pk_bf16_f32 v{P+15}, v{S+30}, v{S+31}")
    return v, nmax

def rescale_block(a, uid):
    a.label(f"L_resc_{uid}")
    a(f"v_mul_f32 v{T+1}, s{S_CC}, v{T}")
    a(f"v_max_f32 v{T+1}, v{T+1}, v{MC}")
    a(f"v_sub_f32 v{T+2}, v{MC}, v{T+1}")
    a(f"v_exp_f32 v{T+2}, v{T+2}")
    a(f"v_mov_b32 v{MC}, v{T+1}")
    for i in range(4): a(f"v_mul_f32 v{LSUM+i}, v{LSUM+i}, v{T+2}")
    for i in range(128): a(f"v_mul_f32 v{O+i}, v{O+i}, v{T+2}")
    a(f"s_branch L_resc_ret_{uid}")

def qk_items(Sn, AQ):
    items = []
    for f in range(32):
        kb, ks = f >> 4, f & 15
        def mf(fr, kb=kb, ks=ks):
            c = "0" if ks == 0 else vr(Sn + 16 * kb, 16)
            return f"v_mfma_f32_32x32x16_bf16 {vr(Sn+16*kb,16)}, {ar(fr,4)}, {ar(AQ+4*ks,4)}, {c}"
        items.append((rd_k(f), mf))
    return items
def pv_items(vbuf):
    items = []
    for f in range(32):
        ks, db = f >> 3, f & 7
        def mf(fr, ks=ks, db=db):
            return f"v_mfma_f32_32x32x16_bf16 {vr(O+16*db,16)}, {ar(fr,4)}, {vr(P+4*ks,4)}, {vr(O+16*db,16)}"
        items.append((rd_v(vbuf, f), mf))
    return items

def emit_stream(a, items, extras, preread_done, next_pre):
    n = len(items)
    assert n % NF == 0
    if not preread_done:
        for i in range(DEPTH): a(f"ds_read_b128 {ar(AF+4*(i%NF),4)}, {items[i][0]}")
    for i in range(n):
        tail = next_pre is not None
        outstanding = DEPTH - 1 if (tail or i + DEPTH <= n) else n - 1 - i
        if i % 2 == 0:
            o2 = DEPTH - 2 if (tail or i + DEPTH <= n) else max(0, n - 2 - i)
            a(f"s_waitcnt lgkmcnt({o2})")
        a(items[i][1](AF + 4 * (i % NF)))
        j = i + DEPTH
        if j < n:
            a(f"ds_read_b128 {ar(AF+4*(j%NF),4)}, {items[j][0]}")
        elif tail:
            for x in extras.get(("pre", j - n), []): a(x)
            a(f"ds_read_b128 {ar(AF+4*(j%NF),4)}, {next_pre[j-n]}")
        for x in extras.get(i, []): a(x)

def spread(extras, units, lo, hi):
    n = len(units)
    for k, u in enumerate(units):
        s = lo + (k * (hi - lo)) // n
        extras.setdefault(s, []).append(u)

def step(a, par, kind, resc):
    Sc = SA if par == 0 else SB_
    Sn = SB_ if par == 0 else SA
    uid = a.newlabel("a"); resc.append(uid)
    last = kind in ('ym', 'yl')
    sm, nmax = softmax_valu(Sc, last, uid)
    if kind == 'ym': sm.append(f"v_subrev_u32 v{QREL}, 64, v{QREL}")
    extras = {}
    dk = dmak_list(); dv = dmav_list(par ^ 1); kr = krot_list()
    AB = int(os.environ.get("ABLA", "0"))
    if AB & 1: dk = []; dv = []
    if AB & 2: sm = sm[:nmax]
    if AB & 4: sm = []; nmax = 0
    if kind != 'yl':
        AQ = AQY if kind in ('xl', 'yn', 'ym') else AQX
        items = qk_items(Sn, AQ) + pv_items(par)
        spread(extras, sm[:nmax], 0, 6 if not last else 12)
        spread(extras, sm[nmax:], 6 if not last else 12, 54)
        if SV == 0:
            spread(extras, dv, 2, 30); spread(extras, dk, 36, 62)
        elif SV == 1:
            spread(extras, dv, 2, 20); spread(extras, dk, 54, 64)
        elif SV == 2:
            spread(extras, dv, 8, 40); spread(extras, dk, 40, 64)
        spread(extras, kr, 50, 56)
        if kind == 'ym':
            extras.setdefault(62, []).append(f"buffer_load_ubyte v{T+12}, v{T+13}, s[{S_DB}:{S_DB+3}], 0 offen sc1")
        emit_stream(a, items, extras, True, [rd_k(f) for f in range(DEPTH)])
    else:
        uid2 = a.newlabel("fs")
        a(f"s_mov_b32 s{S_SIG}, 1")
        a(f"s_cmp_eq_u32 s{S_PAR}, 0")
        a(f"s_cbranch_scc1 L_go_{uid2}")
        a("s_waitcnt vmcnt(0)")
        a(f"v_readfirstlane_b32 s{S_SIG}, v{T+12}")
        a("s_nop 3")
        a(f"s_cmp_eq_u32 s{S_SIG}, 0")
        a(f"s_cbranch_scc1 L_late_{uid2}")
        partner_prefetch(a)
        a(f"s_branch L_go_{uid2}")
        a.label(f"L_late_{uid2}")
        a(f"buffer_load_ubyte v{T+12}, v{T+13}, s[{S_DB}:{S_DB+3}], 0 offen sc1")
        a.label(f"L_go_{uid2}")
        a("s_waitcnt lgkmcnt(0)")
        items = pv_items(par)
        for i in range(DEPTH): a(f"ds_read_b128 {ar(AF+4*(i%NF),4)}, {items[i][0]}")
        for x in sm: a(x)
        a(f"s_cmp_lg_u32 s{S_SIG}, 0")
        a(f"s_cbranch_scc1 L_go2_{uid2}")
        partner_prefetch(a)
        a.label(f"L_go2_{uid2}")
        a("s_nop 1")
        emit_stream(a, items, extras, True, None)

def partner_prefetch(a):
    uid = a.newlabel("pp")
    a.label(f"L_poll_{uid}")
    a("s_waitcnt vmcnt(0)")
    a(f"v_readfirstlane_b32 s{S_TMP}, v{T+12}")
    a("s_nop 3")
    a(f"s_cmp_lg_u32 s{S_TMP}, 0")
    a(f"s_cbranch_scc1 L_pok_{uid}")
    a("s_sleep 1")
    a(f"buffer_load_ubyte v{T+12}, v{T+13}, s[{S_DB}:{S_DB+3}], 0 offen sc1")
    a(f"s_branch L_poll_{uid}")
    a.label(f"L_pok_{uid}")
    a(f"s_mul_i32 s{S_TMP}, s{S_PS}, {PART_SLOT}")
    a(f"s_mul_i32 s{S_TMP2}, s{S_WAVE}, {17*1024}")
    a(f"s_add_u32 s{S_TMP}, s{S_TMP}, s{S_TMP2}")
    a(f"v_lshlrev_b32 v{T+4}, 4, v{LANE}")
    for c in range(16):
        if c and c % 4 == 0: a(f"s_add_u32 s{S_TMP}, s{S_TMP}, 4096")
        a(f"buffer_load_dwordx4 {ar(160+4*c,4)}, v{T+4}, s[{S_PT}:{S_PT+3}], s{S_TMP} offen offset:{(c%4)*1024} sc1")
    a(f"s_add_u32 s{S_TMP}, s{S_TMP}, 4096")
    a(f"buffer_load_dwordx2 {vr(T+14,2)}, v{T+4}, s[{S_PT}:{S_PT+3}], s{S_TMP} offen sc1")

def send_flag(a):
    uid = a.newlabel("sg")
    a(f"s_mov_b32 s{S_SIGP}, 0")
    a(f"s_cmp_lg_u32 s{S_WAVE}, 0")
    a(f"s_cbranch_scc1 L_nosig_{uid}")
    a(f"v_mov_b32 v{T}, 1\nv_mov_b32 v{T+1}, s{S_SLOT}")
    a("s_mov_b64 exec, 1")
    a(f"buffer_store_byte v{T}, v{T+1}, s[{S_DB}:{S_DB+3}], 0 offen sc1")
    a("s_mov_b64 exec, -1")
    a.label(f"L_nosig_{uid}")

def top(a, sig):
    a("s_waitcnt vmcnt(8)")
    a("s_barrier")
    if sig:
        uid = a.newlabel("tp")
        a(f"s_cmp_eq_u32 s{S_SIGP}, 0")
        a(f"s_cbranch_scc1 L_ns_{uid}")
        send_flag(a)
        a.label(f"L_ns_{uid}")

def gen_attn(a, name="attn_kernel", conv=None):
    a.raw(f".globl {name}\n.p2align 8\n.type {name},@function\n{name}:")
    a("s_cmp_ge_u32 s2, 256")
    a("s_cbranch_scc1 L_attn_end")
    a("s_load_dwordx2 s[4:5], s[0:1], 120")
    a("s_load_dwordx2 s[6:7], s[0:1], 112")
    a("s_load_dwordx2 s[82:83], s[0:1], 32")
    a("s_load_dwordx2 s[84:85], s[0:1], 40")
    a(f"v_lshrrev_b32 v{T}, 6, v0")
    a(f"v_and_b32 v{LANE}, 63, v0")
    a(f"v_readfirstlane_b32 s{S_WAVE}, v{T}")
    a("s_and_b32 s70, s2, 7")
    a("s_lshr_b32 s71, s2, 3")
    a(f"s_and_b32 s{S_HEAD}, s71, 1")
    a("s_lshl_b32 s70, s70, 1")
    a(f"s_add_u32 s{S_HEAD}, s{S_HEAD}, s70")
    a("s_lshr_b32 s72, s71, 1")
    a("s_and_b32 s72, s72, 7")
    a(f"s_lshr_b32 s{S_PAR}, s71, 4")
    a(f"s_mov_b32 s{S_CC}, {f2u(CEXP)}")
    a(f"s_mov_b32 s{S_T8}, 0x41000000")
    a(f"s_mov_b32 s{S_NEG}, {f2u(-1e30)}")
    a(f"s_lshl_b32 s{S_M0K}, s{S_WAVE}, 13")
    a(f"s_lshl_b32 s{S_M0V}, s{S_WAVE}, 13")
    a(f"s_lshl_b32 s{S_SLOT}, s{S_HEAD}, 3")
    a(f"s_add_u32 s{S_SLOT}, s{S_SLOT}, s72")
    a(f"s_mov_b32 s{S_PS}, s{S_SLOT}")
    a(f"s_lshl_b32 s73, s{S_HEAD}, 20")
    a(f"s_sub_u32 s{S_QT}, 15, s72")
    a("s_lshl_b32 s74, s72, 1")
    a("s_sub_u32 s77, 15, s74")
    a("s_add_u32 s78, s74, 2")
    a(f"s_cmp_eq_u32 s{S_PAR}, 0")
    a(f"s_cselect_b32 s{S_QY}, s72, s{S_QT}")
    a(f"s_cselect_b32 s{S_N}, s77, 17")
    a(f"s_cselect_b32 s{S_NY}, s78, 17")
    a(f"s_cselect_b32 s{S_TMP}, 0, s77")
    a(f"s_mov_b32 s{S_KL}, s{S_N}\ns_mov_b32 s{S_VL}, s{S_N}\ns_mov_b32 s{S_KT}, 17\ns_mov_b32 s{S_VT}, 17")
    a(f"s_mov_b32 s{S_KROT}, 0\ns_mov_b32 s{S_SIGP}, 0\ns_mov_b32 s{S_CNT}, 0")
    a(f"s_lshl_b32 s{S_VB}, s{S_WAVE}, 13")
    a(f"s_mov_b32 s{S_KB}, s{S_VB}")
    a(f"s_lshl_b32 s{S_TMP}, s{S_TMP}, 15")
    a(f"s_add_u32 s{S_KOFF}, s{S_KB}, s{S_TMP}")
    a(f"s_mov_b32 s{S_VOFF}, s{S_KOFF}")
    a(f"v_lshlrev_b32 v{VK_OFF}, 4, v{LANE}")
    a(f"v_mov_b32 v{VKA}, v{VK_OFF}")
    a(f"v_add_u32 v{VVA}, {VBUF}, v{VK_OFF}")
    a("s_waitcnt lgkmcnt(0)")
    def srd_head(d, off):
        a(f"s_add_u32 s{d}, s4, {off}\ns_addc_u32 s{d+1}, s5, 0\ns_add_u32 s{d}, s{d}, s73\ns_addc_u32 s{d+1}, s{d+1}, 0")
        a(f"s_mov_b32 s{d+2}, {1<<20}\ns_mov_b32 s{d+3}, 0x00020000")
    srd_head(S_K, WS_K); srd_head(S_V, WS_VT); srd_head(S_Q, WS_Q)
    a("s_cmp_ge_u32 s2, 224")
    a("s_cbranch_scc1 L_noconv1")
    conv_issue(a, LANE)
    if CW: a("s_waitcnt vmcnt(0)")
    a.label("L_noconv1")
    if STAMPA: srd(a, 96, 4, 200 << 20, 1 << 20)
    stamp(a)
    for u in dmak_list(): a(u)
    a(f"v_and_b32 v{T}, 31, v{LANE}")
    a(f"v_lshrrev_b32 v{T+1}, 5, v{LANE}")
    a(f"s_lshl_b32 s{S_TMP2}, s{S_WAVE}, 5")
    a(f"v_add_u32 v{T+2}, s{S_TMP2}, v{T}")
    a(f"s_lshl_b32 s76, s{S_WAVE}, 14")
    a(f"s_lshl_b32 s75, s{S_QT}, 16")
    a("s_add_u32 s75, s75, s76")
    for ks in range(16):
        if ks and ks % 4 == 0: a("s_add_u32 s75, s75, 4096")
        a(f"buffer_load_dwordx4 {ar(AQX+4*ks,4)}, v{VK_OFF}, s[{S_Q}:{S_Q+3}], s75 offen offset:{(ks%4)*1024}")
    for u in dmav_list(0): a(u)
    for u in dmak_list(): a(u)
    a(f"v_lshlrev_b32 v{T+4}, 2, v{T+1}")
    a(f"v_sub_u32 v{QREL}, v{T+2}, v{T+4}")
    a("s_cmp_ge_u32 s2, 224")
    a("s_cbranch_scc1 L_noconv2")
    conv_pre(a, LANE, S_WAVE)
    conv_run(a, LANE, S_WAVE, 40, stamp)
    a("s_nop 1")
    a.label("L_noconv2")
    srd(a, S_PT, 4, WS_PART, 256 * PART_SLOT)
    srd(a, S_C, 4, WS_CTX, 16 << 20)
    srd(a, S_DB, 6, 0, 256)
    a(f"v_mov_b32 v{T+13}, s{S_PS}")
    a(f"v_mov_b32 v{MC}, s{S_NEG}")
    for i in range(4): a(f"v_mov_b32 v{LSUM+i}, 0")
    for i in range(128): a(f"v_mov_b32 v{O+i}, 0")
    a("s_waitcnt vmcnt(16)")
    a("s_barrier")
    stamp(a)
    ex = {}
    spread(ex, dmak_list(), 0, 10)
    spread(ex, [f"s_lshl_b32 s75, s{S_QY}, 16\ns_add_u32 s75, s75, s76"] + [("s_add_u32 s75, s75, 4096\n" if (ks and ks % 4 == 0) else "") + f"buffer_load_dwordx4 {ar(AQY+4*ks,4)}, v{VK_OFF}, s[{S_Q}:{S_Q+3}], s75 offen offset:{(ks%4)*1024}" for ks in range(16)], 10, 28)
    spread(ex, krot_list(), 30, 32)
    emit_stream(a, qk_items(SA, AQX), ex, False, None)
    stamp(a)
    resc = []
    a("s_waitcnt vmcnt(0)")
    a("s_barrier")
    for i in range(DEPTH): a(f"ds_read_b128 {ar(AF+4*i,4)}, {rd_k(i)}")
    a(f"s_cmp_eq_u32 s{S_PAR}, 0")
    a("s_cbranch_scc1 L_x0_entry")
    a("s_branch L_y0_entry")
    for par in range(2):
        a.label(f"L_x{par}")
        top(a, False)
        if par == 0: a.label("L_x0_entry")
        a(f"s_add_u32 s{S_CNT}, s{S_CNT}, 1")
        a(f"s_cmp_ge_u32 s{S_CNT}, s{S_N}")
        a(f"s_cbranch_scc1 L_xl{par}")
        step(a, par, 'xn', resc)
        if par == 1: a("s_branch L_x0")
    for par in range(2):
        a.label(f"L_xl{par}")
        step(a, par, 'xl', resc)
        stamp(a)
        a(f"s_mul_i32 s{S_TMP}, s{S_SLOT}, {PART_SLOT}")
        a(f"s_mul_i32 s{S_TMP2}, s{S_WAVE}, {17*1024}")
        a(f"s_add_u32 s{S_TMP}, s{S_TMP}, s{S_TMP2}")
        a(f"v_lshlrev_b32 v{T+4}, 4, v{LANE}")
        a(f"v_add_f32 v{T+1}, v{LSUM}, v{LSUM+1}")
        a(f"v_add_f32 v{T+2}, v{LSUM+2}, v{LSUM+3}")
        a(f"v_mov_b32 v{T}, v{MC}")
        a(f"v_add_f32 v{T+1}, v{T+1}, v{T+2}")
        a(f"s_add_u32 s{S_TMP2}, s{S_TMP}, {16*1024}")
        a(f"buffer_store_dwordx2 {vr(T,2)}, v{T+4}, s[{S_PT}:{S_PT+3}], s{S_TMP2} offen sc1")
        a(f"v_mov_b32 v{MC}, s{S_NEG}")
        for i in range(4): a(f"v_mov_b32 v{LSUM+i}, 0")
        a("s_nop 4")
        Sc = SA if par == 0 else SB_
        for c in range(16):
            pk = Sc + (c % 8) * 4
            for u in range(4):
                a(f"v_cvt_pk_bf16_f32 v{pk+u}, v{O+8*c+2*u}, v{O+8*c+2*u+1}")
            if c and c % 4 == 0: a(f"s_add_u32 s{S_TMP}, s{S_TMP}, 4096")
            a(f"buffer_store_dwordx4 {vr(pk,4)}, v{T+4}, s[{S_PT}:{S_PT+3}], s{S_TMP} offen offset:{(c%4)*1024} sc1")
        a(f"s_mov_b32 s{S_CNT}, 0")
        a(f"s_mov_b32 s{S_N}, s{S_NY}")
        a(f"s_mov_b32 s{S_SIGP}, 1")
        a("s_waitcnt vmcnt(25)")
        a("s_barrier")
        a(f"s_branch L_y{par^1}_entry")
    for par in range(2):
        a.label(f"L_y{par}")
        top(a, True)
        a.label(f"L_y{par}_entry")
        a(f"s_add_u32 s{S_CNT}, s{S_CNT}, 1")
        a(f"s_cmp_ge_u32 s{S_CNT}, s{S_N}")
        a(f"s_cbranch_scc1 L_yl{par}")
        a(f"s_add_u32 s{S_TMP2}, s{S_CNT}, 1")
        a(f"s_cmp_ge_u32 s{S_TMP2}, s{S_N}")
        a(f"s_cbranch_scc1 L_ym{par}")
        step(a, par, 'yn', resc)
        if par == 1: a("s_branch L_y0")
    for par in range(2):
        a.label(f"L_ym{par}")
        step(a, par, 'ym', resc)
        a(f"s_branch L_y{par^1}")
    for par in range(2):
        a.label(f"L_yl{par}")
        step(a, par, 'yl', resc)
        if par == 0: a("s_branch L_fin")
    a.label("L_fin")
    stamp(a)
    a(f"v_add_f32 v{T+1}, v{LSUM}, v{LSUM+1}")
    a(f"v_add_f32 v{T+2}, v{LSUM+2}, v{LSUM+3}")
    a(f"v_add_f32 v{T+1}, v{T+1}, v{T+2}")
    a(f"v_lshlrev_b32 v{T+4}, 4, v{LANE}")
    a(f"s_lshl_b32 s{S_TMP}, s{S_QY}, 2")
    a(f"s_add_u32 s{S_TMP}, s{S_TMP}, s{S_WAVE}")
    a(f"s_lshl_b32 s{S_TMP}, s{S_TMP}, 18")
    a(f"s_lshl_b32 s{S_TMP2}, s{S_HEAD}, 14")
    a(f"s_add_u32 s{S_TMP}, s{S_TMP}, s{S_TMP2}")
    a(f"s_cmp_lg_u32 s{S_PAR}, 0")
    a("s_cbranch_scc1 L_fin_merge")
    a(f"v_mov_b32 v{T+2}, v{T+1}")
    a("s_nop 1")
    a(f"v_permlane32_swap_b32 v{T+1}, v{T+2}")
    a(f"v_add_f32 v{T+1}, v{T+1}, v{T+2}")
    a(f"v_rcp_f32 v{T+8}, v{T+1}")
    a("s_nop 0")
    a(f"v_mov_b32 v{T+9}, v{T+8}")
    for c in range(16):
        r = O + 8 * c; pr = SA + 4 * c
        for i in range(4): a(f"v_pk_mul_f32 {vr(r+2*i,2)}, {vr(r+2*i,2)}, {vr(T+8,2)}")
        for i in range(4): a(f"v_cvt_pk_bf16_f32 v{pr+i}, v{r+2*i}, v{r+2*i+1}")
        if c and c % 4 == 0: a(f"s_add_u32 s{S_TMP}, s{S_TMP}, 4096")
        a(f"buffer_store_dwordx4 {vr(pr,4)}, v{T+4}, s[{S_C}:{S_C+3}], s{S_TMP} offen offset:{(c%4)*1024} sc1")
    a("s_branch L_fin_done")
    a.label("L_fin_merge")
    a("s_waitcnt vmcnt(0)")
    a(f"v_mov_b32 v{T+6}, v{T+14}\nv_mov_b32 v{T+7}, v{T+15}")
    for i in range(64): a(f"v_accvgpr_read_b32 v{SA+i}, a{160+i}")
    a(f"v_max_f32 v{T+2}, v{MC}, v{T+6}")
    a(f"v_sub_f32 v{T+3}, v{MC}, v{T+2}")
    a(f"v_sub_f32 v{T+5}, v{T+6}, v{T+2}")
    a(f"v_exp_f32 v{T+3}, v{T+3}")
    a(f"v_exp_f32 v{T+5}, v{T+5}")
    a("s_nop 0")
    a(f"v_mul_f32 v{T+1}, v{T+1}, v{T+3}")
    a(f"v_fma_f32 v{T+1}, v{T+7}, v{T+5}, v{T+1}")
    a(f"v_mov_b32 v{T+2}, v{T+1}")
    a("s_nop 1")
    a(f"v_permlane32_swap_b32 v{T+1}, v{T+2}")
    a(f"v_add_f32 v{T+1}, v{T+1}, v{T+2}")
    a(f"v_rcp_f32 v{T+1}, v{T+1}")
    a("s_nop 0")
    a(f"v_mul_f32 v{T+8}, v{T+3}, v{T+1}")
    a(f"v_mul_f32 v{T+10}, v{T+5}, v{T+1}")
    a(f"v_mov_b32 v{T+9}, v{T+8}\nv_mov_b32 v{T+11}, v{T+10}")
    for c in range(16):
        r = O + 8 * c; pr = SA + 4 * c
        u = P + (c % 2) * 8
        for i in range(4):
            a(f"v_lshlrev_b32 v{u+2*i}, 16, v{pr+i}")
            a(f"v_and_b32 v{u+2*i+1}, 0xffff0000, v{pr+i}")
        for i in range(4):
            a(f"v_pk_mul_f32 {vr(r+2*i,2)}, {vr(r+2*i,2)}, {vr(T+8,2)}")
        for i in range(4):
            a(f"v_pk_fma_f32 {vr(r+2*i,2)}, {vr(u+2*i,2)}, {vr(T+10,2)}, {vr(r+2*i,2)}")
        for i in range(4):
            a(f"v_cvt_pk_bf16_f32 v{pr+i}, v{r+2*i}, v{r+2*i+1}")
        if c and c % 4 == 0: a(f"s_add_u32 s{S_TMP}, s{S_TMP}, 4096")
        a(f"buffer_store_dwordx4 {vr(pr,4)}, v{T+4}, s[{S_C}:{S_C+3}], s{S_TMP} offen offset:{(c%4)*1024}" + (" sc1" if int(os.environ.get("SC1", "2")) >= 2 else ""))
    a.label("L_fin_done")
    if STAMPA:
        a("s_waitcnt vmcnt(0)")
        stamp(a)
    a.label("L_attn_end")
    a("s_endpgm")
    for uid in resc: rescale_block(a, uid)
```

```python
from asmlib import *
from k_proj3 import WS_Y2T, WS_UT

HS = 4416
RG = (65536, 131072)
UO = 4 * HS
UPAD = 32 * 80
R0 = 128
T = R0; HA = R0 + 10; UA = R0 + 11; LD = R0 + 12
HO = R0 + 32; UV = R0 + 36
FA = R0 + 44; FB = R0 + 44 + 12
ACC = 64
S1 = 20; S2 = 24; S3 = 28; S4 = 76
ST = 80

def conv_issue(a, LANE):
    srd(a, S1, 82, 0, 448 * 4096)
    srd(a, S2, 4, WS_UT, 448 * 4096)
    srd(a, S4, 84, 0, 896)
    a(f"v_lshlrev_b32 v{T+4}, 4, v0")
    for ch in range(2):
        a(f"s_lshl_b32 s{ST}, s2, 1")
        a(f"s_add_u32 s{ST}, s{ST}, {ch}")
        a(f"s_lshl_b32 s{ST+1}, s{ST}, 12")
        a(f"buffer_load_dwordx4 {vr(LD+10*ch,4)}, v{T+4}, s[{S1}:{S1+3}], s{ST+1} offen")
        a(f"buffer_load_dwordx4 {vr(LD+10*ch+4,4)}, v{T+4}, s[{S2}:{S2+3}], s{ST+1} offen")
        a(f"buffer_load_dword v{LD+10*ch+9}, v{T+4}, s[{S1}:{S1+3}], s{ST+1} offen offset:16")
        a(f"s_lshl_b32 s{ST+1}, s{ST}, 1")
        a(f"v_mov_b32 v{T+5}, s{ST+1}")
        a(f"buffer_load_ushort v{LD+10*ch+8}, v{T+5}, s[{S4}:{S4+3}], 0 offen")

def conv_pre(a, LANE, S_WAVE):
    a(f"v_and_b32 v{T}, 31, v{LANE}")
    a(f"v_lshrrev_b32 v{T+1}, 5, v{LANE}")
    a(f"v_add_u32 v{T+2}, 1, v{T}")
    a(f"v_and_b32 v{T+2}, 3, v{T+2}")
    a(f"v_mul_u32_u24 v{HA}, {HS-2}, v{T+2}")
    a(f"v_lshl_add_u32 v{HA}, v{T}, 1, v{HA}")
    a(f"v_lshlrev_b32 v{T+3}, 4, v{T+1}")
    a(f"v_sub_u32 v{HA}, v{HA}, v{T+3}")
    a(f"s_lshl_b32 s{ST+2}, s{S_WAVE}, 6")
    a(f"s_add_u32 s{ST+2}, s{ST+2}, {RG[0]+114-32}")
    a(f"v_add_u32 v{HA}, s{ST+2}, v{HA}")
    a(f"v_mul_u32_u24 v{UA}, 80, v{T}")
    a(f"v_add_u32 v{UA}, v{UA}, v{T+3}")
    a(f"s_mul_i32 s{ST+2}, s{S_WAVE}, 80")
    a(f"s_sub_u32 s{ST+2}, {RG[0]+UO+UPAD-60*80}, s{ST+2}")
    a(f"v_add_u32 v{UA}, s{ST+2}, v{UA}")
    for i in range(4): a(f"v_mov_b32 v{FA+i}, 0")
    a(f"v_add_u32 v{T+5}, {RG[0]+UO}, v{T+4}")
    a(f"v_add_u32 v{T+6}, {RG[1]+UO}, v{T+4}")
    a("v_cmp_gt_u32 vcc, 160, v0")
    a("s_and_saveexec_b64 s[86:87], vcc")
    a(f"ds_write_b128 v{T+5}, {vr(FA,4)}")
    a(f"ds_write_b128 v{T+6}, {vr(FA,4)}")
    a("s_mov_b64 exec, s[86:87]")
    a(f"v_lshrrev_b32 v{T+6}, 3, v0")
    a(f"v_mul_u32_u24 v{T+8}, {HS}, v{T+6}")
    a(f"v_and_b32 v{T+7}, 7, v0")
    a(f"v_lshl_add_u32 v{T+8}, v{T+7}, 4, v{T+8}")
    a(f"v_add_u32 v{T+5}, {RG[0]}, v{T+8}")
    a(f"v_add_u32 v{T+6}, {RG[1]}, v{T+8}")
    a("v_cmp_gt_u32 vcc, 32, v0")
    a("s_and_saveexec_b64 s[86:87], vcc")
    a(f"ds_write_b128 v{T+5}, {vr(FA,4)}")
    a(f"ds_write_b128 v{T+6}, {vr(FA,4)}")
    a("s_mov_b64 exec, s[86:87]")
    a("s_waitcnt lgkmcnt(0)")
    a("s_barrier")

def conv_run(a, LANE, S_WAVE, nyounger, stamp=lambda a: None):
    srd(a, S3, 4, WS_Y2T, 448 * 4096)
    a(f"s_waitcnt vmcnt({nyounger})")
    stamp(a)
    a(f"v_lshrrev_b32 v{T+7}, 2, v0")
    a(f"v_mul_u32_u24 v{T+7}, 80, v{T+7}")
    a(f"v_and_b32 v{T+6}, 3, v0")
    a(f"v_lshl_add_u32 v{T+7}, v{T+6}, 4, v{T+7}")
    for ch in range(2):
        H = LD + 10 * ch; U = H + 4
        for j in range(3): a(f"v_alignbit_b32 v{HO+j}, v{H+j+1}, v{H+j}, 16")
        a(f"v_alignbit_b32 v{HO+3}, v{H+9}, v{H+3}, 16")
        for c in range(4):
            src = H if c % 2 == 0 else HO
            byte = RG[ch] + c * HS + 128 - 2 * c + (2 if c % 2 else 0)
            a(f"v_add_u32 v{T+8+(c&1)}, {byte}, v{T+4}")
            a(f"ds_write2_b32 v{T+8+(c&1)}, v{src}, v{src+1} offset0:0 offset1:1")
            a(f"ds_write2_b32 v{T+8+(c&1)}, v{src+2}, v{src+3} offset0:2 offset1:3")
        a(f"v_add_u32 v{T+5}, {RG[ch]+UO+UPAD}, v{T+7}")
        a(f"ds_write_b128 v{T+5}, {vr(U,4)}")
        a(f"v_mov_b32 v{T+5}, {RG[ch]}")
        a("v_cmp_eq_u32 vcc, 0, v0")
        a("s_and_saveexec_b64 s[86:87], vcc")
        for c in (1, 3):
            a(f"ds_write_b16 v{T+5}, v{H} offset:{c*HS + 128 - 2*c}")
        a("s_mov_b64 exec, s[86:87]")
    a(f"v_add_u32 v{T+8}, {RG[1]-RG[0]}, v{HA}")
    a(f"v_add_u32 v{T+9}, {RG[1]-RG[0]}, v{UA}")
    a("s_waitcnt lgkmcnt(0)")
    a("s_barrier")
    stamp(a)
    steps = [(ch, i, ks) for ch in range(2) for i in range(16) for ks in range(2)]
    PD = 2; cnt = []
    def issue(n):
        ch, i, ks = steps[n]; st = n % 3
        ha = HA if ch == 0 else T + 8; ua = UA if ch == 0 else T + 9
        o = 256 * i + (32 if ks == 0 else 0)
        a(f"ds_read_b64 {vr(FA+4*st,2)}, v{ha} offset:{o}")
        a(f"ds_read_b64 {vr(FA+4*st+2,2)}, v{ha} offset:{o+8}")
        a(f"ds_read_b128 {vr(FB+8*st+4,4)}, v{ua} offset:{(60-4*i)*80 + 2560 + ks*32}")
        if i < 8: a(f"ds_read_b128 {vr(FB+8*st,4)}, v{ua} offset:{(60-4*i)*80 + ks*32}")
        cnt.append(4 if i < 8 else 3)
    for n in range(PD): issue(n)
    for n in range(64):
        ch, i, ks = steps[n]; st = n % 3
        if n + PD < 64: issue(n + PD)
        a(f"s_waitcnt lgkmcnt({sum(cnt[n+1:])})")
        A1 = ACC + 32 * ch + 16; A0 = ACC + 32 * ch
        first = (n % 32 == 0)
        a(f"v_mfma_f32_32x32x16_bf16 {vr(A1,16)}, {vr(FA+4*st,4)}, {vr(FB+8*st+4,4)}, {'0' if first else vr(A1,16)}")
        if i < 8:
            a(f"v_mfma_f32_32x32x16_bf16 {vr(A0,16)}, {vr(FA+4*st,4)}, {vr(FB+8*st,4)}, {'0' if first else vr(A0,16)}")
    a(f"s_lshr_b32 s{ST+2}, s{S_WAVE}, 1")
    a(f"s_lshl_b32 s{ST+2}, s{ST+2}, 16")
    a(f"s_and_b32 s{ST+3}, s{S_WAVE}, 1")
    a(f"s_mul_i32 s{ST+3}, s{ST+3}, 2560")
    a(f"s_add_u32 s{ST+2}, s{ST+2}, s{ST+3}")
    a(f"s_add_u32 s{ST+2}, s{ST+2}, {RG[0]+UO+UPAD+8}")
    a(f"v_mul_u32_u24 v{T+7}, 80, v{T}")
    a(f"v_lshlrev_b32 v{T+3}, 3, v{T+1}")
    a(f"v_sub_u32 v{T+7}, v{T+7}, v{T+3}")
    a(f"v_add_u32 v{T+7}, s{ST+2}, v{T+7}")
    for q4 in range(4): a(f"ds_read_b64 {vr(UV+2*q4,2)}, v{T+7} offset:{16*q4}")
    a("s_waitcnt lgkmcnt(0)")
    a("s_barrier")
    stamp(a)
    a(f"v_lshlrev_b32 v{T+5}, 4, v{LANE}")
    a(f"s_lshr_b32 s{ST+2}, s{S_WAVE}, 1")
    a(f"s_lshl_b32 s{ST+2}, s{ST+2}, 16")
    a(f"s_and_b32 s{ST+3}, s{S_WAVE}, 1")
    a(f"s_lshl_b32 s{ST+3}, s{ST+3}, 14")
    a(f"s_add_u32 s{ST+2}, s{ST+2}, s{ST+3}")
    a(f"s_add_u32 s{ST+2}, s{ST+2}, {RG[0]}")
    a(f"v_add_u32 v{T+7}, s{ST+2}, v{T+5}")
    for c in range(16): a(f"ds_write_b128 v{T+7}, {vr(ACC+4*c,4)} offset:{c*1024}")
    a("s_waitcnt lgkmcnt(0)")
    a("s_barrier")
    a(f"s_lshl_b32 s{ST+2}, s{S_WAVE}, 12")
    a(f"s_add_u32 s{ST+2}, s{ST+2}, {RG[0]}")
    a(f"v_add_u32 v{T+7}, s{ST+2}, v{T+5}")
    a(f"v_add_u32 v{T+8}, {RG[1]-RG[0]}, v{T+7}")
    for w in range(4):
        for c in range(4): a(f"ds_read_b128 {vr(ACC+16*w+4*c,4)}, v{T+7+(w>>1)} offset:{(w&1)*16384 + c*1024}")
    a(f"s_cmp_ge_u32 s{S_WAVE}, 2")
    a("s_cselect_b64 vcc, -1, 0")
    a(f"v_cndmask_b32 v{T+6}, v{LD+8}, v{LD+18}, vcc")
    a(f"v_lshlrev_b32 v{T+6}, 16, v{T+6}")
    a("s_waitcnt lgkmcnt(0)")
    for i in range(16):
        a(f"v_add_f32 v{ACC+i}, v{ACC+i}, v{ACC+16+i}")
        a(f"v_add_f32 v{ACC+32+i}, v{ACC+32+i}, v{ACC+48+i}")
        a(f"v_add_f32 v{ACC+i}, v{ACC+i}, v{ACC+32+i}")
    X = ACC + 16; OUT = ACC + 24
    for c in range(4):
        for pr in range(2):
            ud = UV + 2 * c + (1 - pr)
            a(f"v_and_b32 v{X}, 0xffff0000, v{ud}")
            a(f"v_lshlrev_b32 v{X+1}, 16, v{ud}")
            a(f"v_mul_f32 v{X}, v{X}, v{T+6}")
            a(f"v_mul_f32 v{X+1}, v{X+1}, v{T+6}")
            a(f"v_cvt_pk_bf16_f32 v{X}, v{X}, v{X+1}")
            a(f"v_cvt_pk_bf16_f32 v{X+2}, v{ACC+4*c+2*pr}, v{ACC+4*c+2*pr+1}")
            a(f"v_lshlrev_b32 v{X+1}, 16, v{X}")
            a(f"v_and_b32 v{X}, 0xffff0000, v{X}")
            a(f"v_lshlrev_b32 v{X+3}, 16, v{X+2}")
            a(f"v_and_b32 v{X+2}, 0xffff0000, v{X+2}")
            a(f"v_add_f32 v{X+1}, v{X+1}, v{X+3}")
            a(f"v_add_f32 v{X}, v{X}, v{X+2}")
            a(f"v_cvt_pk_bf16_f32 v{OUT+2*c+pr}, v{X+1}, v{X}")
    a(f"v_lshlrev_b32 v{T+7}, 6, v{T}")
    a(f"v_lshl_add_u32 v{T+7}, v{T+1}, 3, v{T+7}")
    a(f"s_lshl_b32 s{ST+2}, s2, 13")
    a(f"s_lshl_b32 s{ST+3}, s{S_WAVE}, 11")
    a(f"s_add_u32 s{ST+2}, s{ST+2}, s{ST+3}")
    for c in range(4):
        a(f"buffer_store_dwordx2 {vr(OUT+2*c,2)}, v{T+7}, s[{S3}:{S3+3}], s{ST+2} offen offset:{16*c}")
```

```python
import os
from asmlib import *

WS_Q = 0
WS_K = 16 << 20
WS_VT = 32 << 20
WS_CTX = 48 << 20
WS_Y2T = 64 << 20
WS_UT = WS_Y2T + (2 << 20)
WS_G = WS_Y2T + (4 << 20)
WS_WO = WS_Y2T + (5 << 20)
WS_PART = 76 << 20

V_LANE = 1; V_XOFF = 2; V_WOFF = 4; V_XA = 6; V_WA = 14; V_T = 18; V_FR = 32; V_SD = 80; V_PF = 28; V_ACC = 128
S_X = 8; S_W = 12; S_O = 16
S_WAVE = 30; S_M0X = 31; S_M0W = 32; S_XOFF = 33; S_WOFF = 34; S_TMP = 35; S_OB = 36; S_WS_ = 37; S_WN_ = 38
SC1 = int(os.environ.get("SC1", "2"))
PFD = int(os.environ.get("PFD", "0"))
STAMP = int(os.environ.get("STAMP", "0"))
_stn = [0]
def stamp(a):
    if not STAMP: return
    i = _stn[0]; _stn[0] += 1
    a("s_memtime s[90:91]\ns_memrealtime s[92:93]\ns_waitcnt lgkmcnt(0)\nv_mov_b32 v26, s90\nv_mov_b32 v27, s92")
    a(f"s_lshl_b32 s94, s2, 8\ns_add_u32 s94, s94, {i*8}\nv_mov_b32 v25, s94")
    a(f"s_cmp_lg_u32 s{S_WAVE}, 0\ns_cbranch_scc1 L_st_{i}")
    a("buffer_store_dwordx2 v[26:27], v25, s[96:99], 0 offen")
    a.label(f"L_st_{i}")

class Job:
    def __init__(self, a, TS, KT, ldx, vtype, sx, sw, so):
        self.a = a; self.TS = TS; self.KT = KT; self.ldx = ldx; self.vtype = vtype
        self.SB = TS // 64; self.sx = sx; self.sw = sw; self.so = so
    def setup_dma(self, s_m0, s_n0):
        a = self.a; T = V_T; TS = self.TS; ldx = self.ldx
        a(f"v_lshrrev_b32 v{T}, 3, v{V_LANE}")
        a(f"v_mul_u32_u24 v{T+1}, {ldx}, v{T}")
        a(f"v_lshrrev_b32 v{T+2}, 4, v{V_LANE}")
        a(f"v_and_b32 v{T+3}, 7, v{V_LANE}")
        a(f"v_xor_b32 v{T+4}, v{T+3}, v{T+2}")
        a(f"v_lshl_add_u32 v{V_XOFF}, v{T+4}, 4, v{T+1}")
        a(f"v_xor_b32 v{T+4}, 4, v{T+4}")
        a(f"v_lshl_add_u32 v{V_XOFF+1}, v{T+4}, 4, v{T+1}")
        a(f"s_mul_i32 s{S_M0X}, s{S_WAVE}, {TS//8*128}")
        a(f"s_mul_i32 s{S_XOFF}, s{S_WAVE}, {TS//8}")
        a(f"s_add_u32 s{S_XOFF}, s{S_XOFF}, s{s_m0}")
        a(f"s_mul_i32 s{S_XOFF}, s{S_XOFF}, {ldx}")
        a(f"s_lshl_b32 s{S_WOFF}, s{S_WAVE}, 16")
        a(f"s_add_u32 s{S_WOFF}, s{S_WOFF}, s{s_n0}")
    def dma(self, stage, kt):
        a = self.a
        for j in range(self.TS // 64):
            a(f"s_add_u32 m0, s{S_M0X}, {stage*65536 + j*1024}")
            a(f"s_add_u32 s{S_TMP}, s{S_XOFF}, {kt*128 + j*8*self.ldx}")
            a(f"buffer_load_dwordx4 v{V_XOFF+(j&1)}, s[{self.sx}:{self.sx+3}], s{S_TMP} offen lds")
        for j in range(4):
            a(f"s_add_u32 m0, s{S_M0W}, {stage*65536 + 32768 + j*1024}")
            a(f"s_add_u32 s{S_TMP}, s{S_WOFF}, {(kt*64 + 2*j)*8192}")
            a(f"buffer_load_dwordx4 v{V_WOFF+(j&1)}, s[{self.sw}:{self.sw+3}], s{S_TMP} offen lds")
    def setup_xa(self):
        a = self.a; T = V_T
        a(f"v_and_b32 v{T}, 31, v{V_LANE}")
        a(f"v_lshrrev_b32 v{T+1}, 5, v{V_LANE}")
        a(f"v_bfe_u32 v{T+2}, v{V_LANE}, 1, 3")
        a(f"v_xor_b32 v{T+2}, v{T+2}, v{T+1}")
        a(f"s_mul_i32 s{S_TMP}, s{S_WS_}, {self.TS//2*128}")
        a(f"v_lshlrev_b32 v{T+3}, 7, v{T}")
        a(f"v_add_u32 v{T+3}, s{S_TMP}, v{T+3}")
        a(f"v_lshl_add_u32 v{V_XA}, v{T+2}, 4, v{T+3}")
        for ks in range(1, 4): a(f"v_xor_b32 v{V_XA+ks}, {ks<<5}, v{V_XA}")
        for ks in range(4): a(f"v_add_u32 v{V_XA+4+ks}, 0x10000, v{V_XA+ks}")
    def fx(self, st, sb): return V_FR + st * 24 + sb * 4
    def fw(self, st, nb): return V_FR + st * 24 + 16 + nb * 4
    def acc(self, sb, nb): return V_ACC + (sb * 2 + nb) * 16
    def reads(self, stage, ks, st):
        a = self.a
        for nb in range(2):
            a(f"ds_read_b64_tr_b16 {vr(self.fw(st,nb),2)}, v{V_WA+stage*2+nb} offset:{(16*ks)*512}")
            a(f"ds_read_b64_tr_b16 {vr(self.fw(st,nb)+2,2)}, v{V_WA+stage*2+nb} offset:{(16*ks+4)*512}")
        for sb in range(self.SB):
            a(f"ds_read_b128 {vr(self.fx(st,sb),4)}, v{V_XA+stage*4+ks} offset:{sb*4096}")
    def mfmas(self, st, first):
        a = self.a
        for sb in range(self.SB):
            for nb in range(2):
                c = "0" if first else vr(self.acc(sb, nb), 16)
                A, B = (self.fx(st, sb), self.fw(st, nb)) if self.vtype else (self.fw(st, nb), self.fx(st, sb))
                a(f"v_mfma_f32_32x32x16_bf16 {vr(self.acc(sb,nb),16)}, {vr(A,4)}, {vr(B,4)}, {c}")
    def tile(self, t, wait, do_dma, extras=None, pf=None):
        a = self.a; stg = t & 1
        a(f"s_waitcnt vmcnt({wait})")
        a("s_barrier")
        if not self.vtype and (t % 4 == 0): stamp(a)
        if do_dma: self.dma(stg ^ 1, t + 1)
        if pf is not None:
            a(f"s_add_u32 s{S_TMP}, s{S_XOFF}, {pf*128}")
            a(f"buffer_load_dword v{V_PF+2}, v{V_PF}, s[{self.sx}:{self.sx+3}], s{S_TMP} offen")
            a(f"s_add_u32 s{S_TMP}, s{S_WOFF}, {pf*64*8192}")
            a(f"buffer_load_dword v{V_PF+3}, v{V_PF+1}, s[{self.sw}:{self.sw+3}], s{S_TMP} offen")
        self.reads(stg, 0, 0)
        for ks in range(4):
            if ks < 3:
                self.reads(stg, ks + 1, (ks + 1) & 1)
                a(f"s_waitcnt lgkmcnt({self.SB+4})")
            else:
                a("s_waitcnt lgkmcnt(0)")
            self.mfmas(ks & 1, t == 0 and ks == 0)
            if extras: a(extras.pop(0))
    def epilogue(self, s_ob):
        a = self.a; T = V_T
        a(f"v_lshlrev_b32 v{T}, 4, v{V_LANE}")
        n = 0
        for sb in range(self.SB):
            for nb in range(2):
                for tp in range(2):
                    r = self.acc(sb, nb) + 8 * tp
                    p = V_FR + (n % 8) * 4; n += 1
                    for u in range(4):
                        a(f"v_cvt_pk_bf16_f32 v{p+u}, v{r+2*u}, v{r+2*u+1}")
                    if self.vtype:
                        off = (sb >> 1) * 32768 + (nb * 4 + 2 * (sb & 1) + tp) * 1024
                    else:
                        off = sb * 16384 + (2 * nb + tp) * 1024
                    a(f"s_add_u32 s{S_TMP}, s{s_ob}, {off}")
                    a(f"buffer_store_dwordx4 {vr(p,4)}, v{T}, s[{self.so}:{self.so+3}], s{S_TMP} offen" + (" sc1" if SC1 >= 2 else ""))

def pack_acc(a):
    for p in range(63, -1, -1):
        a(f"v_cvt_pk_bf16_f32 v{V_ACC+64+p}, v{V_ACC+2*p}, v{V_ACC+2*p+1}")
def kv_store_list(vtype, s_ob, so):
    L = []; n = 0
    for sb in range(4):
        for nb in range(2):
            for tp in range(2):
                off = ((sb >> 1) * 32768 + (nb * 4 + 2 * (sb & 1) + tp) * 1024) if vtype else (sb * 16384 + (2 * nb + tp) * 1024)
                L.append(off); n += 1
    return L

def side_issue(a):
    R = V_SD; K = R; V = R + 11; SK = R + 20; GX = R + 24; GW = R + 28; TT = R + 32
    a("s_lshl_b32 s80, s2, 3")
    srd(a, 64, 56, 0, 2048 * 448 * 2)
    srd(a, 68, 58, 0, 2048 * 448 * 2)
    srd(a, 72, 60, 0, 448 * 8)
    srd(a, 76, 62, 0, 448 * 2)
    srd(a, 84, 86, 0, 4096 * 448 * 2)
    srd(a, 44, 4, 0, 2048 * 448 * 2)
    a(f"v_lshlrev_b32 v{TT}, 4, v{V_LANE}")
    a("s_mul_i32 s81, s2, 14336")
    a(f"s_lshl_b32 s82, s{S_WAVE}, 10")
    a("s_add_u32 s81, s81, s82")
    a("s_add_u32 m0, s82, 131072")
    a("s_nop 0")
    a(f"buffer_load_dwordx4 v{TT}, s[84:87], s81 offen lds")
    a(f"s_cmp_ge_u32 s{S_WAVE}, 6")
    a("s_cbranch_scc1 L_sd_now2_" + str(a.uid))
    a("s_add_u32 m0, s82, 139264")
    a("s_add_u32 s81, s81, 8192")
    a(f"buffer_load_dwordx4 v{TT}, s[84:87], s81 offen lds")
    a.label("L_sd_now2_" + str(a.uid))
    a(f"s_add_u32 s81, s80, s{S_WAVE}")
    a("s_mul_i32 s81, s81, 896")
    a(f"v_cmp_gt_u32 vcc, 56, v{V_LANE}")
    a(f"v_mov_b32 v{TT+1}, 0x7f000000")
    a(f"v_cndmask_b32 v{TT+1}, v{TT+1}, v{TT}, vcc")
    a(f"buffer_load_dwordx4 {vr(GX,4)}, v{TT+1}, s[44:47], s81 offen")
    a(f"buffer_load_dwordx4 {vr(GW,4)}, v{TT+1}, s[76:79], 0 offen")
    a("s_mul_i32 s81, s80, 896")
    a("s_sub_u32 s82, s81, 2688")
    a(f"v_lshlrev_b32 v{TT}, 1, v0")
    a(f"v_add_u32 v{TT+1}, s82, v{TT}")
    for j in range(11):
        a(f"buffer_load_ushort v{K+j}, v{TT+1}, s[64:67], 0 offen")
        if j < 10: a(f"v_add_u32 v{TT+1}, 896, v{TT+1}")
    a(f"v_add_u32 v{TT+1}, s81, v{TT}")
    for j in range(8):
        a(f"buffer_load_ushort v{V+j}, v{TT+1}, s[68:71], 0 offen")
        if j < 7: a(f"v_add_u32 v{TT+1}, 896, v{TT+1}")
    a(f"v_lshlrev_b32 v{TT+2}, 3, v0")
    a(f"buffer_load_dwordx2 {vr(SK,2)}, v{TT+2}, s[72:75], 0 offen")
    a.uid += 1

def side_chunks(n):
    b = Asm(); b.uid = 9000
    side_compute(b)
    L = [l.strip() for l in b.lines]
    out = []; per = (len(L) + n - 1) // n; cur = []
    for i, l in enumerate(L):
        cur.append(l)
        nxt = L[i+1] if i + 1 < len(L) else ""
        ok = not (l.startswith(("s_nop", "v_exp", "v_rcp", "v_mov_b32", "ds_", "s_add_u32 s6", "s_addc", "s_mov_b32 s")) or nxt.startswith(("s_nop", "v_permlane", "s_waitcnt")))
        if len(cur) >= per and ok:
            out.append("\n".join(cur)); cur = []
    if cur: out.append("\n".join(cur))
    return out

def side_compute(a):
    R = V_SD; K = R; V = R + 11; SK = R + 20; W = R + 32; GX = R + 24; GW = R + 28; TT = R + 36; A0 = R + 44
    tag = a.uid; a.uid += 1
    srd(a, 64, 26, WS_UT, 448 * 4096)
    srd(a, 68, 26, WS_G, 2048 * 4)
    srd(a, 72, 26, WS_WO, 14 * 256 * 1024)
    a(f"v_lshrrev_b32 v{TT}, 5, v{V_LANE}")
    a(f"v_bfe_u32 v{TT+1}, v{V_LANE}, 2, 2")
    a(f"v_lshl_add_u32 v{TT}, v{TT}, 2, v{TT+1}")
    a(f"v_mul_u32_u24 v{TT}, 896, v{TT}")
    a(f"v_bfe_u32 v{TT+1}, v{V_LANE}, 4, 1")
    a(f"v_lshl_add_u32 v{TT}, v{TT+1}, 5, v{TT}")
    a(f"v_and_b32 v{TT+1}, 3, v{V_LANE}")
    a(f"v_lshl_add_u32 v{TT}, v{TT+1}, 3, v{TT}")
    a(f"s_lshl_b32 s81, s{S_WAVE}, 6")
    a("s_add_u32 s81, s81, 131072")
    a(f"v_add_u32 v{TT}, s81, v{TT}")
    a(f"ds_read_b64_tr_b16 {vr(A0,2)}, v{TT}")
    a(f"ds_read_b64_tr_b16 {vr(A0+2,2)}, v{TT} offset:{8*896}")
    a(f"ds_read_b64_tr_b16 {vr(W,2)}, v{TT} offset:512")
    a(f"ds_read_b64_tr_b16 {vr(W+2,2)}, v{TT} offset:{8*896+512}")
    a(f"v_lshlrev_b32 v{TT+1}, 4, v{V_LANE}")
    a(f"s_lshl_b32 s81, s{S_WAVE}, 18")
    a("s_lshl_b32 s82, s2, 10")
    a("s_add_u32 s81, s81, s82")
    a("s_waitcnt lgkmcnt(0)")
    a(f"buffer_store_dwordx4 {vr(A0,4)}, v{TT+1}, s[72:75], s81 offen")
    a(f"s_add_u32 s81, s81, {8<<18}")
    a(f"buffer_store_dwordx4 {vr(W,4)}, v{TT+1}, s[72:75], s81 offen")
    a(f"v_mov_b32 v{TT+3}, 0")
    for j in range(4):
        a(f"v_lshlrev_b32 v{TT+4}, 16, v{GX+j}")
        a(f"v_lshlrev_b32 v{TT+5}, 16, v{GW+j}")
        a(f"v_and_b32 v{TT+6}, 0xffff0000, v{GX+j}")
        a(f"v_and_b32 v{TT+7}, 0xffff0000, v{GW+j}")
        a(f"v_mul_f32 v{TT+4}, v{TT+4}, v{TT+5}")
        a(f"v_mul_f32 v{TT+6}, v{TT+6}, v{TT+7}")
        a(f"v_cvt_pk_bf16_f32 v{TT+4}, v{TT+4}, v{TT+6}")
        a(f"v_lshlrev_b32 v{TT+5}, 16, v{TT+4}")
        a(f"v_and_b32 v{TT+6}, 0xffff0000, v{TT+4}")
        a(f"v_add_f32 v{TT+3}, v{TT+3}, v{TT+5}")
        a(f"v_add_f32 v{TT+3}, v{TT+3}, v{TT+6}")
    for off in (0x041F, 0x081F, 0x101F, 0x201F, 0x401F):
        a(f"ds_swizzle_b32 v{TT+4}, v{TT+3} offset:{off}")
        a("s_waitcnt lgkmcnt(0)")
        a(f"v_add_f32 v{TT+3}, v{TT+3}, v{TT+4}")
    a(f"v_mov_b32 v{TT+4}, v{TT+3}")
    a("s_nop 1")
    a(f"v_permlane32_swap_b32 v{TT+3}, v{TT+4}")
    a(f"v_add_f32 v{TT+3}, v{TT+3}, v{TT+4}")
    a(f"v_cvt_pk_bf16_f32 v{TT+3}, v{TT+3}, v{TT+3}")
    a(f"v_lshlrev_b32 v{TT+3}, 16, v{TT+3}")
    a(f"v_mul_f32 v{TT+3}, 0xbfb8aa3b, v{TT+3}")
    a(f"v_exp_f32 v{TT+3}, v{TT+3}")
    a("s_nop 0")
    a(f"v_add_f32 v{TT+3}, 1.0, v{TT+3}")
    a(f"v_rcp_f32 v{TT+3}, v{TT+3}")
    a("s_nop 0")
    a(f"v_cvt_pk_bf16_f32 v{TT+3}, v{TT+3}, v{TT+3}")
    a(f"v_lshlrev_b32 v{TT+3}, 16, v{TT+3}")
    a(f"s_add_u32 s81, s80, s{S_WAVE}")
    a("s_lshl_b32 s81, s81, 2")
    a(f"v_mov_b32 v{TT+4}, s81")
    a(f"buffer_store_dword v{TT+3}, v{TT+4}, s[68:71], 0 offen")
    for j in range(11): a(f"v_lshlrev_b32 v{K+j}, 16, v{K+j}")
    for j in range(8): a(f"v_lshlrev_b32 v{V+j}, 16, v{V+j}")
    a("s_nop 0")
    a(f"v_lshlrev_b32 v{W}, 16, v{SK}")
    a(f"v_and_b32 v{W+1}, 0xffff0000, v{SK}")
    a(f"v_lshlrev_b32 v{W+2}, 16, v{SK+1}")
    a(f"v_and_b32 v{W+3}, 0xffff0000, v{SK+1}")
    for i in range(0, 8, 2):
        p0, p1, pk, c0, c1 = TT, TT + 1, TT + 2, TT + 3, TT + 4
        a(f"v_mul_f32 v{p0}, v{K+i}, v{W+3}")
        a(f"v_mul_f32 v{p1}, v{K+i+1}, v{W+3}")
        a(f"v_cvt_pk_bf16_f32 v{pk}, v{p0}, v{p1}")
        a(f"v_lshlrev_b32 v{c0}, 16, v{pk}")
        a(f"v_and_b32 v{c1}, 0xffff0000, v{pk}")
        for off, w in ((1, 2), (2, 1), (3, 0)):
            a(f"v_mul_f32 v{p0}, v{K+i+off}, v{W+w}")
            a(f"v_mul_f32 v{p1}, v{K+i+1+off}, v{W+w}")
            a(f"v_cvt_pk_bf16_f32 v{pk}, v{p0}, v{p1}")
            a(f"v_lshlrev_b32 v{p0}, 16, v{pk}")
            a(f"v_and_b32 v{p1}, 0xffff0000, v{pk}")
            a(f"v_add_f32 v{c0}, v{c0}, v{p0}")
            a(f"v_add_f32 v{c1}, v{c1}, v{p1}")
            a(f"v_cvt_pk_bf16_f32 v{pk}, v{c0}, v{c1}")
            a(f"v_lshlrev_b32 v{c0}, 16, v{pk}")
            a(f"v_and_b32 v{c1}, 0xffff0000, v{pk}")
        a(f"v_mul_f32 v{c0}, v{c0}, v{V+i}")
        a(f"v_mul_f32 v{c1}, v{c1}, v{V+i+1}")
        a(f"v_cvt_pk_bf16_f32 v{A0+3-i//2}, v{c1}, v{c0}")
    a(f"v_lshlrev_b32 v{TT+1}, 12, v0")
    a("s_lshl_b32 s81, s80, 1")
    a(f"buffer_store_dwordx4 {vr(A0,4)}, v{TT+1}, s[64:67], s81 offen")

def gen_proj(a, name="proj_kernel"):
    T = V_T
    a.raw(f".globl {name}\n.p2align 8\n.type {name},@function\n{name}:")
    a("s_cmp_ge_u32 s2, 256")
    a("s_cbranch_scc1 L_proj_end")
    a("s_load_dwordx2 s[4:5], s[0:1], 0")
    a("s_load_dwordx2 s[6:7], s[0:1], 56")
    a("s_load_dwordx2 s[20:21], s[0:1], 64")
    a("s_load_dwordx2 s[22:23], s[0:1], 72")
    a("s_load_dwordx2 s[24:25], s[0:1], 80")
    a("s_load_dwordx2 s[26:27], s[0:1], 120")
    a("s_load_dwordx2 s[56:57], s[0:1], 8")
    a("s_load_dwordx2 s[58:59], s[0:1], 16")
    a("s_load_dwordx2 s[60:61], s[0:1], 24")
    a("s_load_dwordx2 s[62:63], s[0:1], 96")
    a("s_load_dwordx2 s[86:87], s[0:1], 88")
    a(f"v_lshrrev_b32 v{T}, 6, v0")
    a(f"v_and_b32 v{V_LANE}, 63, v0")
    a(f"v_readfirstlane_b32 s{S_WAVE}, v{T}")
    a("s_nop 3")
    a(f"s_lshr_b32 s{S_WS_}, s{S_WAVE}, 2")
    a(f"s_and_b32 s{S_WN_}, s{S_WAVE}, 3")
    a(f"s_lshl_b32 s{S_M0W}, s{S_WAVE}, 12")
    a("s_and_b32 s48, s2, 7")
    a("s_lshr_b32 s49, s2, 3")
    a("s_and_b32 s50, s49, 3")
    a("s_lshl_b32 s51, s48, 2")
    a("s_add_u32 s50, s50, s51")
    a("s_lshr_b32 s51, s49, 2")
    a("s_lshl_b32 s40, s51, 8")
    a("s_and_b32 s52, s50, 15")
    a("s_lshl_b32 s41, s52, 9")
    a(f"v_lshrrev_b32 v{T}, 5, v{V_LANE}")
    a(f"v_and_b32 v{T+1}, 31, v{V_LANE}")
    a(f"v_lshlrev_b32 v{T+2}, 2, v{T}")
    a(f"v_xor_b32 v{T+1}, v{T+1}, v{T+2}")
    a(f"v_lshlrev_b32 v{T+3}, 13, v{T}")
    a(f"v_lshl_add_u32 v{V_WOFF}, v{T+1}, 4, v{T+3}")
    a(f"v_xor_b32 v{T+1}, 8, v{T+1}")
    a(f"v_lshl_add_u32 v{V_WOFF+1}, v{T+1}, 4, v{T+3}")
    a(f"v_lshrrev_b32 v{T+1}, 5, v{V_LANE}")
    a(f"v_bfe_u32 v{T}, v{V_LANE}, 2, 2")
    a(f"v_lshl_add_u32 v{T+2}, v{T+1}, 3, v{T}")
    a(f"v_lshlrev_b32 v{T+2}, 9, v{T+2}")
    a(f"v_bfe_u32 v{T+3}, v{V_LANE}, 4, 1")
    a(f"v_lshl_add_u32 v{T+2}, v{T+3}, 5, v{T+2}")
    a(f"v_bfe_u32 v{T+3}, v{V_LANE}, 1, 1")
    a(f"v_lshl_add_u32 v{T+2}, v{T+3}, 4, v{T+2}")
    a(f"v_and_b32 v{T+3}, 1, v{V_LANE}")
    a(f"v_lshl_add_u32 v{T+2}, v{T+3}, 3, v{T+2}")
    a(f"v_add_u32 v{T+2}, 0x8000, v{T+2}")
    for nb in range(2):
        a(f"s_lshl_b32 s{S_TMP}, s{S_WN_}, 1")
        a(f"s_add_u32 s{S_TMP}, s{S_TMP}, {nb}")
        a(f"v_xor_b32 v{T+3}, s{S_TMP}, v{T}")
        a(f"v_lshl_add_u32 v{V_WA+nb}, v{T+3}, 6, v{T+2}")
        a(f"v_add_u32 v{V_WA+2+nb}, 0x10000, v{V_WA+nb}")
    a("s_waitcnt lgkmcnt(0)")
    if STAMP: srd(a, 96, 26, 200 << 20, 1 << 20)
    stamp(a)
    srd(a, S_X, 6, 0, 2048 * 1024 * 2)
    a("s_and_b32 s53, s49, 1")
    a("s_lshl_b32 s54, s48, 1")
    a("s_add_u32 s53, s53, s54")
    a("s_lshr_b32 s54, s49, 1")
    a("s_lshl_b32 s54, s54, 7")
    a("s_lshl_b32 s55, s53, 9")
    jq = Job(a, 128, 7, 896, False, S_X, S_W, S_O)
    def q_prefetch():
        srd(a, S_X, 4, 0, 2048 * 448 * 2)
        srd(a, S_W, 20, 0, 448 * 4096 * 2)
        jq.setup_dma(54, 55)
        jq.dma(0, 0); jq.dma(1, 1)
    a("s_cmp_ge_u32 s50, 16")
    a("s_cbranch_scc1 L_proj_v")
    for vtype in (False, True):
        if vtype: a.label("L_proj_v")
        srd(a, S_W, 24 if vtype else 22, 0, 1024 * 4096 * 2)
        srd(a, S_O, 26, WS_VT if vtype else WS_K, 16 << 20)
        j = Job(a, 256, 16, 2048, vtype, S_X, S_W, S_O)
        j.setup_dma(40, 41)
        j.dma(0, 0)
        side_issue(a)
        j.setup_xa()
        a(f"v_and_b32 v{V_PF}, 31, v{V_LANE}")
        a(f"v_lshlrev_b32 v{V_PF}, 11, v{V_PF}")
        a(f"v_bfe_u32 v{V_PF+1}, v{V_LANE}, 2, 3")
        a(f"v_lshlrev_b32 v{V_PF+1}, 13, v{V_PF+1}")
        a(f"v_and_b32 v{T}, 3, v{V_LANE}")
        a(f"v_lshl_add_u32 v{V_PF+1}, v{T}, 7, v{V_PF+1}")
        if PFD:
            for pf in range(1, PFD):
                a(f"s_add_u32 s{S_TMP}, s{S_XOFF}, {pf*128}")
                a(f"buffer_load_dword v{V_PF+2}, v{V_PF}, s[{S_X}:{S_X+3}], s{S_TMP} offen")
                a(f"s_add_u32 s{S_TMP}, s{S_WOFF}, {pf*64*8192}")
                a(f"buffer_load_dword v{V_PF+3}, v{V_PF+1}, s[{S_W}:{S_W+3}], s{S_TMP} offen")
        ch = side_chunks(28)
        for t in range(16):
            pf = t + PFD if (PFD and t + PFD < 16) else None
            prev_pf = PFD and ((t - 1 + PFD < 16 and t > 0) or t == 0)
            w = (2 * (PFD - 1) if t == 0 else 2) if prev_pf else 0
            j.tile(t, w, t + 1 < 16, extras=ch, pf=pf)
        assert not ch
        a("s_barrier")
        if not vtype: stamp(a)
        q_prefetch()
        a("s_lshl_b32 s42, s52, 20")
        a(f"s_lshl_b32 s{S_TMP}, s{S_WS_}, 7")
        a(f"s_add_u32 s{S_TMP}, s{S_TMP}, s40")
        a(f"s_lshl_b32 s{S_TMP}, s{S_TMP}, 9")
        a(f"s_add_u32 s42, s42, s{S_TMP}")
        a(f"s_lshl_b32 s{S_TMP}, s{S_WN_}, {13 if vtype else 12}")
        a(f"s_add_u32 s42, s42, s{S_TMP}")
        for n, off in enumerate(kv_store_list(vtype, 42, S_O)):
            a(f"s_add_u32 s{56+n}, s42, {off}")
        pack_acc(a)
        if not vtype: a("s_branch L_proj_q")
    a.label("L_proj_q")
    stamp(a)
    jq.setup_xa()
    a(f"v_lshlrev_b32 v{V_PF}, 4, v{V_LANE}")
    st = [f"buffer_store_dwordx4 {vr(V_ACC+64+4*n,4)}, v{V_PF}, s[{S_O}:{S_O+3}], s{56+n} offen" + (" sc1" if SC1 else "") for n in range(16)]
    plan = [3, 3, 3, 3, 2, 2, 0]
    prev = 0
    for t in range(7):
        ex = []
        for ks in range(4):
            ex.append(st.pop(0) if ks < plan[t] else "s_nop 0")
        jq.tile(t, 6 if t == 0 else prev, 1 <= t < 6, extras=ex)
        prev = plan[t]
    srd(a, S_O, 26, WS_Q, 16 << 20)
    a("s_lshl_b32 s42, s53, 20")
    a(f"s_lshl_b32 s{S_TMP}, s{S_WS_}, 6")
    a(f"s_add_u32 s{S_TMP}, s{S_TMP}, s54")
    a(f"s_lshl_b32 s{S_TMP}, s{S_TMP}, 9")
    a(f"s_add_u32 s42, s42, s{S_TMP}")
    a(f"s_lshl_b32 s{S_TMP}, s{S_WN_}, 12")
    a(f"s_add_u32 s42, s42, s{S_TMP}")
    a("s_nop 7")
    stamp(a)
    jq.epilogue(42)
    if STAMP:
        a("s_waitcnt vmcnt(0)")
        stamp(a)
    a.label("L_proj_end")
    a("s_endpgm")
```

```python
import os
from asmlib import *

WS_Q = 0
WS_K = 16 << 20
WS_VT = 32 << 20
WS_CTX = 48 << 20
WS_Y2T = 64 << 20
WS_UT = WS_Y2T + (2 << 20)
WS_G = WS_Y2T + (4 << 20)
WS_WO = WS_Y2T + (5 << 20)
WS_PART = 76 << 20

V_LANE = 1; V_XOFF = 2; V_WOFF = 4; V_XA = 6; V_WA = 14; V_T = 18; V_FR = 32; V_SD = 80; V_PF = 28; V_ACC = 128
S_X = 8; S_W = 12; S_O = 16
S_WAVE = 30; S_M0X = 31; S_M0W = 32; S_XOFF = 33; S_WOFF = 34; S_TMP = 35; S_OB = 36; S_WS_ = 37; S_WN_ = 38
SC1 = int(os.environ.get("SC1", "2"))
QPF = int(os.environ.get("QPF", "10"))
PFD = int(os.environ.get("PFD", "0"))
STAMP = int(os.environ.get("STAMP", "0"))
_stn = [0]
def stamp(a):
    if not STAMP: return
    i = _stn[0]; _stn[0] += 1
    a("s_memtime s[90:91]\ns_memrealtime s[92:93]\ns_waitcnt lgkmcnt(0)\nv_mov_b32 v26, s90\nv_mov_b32 v27, s92")
    a(f"s_lshl_b32 s94, s2, 8\ns_add_u32 s94, s94, {i*8}\nv_mov_b32 v25, s94")
    a(f"s_cmp_lg_u32 s{S_WAVE}, 0\ns_cbranch_scc1 L_st_{i}")
    a("buffer_store_dwordx2 v[26:27], v25, s[96:99], 0 offen")
    a.label(f"L_st_{i}")

class Job:
    def __init__(self, a, TS, KT, ldx, vtype, sx, sw, so):
        self.a = a; self.TS = TS; self.KT = KT; self.ldx = ldx; self.vtype = vtype
        self.SB = TS // 64; self.sx = sx; self.sw = sw; self.so = so
    def setup_dma(self, s_m0, s_n0):
        a = self.a; T = V_T; TS = self.TS; ldx = self.ldx
        a(f"v_lshrrev_b32 v{T}, 3, v{V_LANE}")
        a(f"v_mul_u32_u24 v{T+1}, {ldx}, v{T}")
        a(f"v_lshrrev_b32 v{T+2}, 4, v{V_LANE}")
        a(f"v_and_b32 v{T+3}, 7, v{V_LANE}")
        a(f"v_xor_b32 v{T+4}, v{T+3}, v{T+2}")
        a(f"v_lshl_add_u32 v{V_XOFF}, v{T+4}, 4, v{T+1}")
        a(f"v_xor_b32 v{T+4}, 4, v{T+4}")
        a(f"v_lshl_add_u32 v{V_XOFF+1}, v{T+4}, 4, v{T+1}")
        a(f"s_mul_i32 s{S_M0X}, s{S_WAVE}, {TS//8*128}")
        a(f"s_mul_i32 s{S_XOFF}, s{S_WAVE}, {TS//8}")
        a(f"s_add_u32 s{S_XOFF}, s{S_XOFF}, s{s_m0}")
        a(f"s_mul_i32 s{S_XOFF}, s{S_XOFF}, {ldx}")
        a(f"s_lshl_b32 s{S_WOFF}, s{S_WAVE}, 16")
        a(f"s_add_u32 s{S_WOFF}, s{S_WOFF}, s{s_n0}")
    def dma(self, stage, kt):
        a = self.a
        for j in range(self.TS // 64):
            a(f"s_add_u32 m0, s{S_M0X}, {stage*65536 + j*1024}")
            a(f"s_add_u32 s{S_TMP}, s{S_XOFF}, {kt*128 + j*8*self.ldx}")
            a(f"buffer_load_dwordx4 v{V_XOFF+(j&1)}, s[{self.sx}:{self.sx+3}], s{S_TMP} offen lds")
        for j in range(4):
            a(f"s_add_u32 m0, s{S_M0W}, {stage*65536 + 32768 + j*1024}")
            a(f"s_add_u32 s{S_TMP}, s{S_WOFF}, {(kt*64 + 2*j)*8192}")
            a(f"buffer_load_dwordx4 v{V_WOFF+(j&1)}, s[{self.sw}:{self.sw+3}], s{S_TMP} offen lds")
    def setup_xa(self):
        a = self.a; T = V_T
        a(f"v_and_b32 v{T}, 31, v{V_LANE}")
        a(f"v_lshrrev_b32 v{T+1}, 5, v{V_LANE}")
        a(f"v_bfe_u32 v{T+2}, v{V_LANE}, 1, 3")
        a(f"v_xor_b32 v{T+2}, v{T+2}, v{T+1}")
        a(f"s_mul_i32 s{S_TMP}, s{S_WS_}, {self.TS//2*128}")
        a(f"v_lshlrev_b32 v{T+3}, 7, v{T}")
        a(f"v_add_u32 v{T+3}, s{S_TMP}, v{T+3}")
        a(f"v_lshl_add_u32 v{V_XA}, v{T+2}, 4, v{T+3}")
        for ks in range(1, 4): a(f"v_xor_b32 v{V_XA+ks}, {ks<<5}, v{V_XA}")
        for ks in range(4): a(f"v_add_u32 v{V_XA+4+ks}, 0x10000, v{V_XA+ks}")
    def fx(self, st, sb): return V_FR + st * 24 + sb * 4
    def fw(self, st, nb): return V_FR + st * 24 + 16 + nb * 4
    def acc(self, sb, nb): return V_ACC + (sb * 2 + nb) * 16
    def reads(self, stage, ks, st):
        a = self.a
        for nb in range(2):
            a(f"ds_read_b64_tr_b16 {vr(self.fw(st,nb),2)}, v{V_WA+stage*2+nb} offset:{(16*ks)*512}")
            a(f"ds_read_b64_tr_b16 {vr(self.fw(st,nb)+2,2)}, v{V_WA+stage*2+nb} offset:{(16*ks+4)*512}")
        for sb in range(self.SB):
            a(f"ds_read_b128 {vr(self.fx(st,sb),4)}, v{V_XA+stage*4+ks} offset:{sb*4096}")
    def mfmas(self, st, first):
        a = self.a
        for sb in range(self.SB):
            for nb in range(2):
                c = "0" if first else vr(self.acc(sb, nb), 16)
                A, B = (self.fx(st, sb), self.fw(st, nb)) if self.vtype else (self.fw(st, nb), self.fx(st, sb))
                a(f"v_mfma_f32_32x32x16_bf16 {vr(self.acc(sb,nb),16)}, {vr(A,4)}, {vr(B,4)}, {c}")
    def tile(self, t, wait, do_dma, extras=None, pf=None, post_dma=None):
        a = self.a; stg = t & 1
        a(f"s_waitcnt vmcnt({wait})")
        a("s_barrier")
        if not self.vtype and (t % 4 == 0): stamp(a)
        if do_dma: self.dma(stg ^ 1, t + 1)
        if pf is not None:
            a(f"s_add_u32 s{S_TMP}, s{S_XOFF}, {pf*128}")
            a(f"buffer_load_dword v{V_PF+2}, v{V_PF}, s[{self.sx}:{self.sx+3}], s{S_TMP} offen")
            a(f"s_add_u32 s{S_TMP}, s{S_WOFF}, {pf*64*8192}")
            a(f"buffer_load_dword v{V_PF+3}, v{V_PF+1}, s[{self.sw}:{self.sw+3}], s{S_TMP} offen")
        if post_dma: post_dma()
        self.reads(stg, 0, 0)
        for ks in range(4):
            if ks < 3:
                self.reads(stg, ks + 1, (ks + 1) & 1)
                a(f"s_waitcnt lgkmcnt({self.SB+4})")
            else:
                a("s_waitcnt lgkmcnt(0)")
            self.mfmas(ks & 1, t == 0 and ks == 0)
            if extras: a(extras.pop(0))
    def epilogue(self, s_ob):
        a = self.a; T = V_T
        a(f"v_lshlrev_b32 v{T}, 4, v{V_LANE}")
        n = 0
        for sb in range(self.SB):
            for nb in range(2):
                for tp in range(2):
                    r = self.acc(sb, nb) + 8 * tp
                    p = V_FR + (n % 8) * 4; n += 1
                    for u in range(4):
                        a(f"v_cvt_pk_bf16_f32 v{p+u}, v{r+2*u}, v{r+2*u+1}")
                    if self.vtype:
                        off = (sb >> 1) * 32768 + (nb * 4 + 2 * (sb & 1) + tp) * 1024
                    else:
                        off = sb * 16384 + (2 * nb + tp) * 1024
                    a(f"s_add_u32 s{S_TMP}, s{s_ob}, {off}")
                    a(f"buffer_store_dwordx4 {vr(p,4)}, v{T}, s[{self.so}:{self.so+3}], s{S_TMP} offen" + (" sc1" if SC1 >= 2 else ""))

def pack_acc(a):
    for p in range(63, -1, -1):
        a(f"v_cvt_pk_bf16_f32 v{V_ACC+64+p}, v{V_ACC+2*p}, v{V_ACC+2*p+1}")
def kv_store_list(vtype, s_ob, so):
    L = []; n = 0
    for sb in range(4):
        for nb in range(2):
            for tp in range(2):
                off = ((sb >> 1) * 32768 + (nb * 4 + 2 * (sb & 1) + tp) * 1024) if vtype else (sb * 16384 + (2 * nb + tp) * 1024)
                L.append(off); n += 1
    return L

def side_issue(a):
    R = V_SD; K = R; V = R + 11; SK = R + 20; GX = R + 24; GW = R + 28; TT = R + 32
    a("s_lshl_b32 s80, s2, 3")
    srd(a, 64, 56, 0, 2048 * 448 * 2)
    srd(a, 68, 58, 0, 2048 * 448 * 2)
    srd(a, 72, 60, 0, 448 * 8)
    srd(a, 76, 62, 0, 448 * 2)
    srd(a, 84, 86, 0, 4096 * 448 * 2)
    srd(a, 44, 4, 0, 2048 * 448 * 2)
    a(f"v_lshlrev_b32 v{TT}, 4, v{V_LANE}")
    a("s_mul_i32 s81, s2, 14336")
    a(f"s_lshl_b32 s82, s{S_WAVE}, 10")
    a("s_add_u32 s81, s81, s82")
    a("s_add_u32 m0, s82, 131072")
    a("s_nop 0")
    a(f"buffer_load_dwordx4 v{TT}, s[84:87], s81 offen lds")
    a(f"s_cmp_ge_u32 s{S_WAVE}, 6")
    a("s_cbranch_scc1 L_sd_now2_" + str(a.uid))
    a("s_add_u32 m0, s82, 139264")
    a("s_add_u32 s81, s81, 8192")
    a(f"buffer_load_dwordx4 v{TT}, s[84:87], s81 offen lds")
    a.label("L_sd_now2_" + str(a.uid))
    a(f"s_add_u32 s81, s80, s{S_WAVE}")
    a("s_mul_i32 s81, s81, 896")
    a(f"v_cmp_gt_u32 vcc, 56, v{V_LANE}")
    a(f"v_mov_b32 v{TT+1}, 0x7f000000")
    a(f"v_cndmask_b32 v{TT+1}, v{TT+1}, v{TT}, vcc")
    a(f"buffer_load_dwordx4 {vr(GX,4)}, v{TT+1}, s[44:47], s81 offen")
    a(f"buffer_load_dwordx4 {vr(GW,4)}, v{TT+1}, s[76:79], 0 offen")
    a("s_mul_i32 s81, s80, 896")
    a("s_sub_u32 s82, s81, 2688")
    a(f"v_lshlrev_b32 v{TT}, 1, v0")
    a(f"v_add_u32 v{TT+1}, s82, v{TT}")
    for j in range(11):
        a(f"buffer_load_ushort v{K+j}, v{TT+1}, s[64:67], 0 offen")
        if j < 10: a(f"v_add_u32 v{TT+1}, 896, v{TT+1}")
    a(f"v_add_u32 v{TT+1}, s81, v{TT}")
    for j in range(8):
        a(f"buffer_load_ushort v{V+j}, v{TT+1}, s[68:71], 0 offen")
        if j < 7: a(f"v_add_u32 v{TT+1}, 896, v{TT+1}")
    a(f"v_lshlrev_b32 v{TT+2}, 3, v0")
    a(f"buffer_load_dwordx2 {vr(SK,2)}, v{TT+2}, s[72:75], 0 offen")
    a.uid += 1

def side_chunks(n):
    b = Asm(); b.uid = 9000
    side_compute(b)
    L = [l.strip() for l in b.lines]
    out = []; per = (len(L) + n - 1) // n; cur = []
    for i, l in enumerate(L):
        cur.append(l)
        nxt = L[i+1] if i + 1 < len(L) else ""
        ok = not (l.startswith(("s_nop", "v_exp", "v_rcp", "v_mov_b32", "ds_", "s_add_u32 s6", "s_addc", "s_mov_b32 s")) or nxt.startswith(("s_nop", "v_permlane", "s_waitcnt")))
        if len(cur) >= per and ok:
            out.append("\n".join(cur)); cur = []
    if cur: out.append("\n".join(cur))
    return out

def side_compute(a):
    R = V_SD; K = R; V = R + 11; SK = R + 20; W = R + 32; GX = R + 24; GW = R + 28; TT = R + 36; A0 = R + 44
    tag = a.uid; a.uid += 1
    srd(a, 64, 26, WS_UT, 448 * 4096)
    srd(a, 68, 26, WS_G, 2048 * 4)
    srd(a, 72, 26, WS_WO, 14 * 256 * 1024)
    a(f"v_lshrrev_b32 v{TT}, 5, v{V_LANE}")
    a(f"v_bfe_u32 v{TT+1}, v{V_LANE}, 2, 2")
    a(f"v_lshl_add_u32 v{TT}, v{TT}, 2, v{TT+1}")
    a(f"v_mul_u32_u24 v{TT}, 896, v{TT}")
    a(f"v_bfe_u32 v{TT+1}, v{V_LANE}, 4, 1")
    a(f"v_lshl_add_u32 v{TT}, v{TT+1}, 5, v{TT}")
    a(f"v_and_b32 v{TT+1}, 3, v{V_LANE}")
    a(f"v_lshl_add_u32 v{TT}, v{TT+1}, 3, v{TT}")
    a(f"s_lshl_b32 s81, s{S_WAVE}, 6")
    a("s_add_u32 s81, s81, 131072")
    a(f"v_add_u32 v{TT}, s81, v{TT}")
    a(f"ds_read_b64_tr_b16 {vr(A0,2)}, v{TT}")
    a(f"ds_read_b64_tr_b16 {vr(A0+2,2)}, v{TT} offset:{8*896}")
    a(f"ds_read_b64_tr_b16 {vr(W,2)}, v{TT} offset:512")
    a(f"ds_read_b64_tr_b16 {vr(W+2,2)}, v{TT} offset:{8*896+512}")
    a(f"v_lshlrev_b32 v{TT+1}, 4, v{V_LANE}")
    a(f"s_lshl_b32 s81, s{S_WAVE}, 18")
    a("s_lshl_b32 s82, s2, 10")
    a("s_add_u32 s81, s81, s82")
    a("s_waitcnt lgkmcnt(0)")
    a(f"buffer_store_dwordx4 {vr(A0,4)}, v{TT+1}, s[72:75], s81 offen")
    a(f"s_add_u32 s81, s81, {8<<18}")
    a(f"buffer_store_dwordx4 {vr(W,4)}, v{TT+1}, s[72:75], s81 offen")
    a(f"v_mov_b32 v{TT+3}, 0")
    for j in range(4):
        a(f"v_lshlrev_b32 v{TT+4}, 16, v{GX+j}")
        a(f"v_lshlrev_b32 v{TT+5}, 16, v{GW+j}")
        a(f"v_and_b32 v{TT+6}, 0xffff0000, v{GX+j}")
        a(f"v_and_b32 v{TT+7}, 0xffff0000, v{GW+j}")
        a(f"v_mul_f32 v{TT+4}, v{TT+4}, v{TT+5}")
        a(f"v_mul_f32 v{TT+6}, v{TT+6}, v{TT+7}")
        a(f"v_cvt_pk_bf16_f32 v{TT+4}, v{TT+4}, v{TT+6}")
        a(f"v_lshlrev_b32 v{TT+5}, 16, v{TT+4}")
        a(f"v_and_b32 v{TT+6}, 0xffff0000, v{TT+4}")
        a(f"v_add_f32 v{TT+3}, v{TT+3}, v{TT+5}")
        a(f"v_add_f32 v{TT+3}, v{TT+3}, v{TT+6}")
    for off in (0x041F, 0x081F, 0x101F, 0x201F, 0x401F):
        a(f"ds_swizzle_b32 v{TT+4}, v{TT+3} offset:{off}")
        a("s_waitcnt lgkmcnt(0)")
        a(f"v_add_f32 v{TT+3}, v{TT+3}, v{TT+4}")
    a(f"v_mov_b32 v{TT+4}, v{TT+3}")
    a("s_nop 1")
    a(f"v_permlane32_swap_b32 v{TT+3}, v{TT+4}")
    a(f"v_add_f32 v{TT+3}, v{TT+3}, v{TT+4}")
    a(f"v_cvt_pk_bf16_f32 v{TT+3}, v{TT+3}, v{TT+3}")
    a(f"v_lshlrev_b32 v{TT+3}, 16, v{TT+3}")
    a(f"v_mul_f32 v{TT+3}, 0xbfb8aa3b, v{TT+3}")
    a(f"v_exp_f32 v{TT+3}, v{TT+3}")
    a("s_nop 0")
    a(f"v_add_f32 v{TT+3}, 1.0, v{TT+3}")
    a(f"v_rcp_f32 v{TT+3}, v{TT+3}")
    a("s_nop 0")
    a(f"v_cvt_pk_bf16_f32 v{TT+3}, v{TT+3}, v{TT+3}")
    a(f"v_lshlrev_b32 v{TT+3}, 16, v{TT+3}")
    a(f"s_add_u32 s81, s80, s{S_WAVE}")
    a("s_lshl_b32 s81, s81, 2")
    a(f"v_mov_b32 v{TT+4}, s81")
    a(f"buffer_store_dword v{TT+3}, v{TT+4}, s[68:71], 0 offen")
    for j in range(11): a(f"v_lshlrev_b32 v{K+j}, 16, v{K+j}")
    for j in range(8): a(f"v_lshlrev_b32 v{V+j}, 16, v{V+j}")
    a("s_nop 0")
    a(f"v_lshlrev_b32 v{W}, 16, v{SK}")
    a(f"v_and_b32 v{W+1}, 0xffff0000, v{SK}")
    a(f"v_lshlrev_b32 v{W+2}, 16, v{SK+1}")
    a(f"v_and_b32 v{W+3}, 0xffff0000, v{SK+1}")
    for i in range(0, 8, 2):
        p0, p1, pk, c0, c1 = TT, TT + 1, TT + 2, TT + 3, TT + 4
        a(f"v_mul_f32 v{p0}, v{K+i}, v{W+3}")
        a(f"v_mul_f32 v{p1}, v{K+i+1}, v{W+3}")
        a(f"v_cvt_pk_bf16_f32 v{pk}, v{p0}, v{p1}")
        a(f"v_lshlrev_b32 v{c0}, 16, v{pk}")
        a(f"v_and_b32 v{c1}, 0xffff0000, v{pk}")
        for off, w in ((1, 2), (2, 1), (3, 0)):
            a(f"v_mul_f32 v{p0}, v{K+i+off}, v{W+w}")
            a(f"v_mul_f32 v{p1}, v{K+i+1+off}, v{W+w}")
            a(f"v_cvt_pk_bf16_f32 v{pk}, v{p0}, v{p1}")
            a(f"v_lshlrev_b32 v{p0}, 16, v{pk}")
            a(f"v_and_b32 v{p1}, 0xffff0000, v{pk}")
            a(f"v_add_f32 v{c0}, v{c0}, v{p0}")
            a(f"v_add_f32 v{c1}, v{c1}, v{p1}")
            a(f"v_cvt_pk_bf16_f32 v{pk}, v{c0}, v{c1}")
            a(f"v_lshlrev_b32 v{c0}, 16, v{pk}")
            a(f"v_and_b32 v{c1}, 0xffff0000, v{pk}")
        a(f"v_mul_f32 v{c0}, v{c0}, v{V+i}")
        a(f"v_mul_f32 v{c1}, v{c1}, v{V+i+1}")
        a(f"v_cvt_pk_bf16_f32 v{A0+3-i//2}, v{c1}, v{c0}")
    a(f"v_lshlrev_b32 v{TT+1}, 12, v0")
    a("s_lshl_b32 s81, s80, 1")
    a(f"buffer_store_dwordx4 {vr(A0,4)}, v{TT+1}, s[64:67], s81 offen")

def gen_proj(a, name="proj_kernel"):
    T = V_T
    a.raw(f".globl {name}\n.p2align 8\n.type {name},@function\n{name}:")
    a("s_cmp_ge_u32 s2, 256")
    a("s_cbranch_scc1 L_proj_end")
    a("s_load_dwordx2 s[4:5], s[0:1], 0")
    a("s_load_dwordx2 s[6:7], s[0:1], 56")
    a("s_load_dwordx2 s[20:21], s[0:1], 64")
    a("s_load_dwordx2 s[22:23], s[0:1], 72")
    a("s_load_dwordx2 s[24:25], s[0:1], 80")
    a("s_load_dwordx2 s[26:27], s[0:1], 120")
    a("s_load_dwordx2 s[56:57], s[0:1], 8")
    a("s_load_dwordx2 s[58:59], s[0:1], 16")
    a("s_load_dwordx2 s[60:61], s[0:1], 24")
    a("s_load_dwordx2 s[62:63], s[0:1], 96")
    a("s_load_dwordx2 s[86:87], s[0:1], 88")
    a(f"v_lshrrev_b32 v{T}, 6, v0")
    a(f"v_and_b32 v{V_LANE}, 63, v0")
    a(f"v_readfirstlane_b32 s{S_WAVE}, v{T}")
    a("s_nop 3")
    a(f"s_lshr_b32 s{S_WS_}, s{S_WAVE}, 2")
    a(f"s_and_b32 s{S_WN_}, s{S_WAVE}, 3")
    a(f"s_lshl_b32 s{S_M0W}, s{S_WAVE}, 12")
    a("s_and_b32 s48, s2, 7")
    a("s_lshr_b32 s49, s2, 3")
    a("s_and_b32 s50, s49, 3")
    a("s_lshl_b32 s51, s48, 2")
    a("s_add_u32 s50, s50, s51")
    a("s_lshr_b32 s51, s49, 2")
    a("s_lshl_b32 s40, s51, 8")
    a("s_and_b32 s52, s50, 15")
    a("s_lshl_b32 s41, s52, 9")
    a(f"v_lshrrev_b32 v{T}, 5, v{V_LANE}")
    a(f"v_and_b32 v{T+1}, 31, v{V_LANE}")
    a(f"v_lshlrev_b32 v{T+2}, 2, v{T}")
    a(f"v_xor_b32 v{T+1}, v{T+1}, v{T+2}")
    a(f"v_lshlrev_b32 v{T+3}, 13, v{T}")
    a(f"v_lshl_add_u32 v{V_WOFF}, v{T+1}, 4, v{T+3}")
    a(f"v_xor_b32 v{T+1}, 8, v{T+1}")
    a(f"v_lshl_add_u32 v{V_WOFF+1}, v{T+1}, 4, v{T+3}")
    a(f"v_lshrrev_b32 v{T+1}, 5, v{V_LANE}")
    a(f"v_bfe_u32 v{T}, v{V_LANE}, 2, 2")
    a(f"v_lshl_add_u32 v{T+2}, v{T+1}, 3, v{T}")
    a(f"v_lshlrev_b32 v{T+2}, 9, v{T+2}")
    a(f"v_bfe_u32 v{T+3}, v{V_LANE}, 4, 1")
    a(f"v_lshl_add_u32 v{T+2}, v{T+3}, 5, v{T+2}")
    a(f"v_bfe_u32 v{T+3}, v{V_LANE}, 1, 1")
    a(f"v_lshl_add_u32 v{T+2}, v{T+3}, 4, v{T+2}")
    a(f"v_and_b32 v{T+3}, 1, v{V_LANE}")
    a(f"v_lshl_add_u32 v{T+2}, v{T+3}, 3, v{T+2}")
    a(f"v_add_u32 v{T+2}, 0x8000, v{T+2}")
    for nb in range(2):
        a(f"s_lshl_b32 s{S_TMP}, s{S_WN_}, 1")
        a(f"s_add_u32 s{S_TMP}, s{S_TMP}, {nb}")
        a(f"v_xor_b32 v{T+3}, s{S_TMP}, v{T}")
        a(f"v_lshl_add_u32 v{V_WA+nb}, v{T+3}, 6, v{T+2}")
        a(f"v_add_u32 v{V_WA+2+nb}, 0x10000, v{V_WA+nb}")
    a("s_waitcnt lgkmcnt(0)")
    if STAMP: srd(a, 96, 26, 200 << 20, 1 << 20)
    stamp(a)
    srd(a, S_X, 6, 0, 2048 * 1024 * 2)
    a("s_and_b32 s53, s49, 1")
    a("s_lshl_b32 s54, s48, 1")
    a("s_add_u32 s53, s53, s54")
    a("s_lshr_b32 s54, s49, 1")
    a("s_lshl_b32 s54, s54, 7")
    a("s_lshl_b32 s55, s53, 9")
    jq = Job(a, 128, 7, 896, False, S_X, S_W, S_O)
    def q_prefetch():
        srd(a, S_X, 4, 0, 2048 * 448 * 2)
        srd(a, S_W, 20, 0, 448 * 4096 * 2)
        jq.setup_dma(54, 55)
        jq.dma(0, 0); jq.dma(1, 1)
    def q_l2pf():
        srd(a, 72, 20, 0, 448 * 4096 * 2)
        a("s_and_b32 s81, s49, 1")
        a("s_lshl_b32 s81, s81, 6")
        a("s_add_u32 s81, s81, s54")
        a("s_mul_i32 s81, s81, 896")
        a(f"s_min_u32 s82, s{S_WAVE}, 6")
        a("s_lshl_b32 s82, s82, 7")
        a("s_add_u32 s81, s81, s82")
        a(f"v_mul_u32_u24 v{T}, 896, v{V_LANE}")
        a(f"buffer_load_dword v{T+2}, v{T}, s[44:47], s81 offen")
        a("s_lshr_b32 s81, s49, 1")
        a("s_mul_i32 s81, s81, 28")
        a(f"s_and_b32 s82, s{S_WAVE}, 1")
        a("s_lshl_b32 s82, s82, 4")
        a("s_add_u32 s81, s81, s82")
        a("s_lshl_b32 s81, s81, 13")
        a("s_add_u32 s81, s81, s55")
        a(f"v_lshrrev_b32 v{T+1}, 2, v{V_LANE}")
        a(f"v_lshlrev_b32 v{T+1}, 13, v{T+1}")
        a(f"v_and_b32 v{T+3}, 3, v{V_LANE}")
        a(f"v_lshl_add_u32 v{T+1}, v{T+3}, 7, v{T+1}")
        a(f"buffer_load_dword v{T+3}, v{T+1}, s[72:75], s81 offen")
    a("s_cmp_ge_u32 s50, 16")
    a("s_cbranch_scc1 L_proj_v")
    for vtype in (False, True):
        if vtype: a.label("L_proj_v")
        srd(a, S_W, 24 if vtype else 22, 0, 1024 * 4096 * 2)
        srd(a, S_O, 26, WS_VT if vtype else WS_K, 16 << 20)
        j = Job(a, 256, 16, 2048, vtype, S_X, S_W, S_O)
        j.setup_dma(40, 41)
        j.dma(0, 0)
        side_issue(a)
        j.setup_xa()
        a(f"v_and_b32 v{V_PF}, 31, v{V_LANE}")
        a(f"v_lshlrev_b32 v{V_PF}, 11, v{V_PF}")
        a(f"v_bfe_u32 v{V_PF+1}, v{V_LANE}, 2, 3")
        a(f"v_lshlrev_b32 v{V_PF+1}, 13, v{V_PF+1}")
        a(f"v_and_b32 v{T}, 3, v{V_LANE}")
        a(f"v_lshl_add_u32 v{V_PF+1}, v{T}, 7, v{V_PF+1}")
        if PFD:
            for pf in range(1, PFD):
                a(f"s_add_u32 s{S_TMP}, s{S_XOFF}, {pf*128}")
                a(f"buffer_load_dword v{V_PF+2}, v{V_PF}, s[{S_X}:{S_X+3}], s{S_TMP} offen")
                a(f"s_add_u32 s{S_TMP}, s{S_WOFF}, {pf*64*8192}")
                a(f"buffer_load_dword v{V_PF+3}, v{V_PF+1}, s[{S_W}:{S_W+3}], s{S_TMP} offen")
        ch = side_chunks(28)
        for t in range(16):
            pf = t + PFD if (PFD and t + PFD < 16) else None
            prev_pf = PFD and ((t - 1 + PFD < 16 and t > 0) or t == 0)
            w = (2 * (PFD - 1) if t == 0 else 2) if prev_pf else 0
            if QPF and t == QPF + 1: w += 2
            j.tile(t, w, t + 1 < 16, extras=ch, pf=pf, post_dma=(q_l2pf if (QPF and t == QPF) else None))
        assert not ch
        a("s_barrier")
        if not vtype: stamp(a)
        q_prefetch()
        a("s_lshl_b32 s42, s52, 20")
        a(f"s_lshl_b32 s{S_TMP}, s{S_WS_}, 7")
        a(f"s_add_u32 s{S_TMP}, s{S_TMP}, s40")
        a(f"s_lshl_b32 s{S_TMP}, s{S_TMP}, 9")
        a(f"s_add_u32 s42, s42, s{S_TMP}")
        a(f"s_lshl_b32 s{S_TMP}, s{S_WN_}, {13 if vtype else 12}")
        a(f"s_add_u32 s42, s42, s{S_TMP}")
        for n, off in enumerate(kv_store_list(vtype, 42, S_O)):
            a(f"s_add_u32 s{56+n}, s42, {off}")
        pack_acc(a)
        if not vtype: a("s_branch L_proj_q")
    a.label("L_proj_q")
    stamp(a)
    jq.setup_xa()
    a(f"v_lshlrev_b32 v{V_PF}, 4, v{V_LANE}")
    st = [f"buffer_store_dwordx4 {vr(V_ACC+64+4*n,4)}, v{V_PF}, s[{S_O}:{S_O+3}], s{56+n} offen" + (" sc1" if SC1 else "") for n in range(16)]
    plan = [3, 3, 3, 3, 2, 2, 0]
    prev = 0
    for t in range(7):
        ex = []
        for ks in range(4):
            ex.append(st.pop(0) if ks < plan[t] else "s_nop 0")
        jq.tile(t, 6 if t == 0 else prev, 1 <= t < 6, extras=ex)
        prev = plan[t]
    srd(a, S_O, 26, WS_Q, 16 << 20)
    a("s_lshl_b32 s42, s53, 20")
    a(f"s_lshl_b32 s{S_TMP}, s{S_WS_}, 6")
    a(f"s_add_u32 s{S_TMP}, s{S_TMP}, s54")
    a(f"s_lshl_b32 s{S_TMP}, s{S_TMP}, 9")
    a(f"s_add_u32 s42, s42, s{S_TMP}")
    a(f"s_lshl_b32 s{S_TMP}, s{S_WN_}, 12")
    a(f"s_add_u32 s42, s42, s{S_TMP}")
    a("s_nop 7")
    stamp(a)
    jq.epilogue(42)
    if STAMP:
        a("s_waitcnt vmcnt(0)")
        stamp(a)
    a.label("L_proj_end")
    a("s_endpgm")
```

```python
import os
from asmlib import *
from k_conv3 import conv_issue, conv_run, conv_pre
from k_proj2 import WS_Q, WS_K, WS_VT, WS_CTX, WS_PART

PART_SLOT = 4 * 17 * 1024
LANE = 1
VK_OFF = 2
VV_OFF = 10
VKA = 12
VVA = 20
MC = 24; LSUM = 25
QREL = 29
T = 30
P = 48
SA = 64; SB_ = 96
O = 128
AQX = 0; AQY = 64; AF = 128; NF = 8
S_K = 8; S_V = 12; S_Q = 16; S_PT = 20; S_C = 24; S_DB = 28
S_WAVE = 32; S_N = 33; S_CNT = 34; S_KOFF = 35; S_VOFF = 36; S_TMP = 37; S_M0K = 38
S_QT = 39; S_PAR = 40; S_HEAD = 41; S_SLOT = 42; S_CC = 43; S_T8 = 44; S_TMP2 = 45; S_NEG = 46
S_KB = 47; S_VB = 48; S_KL = 49; S_VL = 50; S_KT = 51; S_VT = 52; S_QY = 53; S_KROT = 54; S_KDEL = 55; S_M0V = 56; S_SIG = 57
S_PS = 58; S_NY = 59; S_TMPK = 68; S_SIGP = 69; S_FBIT = 79
CEXP = 0.0625 * 1.4426950408889634
DEPTH = int(os.environ.get('DEPTH', '4'))
CW = int(os.environ.get('CW', '1'))
SV = int(os.environ.get('SV', '0'))
KBUF = 0; VBUF = 98304
STAMPA = int(os.environ.get("STAMPA", "0"))
_stn = [0]
def stamp(a):
    if not STAMPA: return
    i = _stn[0]; _stn[0] += 1
    a("s_memtime s[90:91]\ns_memrealtime s[92:93]\ns_waitcnt lgkmcnt(0)\nv_mov_b32 v46, s90\nv_mov_b32 v47, s92")
    a(f"s_lshl_b32 s94, s2, 8\ns_add_u32 s94, s94, {i*8}\nv_mov_b32 v41, s94")
    a(f"s_cmp_lg_u32 s{S_WAVE}, 0\ns_cbranch_scc1 L_sta_{i}")
    a("buffer_store_dwordx2 v[46:47], v41, s[96:99], 0 offen")
    a.label(f"L_sta_{i}")

def f2u(x):
    import struct
    return struct.unpack("<I", struct.pack("<f", x))[0]

def dmak_list():
    u = []
    for j in range(8):
        pre = ""
        if j % 4 == 0:
            pre = f"s_add_u32 m0, s{S_M0K}, {j*1024}\ns_add_u32 s{S_TMPK}, s{S_KOFF}, {j*1024}\n"
        u.append(pre + f"buffer_load_dwordx4 v{VK_OFF}, s[{S_K}:{S_K+3}], s{S_TMPK} offen offset:{(j%4)*1024} lds")
    u.append(f"s_add_u32 s{S_KOFF}, s{S_KOFF}, 32768\ns_sub_u32 s{S_KL}, s{S_KL}, 1\ns_cmp_eq_u32 s{S_KL}, 0\n"
             f"s_cselect_b32 s{S_KOFF}, s{S_KB}, s{S_KOFF}\ns_sub_u32 s{S_KT}, s{S_KT}, 1\ns_cmp_eq_u32 s{S_KT}, 0\n"
             f"s_cselect_b32 s{S_KOFF}, 0x80000000, s{S_KOFF}\ns_cselect_b32 s{S_KB}, 0x80000000, s{S_KB}")
    u.append(f"s_add_u32 s{S_M0K}, s{S_M0K}, 32768\ns_cmp_ge_u32 s{S_M0K}, 98304\ns_cselect_b32 s{S_TMPK}, 98304, 0\n"
             f"s_sub_u32 s{S_M0K}, s{S_M0K}, s{S_TMPK}")
    return u
def dmav_list(buf):
    u = []
    for j in range(8):
        pre = ""
        if j % 4 == 0:
            pre = f"s_add_u32 m0, s{S_M0V}, {VBUF + buf*32768 + j*1024}\ns_add_u32 s{S_TMPK}, s{S_VOFF}, {j*1024}\n"
        u.append(pre + f"buffer_load_dwordx4 v{VK_OFF}, s[{S_V}:{S_V+3}], s{S_TMPK} offen offset:{(j%4)*1024} lds")
    u.append(f"s_add_u32 s{S_VOFF}, s{S_VOFF}, 32768\ns_sub_u32 s{S_VL}, s{S_VL}, 1\ns_cmp_eq_u32 s{S_VL}, 0\n"
             f"s_cselect_b32 s{S_VOFF}, s{S_VB}, s{S_VOFF}\ns_sub_u32 s{S_VT}, s{S_VT}, 1\ns_cmp_eq_u32 s{S_VT}, 0\n"
             f"s_cselect_b32 s{S_VOFF}, 0x80000000, s{S_VOFF}\ns_cselect_b32 s{S_VB}, 0x80000000, s{S_VB}")
    return u
def krot_list():
    u = [f"s_add_u32 s{S_KROT}, s{S_KROT}, 1\ns_mov_b32 s{S_KDEL}, 32768\ns_cmp_eq_u32 s{S_KROT}, 3\ns_cselect_b32 s{S_KDEL}, 0xffff0000, s{S_KDEL}\n"
         f"s_cselect_b32 s{S_KROT}, 0, s{S_KROT}"]
    u.append(f"v_add_u32 v{VKA}, s{S_KDEL}, v{VKA}")
    return u

def rd_k(f):
    return f"v{VKA} offset:{f*1024}"
def rd_v(vbuf, f):
    ks, db = f >> 3, f & 7
    return f"v{VVA} offset:{vbuf*32768 + (db*4+ks)*1024}"

def softmax_valu(S, masked, uid):
    v = []
    if masked:
        v.append(f"v_mov_b32 v{T+8}, 0xff800000")
        for i in range(0, 32, 4):
            blk = []
            for u in range(4):
                e = i + u; kb, r = e >> 4, e & 15
                ko = 32 * kb + 8 * (r >> 2) + (r & 3)
                blk.append(f"v_cmp_lt_i32 s[{60+2*u}:{61+2*u}], v{QREL}, {ko}")
            for u in range(4):
                blk.append(f"v_cndmask_b32 v{S+i+u}, v{S+i+u}, v{T+8}, s[{60+2*u}:{61+2*u}]")
            v.append("\n".join(blk))
    v.append(f"v_max3_f32 v{T}, v{S}, v{S+1}, v{S+2}")
    v.append(f"v_max3_f32 v{T+1}, v{S+3}, v{S+4}, v{S+5}")
    for i in range(6, 30, 4):
        v.append(f"v_max3_f32 v{T}, v{T}, v{S+i}, v{S+i+1}")
        v.append(f"v_max3_f32 v{T+1}, v{T+1}, v{S+i+2}, v{S+i+3}")
    v.append(f"v_max3_f32 v{T}, v{T}, v{S+30}, v{S+31}")
    v.append(f"v_max_f32 v{T}, v{T}, v{T+1}")
    v.append(f"v_mov_b32 v{T+1}, v{T}\ns_nop 1\nv_permlane32_swap_b32 v{T}, v{T+1}\nv_max_f32 v{T}, v{T}, v{T+1}\n"
             f"v_fma_f32 v{T+1}, v{T}, s{S_CC}, -v{MC}\nv_cmp_lt_f32 vcc, s{S_T8}, v{T+1}\ns_cbranch_vccnz L_resc_{uid}\nL_resc_ret_{uid}:")
    nmax = len(v)
    for i in range(32):
        v.append(f"v_fma_f32 v{S+i}, v{S+i}, s{S_CC}, -v{MC}")
        if i >= 1: v.append(f"v_exp_f32 v{S+i-1}, v{S+i-1}")
        if i >= 3: v.append(f"v_add_f32 v{LSUM+((i-3)&3)}, v{LSUM+((i-3)&3)}, v{S+i-3}")
        if i >= 4 and (i & 1) == 0: v.append(f"v_cvt_pk_bf16_f32 v{P+(i-4)//2}, v{S+i-4}, v{S+i-3}")
    v.append(f"v_exp_f32 v{S+31}, v{S+31}")
    v.append(f"v_add_f32 v{LSUM+1}, v{LSUM+1}, v{S+29}")
    v.append(f"v_add_f32 v{LSUM+2}, v{LSUM+2}, v{S+30}")
    v.append(f"v_add_f32 v{LSUM+3}, v{LSUM+3}, v{S+31}")
    v.append(f"v_cvt_pk_bf16_f32 v{P+14}, v{S+28}, v{S+29}")
    v.append(f"v_cvt_pk_bf16_f32 v{P+15}, v{S+30}, v{S+31}")
    return v, nmax

def rescale_block(a, uid):
    a.label(f"L_resc_{uid}")
    a(f"v_mul_f32 v{T+1}, s{S_CC}, v{T}")
    a(f"v_max_f32 v{T+1}, v{T+1}, v{MC}")
    a(f"v_sub_f32 v{T+2}, v{MC}, v{T+1}")
    a(f"v_exp_f32 v{T+2}, v{T+2}")
    a(f"v_mov_b32 v{MC}, v{T+1}")
    for i in range(4): a(f"v_mul_f32 v{LSUM+i}, v{LSUM+i}, v{T+2}")
    for i in range(128): a(f"v_mul_f32 v{O+i}, v{O+i}, v{T+2}")
    a(f"s_branch L_resc_ret_{uid}")

def qk_items(Sn, AQ):
    items = []
    for f in range(32):
        kb, ks = f >> 4, f & 15
        def mf(fr, kb=kb, ks=ks):
            c = "0" if ks == 0 else vr(Sn + 16 * kb, 16)
            return f"v_mfma_f32_32x32x16_bf16 {vr(Sn+16*kb,16)}, {ar(fr,4)}, {ar(AQ+4*ks,4)}, {c}"
        items.append((rd_k(f), mf))
    return items
def pv_items(vbuf):
    items = []
    for f in range(32):
        ks, db = f >> 3, f & 7
        def mf(fr, ks=ks, db=db):
            return f"v_mfma_f32_32x32x16_bf16 {vr(O+16*db,16)}, {ar(fr,4)}, {vr(P+4*ks,4)}, {vr(O+16*db,16)}"
        items.append((rd_v(vbuf, f), mf))
    return items

def emit_stream(a, items, extras, preread_done, next_pre):
    n = len(items)
    assert n % NF == 0
    if not preread_done:
        for i in range(DEPTH): a(f"ds_read_b128 {ar(AF+4*(i%NF),4)}, {items[i][0]}")
    for i in range(n):
        tail = next_pre is not None
        outstanding = DEPTH - 1 if (tail or i + DEPTH <= n) else n - 1 - i
        if i % 2 == 0:
            o2 = DEPTH - 2 if (tail or i + DEPTH <= n) else max(0, n - 2 - i)
            a(f"s_waitcnt lgkmcnt({o2})")
        a(items[i][1](AF + 4 * (i % NF)))
        j = i + DEPTH
        if j < n:
            a(f"ds_read_b128 {ar(AF+4*(j%NF),4)}, {items[j][0]}")
        elif tail:
            for x in extras.get(("pre", j - n), []): a(x)
            a(f"ds_read_b128 {ar(AF+4*(j%NF),4)}, {next_pre[j-n]}")
        for x in extras.get(i, []): a(x)

def spread(extras, units, lo, hi):
    n = len(units)
    for k, u in enumerate(units):
        s = lo + (k * (hi - lo)) // n
        extras.setdefault(s, []).append(u)

def step(a, par, kind, resc):
    Sc = SA if par == 0 else SB_
    Sn = SB_ if par == 0 else SA
    uid = a.newlabel("a"); resc.append(uid)
    last = kind in ('ym', 'yl')
    sm, nmax = softmax_valu(Sc, last, uid)
    if kind == 'ym': sm.append(f"v_subrev_u32 v{QREL}, 64, v{QREL}")
    extras = {}
    dk = dmak_list(); dv = dmav_list(par ^ 1); kr = krot_list()
    AB = int(os.environ.get("ABLA", "0"))
    if AB & 1: dk = []; dv = []
    if AB & 2: sm = sm[:nmax]
    if AB & 4: sm = []; nmax = 0
    if kind != 'yl':
        AQ = AQY if kind in ('xl', 'yn', 'ym') else AQX
        items = qk_items(Sn, AQ) + pv_items(par)
        spread(extras, sm[:nmax], 0, 6 if not last else 12)
        spread(extras, sm[nmax:], 6 if not last else 12, 54)
        if SV == 0:
            spread(extras, dv, 2, 30); spread(extras, dk, 36, 62)
        elif SV == 1:
            spread(extras, dv, 2, 20); spread(extras, dk, 54, 64)
        elif SV == 2:
            spread(extras, dv, 8, 40); spread(extras, dk, 40, 64)
        spread(extras, kr, 50, 56)
        if kind in ('yn', 'ym'):
            extras.setdefault(34, []).append(flag_unit(a))
        if kind == 'ym':
            extras.setdefault(1, []).append(f"buffer_load_dword v{T+12}, v{T+13}, s[{S_DB}:{S_DB+3}], 0 offen sc1")
        emit_stream(a, items, extras, True, [rd_k(f) for f in range(DEPTH)])
    else:
        uid2 = a.newlabel("fs")
        a(f"s_mov_b32 s{S_SIG}, 1")
        a(f"s_cmp_eq_u32 s{S_PAR}, 0")
        a(f"s_cbranch_scc1 L_go_{uid2}")
        a("s_waitcnt vmcnt(8)")
        stamp(a)
        a(f"v_readfirstlane_b32 s{S_SIG}, v{T+12}")
        a("s_nop 3")
        a(f"s_and_b32 s{S_SIG}, s{S_SIG}, s{S_FBIT}")
        a(f"s_cmp_eq_u32 s{S_SIG}, 0")
        a(f"s_cbranch_scc1 L_late_{uid2}")
        partner_prefetch(a)
        a(f"s_branch L_go_{uid2}")
        a.label(f"L_late_{uid2}")
        a(f"buffer_load_dword v{T+12}, v{T+13}, s[{S_DB}:{S_DB+3}], 0 offen sc1")
        a.label(f"L_go_{uid2}")
        a("s_waitcnt lgkmcnt(0)")
        items = pv_items(par)
        for i in range(DEPTH): a(f"ds_read_b128 {ar(AF+4*(i%NF),4)}, {items[i][0]}")
        for x in sm: a(x)
        a(f"s_cmp_lg_u32 s{S_SIG}, 0")
        a(f"s_cbranch_scc1 L_go2_{uid2}")
        partner_prefetch(a)
        a.label(f"L_go2_{uid2}")
        stamp(a)
        a("s_nop 1")
        emit_stream(a, items, extras, True, None)

def partner_prefetch(a):
    uid = a.newlabel("pp")
    a.label(f"L_poll_{uid}")
    a("s_waitcnt vmcnt(0)")
    a(f"v_readfirstlane_b32 s{S_TMP}, v{T+12}")
    a("s_nop 3")
    a(f"s_and_b32 s{S_TMP}, s{S_TMP}, s{S_FBIT}")
    a(f"s_cmp_lg_u32 s{S_TMP}, 0")
    a(f"s_cbranch_scc1 L_pok_{uid}")
    a("s_sleep 1")
    a(f"buffer_load_dword v{T+12}, v{T+13}, s[{S_DB}:{S_DB+3}], 0 offen sc1")
    a(f"s_branch L_poll_{uid}")
    a.label(f"L_pok_{uid}")
    a(f"s_mul_i32 s{S_TMP}, s{S_PS}, {PART_SLOT}")
    a(f"s_mul_i32 s{S_TMP2}, s{S_WAVE}, {17*1024}")
    a(f"s_add_u32 s{S_TMP}, s{S_TMP}, s{S_TMP2}")
    a(f"v_lshlrev_b32 v{T+4}, 4, v{LANE}")
    for c in range(16):
        if c and c % 4 == 0: a(f"s_add_u32 s{S_TMP}, s{S_TMP}, 4096")
        a(f"buffer_load_dwordx4 {ar(160+4*c,4)}, v{T+4}, s[{S_PT}:{S_PT+3}], s{S_TMP} offen offset:{(c%4)*1024} sc1")
    a(f"s_add_u32 s{S_TMP}, s{S_TMP}, 4096")
    a(f"buffer_load_dwordx2 {vr(T+14,2)}, v{T+4}, s[{S_PT}:{S_PT+3}], s{S_TMP} offen sc1")

def flag_unit(a):
    uid = a.newlabel("sg")
    return (f"s_cmp_eq_u32 s{S_SIGP}, 0\ns_cbranch_scc1 L_nosig_{uid}\ns_mov_b32 s{S_SIGP}, 0\ns_waitcnt vmcnt(8)\n"
            f"v_mov_b32 v{T+10}, s{S_FBIT}\ns_mov_b64 exec, 1\n"
            f"buffer_atomic_or v{T+10}, v{T+13}, s[{S_DB}:{S_DB+3}], 0 offen\ns_mov_b64 exec, -1\nL_nosig_{uid}:")

def top(a, sig):
    a("s_waitcnt vmcnt(8)")
    a("s_barrier")

def gen_attn(a, name="attn_kernel", conv=None):
    a.raw(f".globl {name}\n.p2align 8\n.type {name},@function\n{name}:")
    a("s_cmp_ge_u32 s2, 256")
    a("s_cbranch_scc1 L_attn_end")
    a("s_load_dwordx2 s[4:5], s[0:1], 120")
    a("s_load_dwordx2 s[6:7], s[0:1], 112")
    a("s_load_dwordx2 s[82:83], s[0:1], 32")
    a("s_load_dwordx2 s[84:85], s[0:1], 40")
    a(f"v_lshrrev_b32 v{T}, 6, v0")
    a(f"v_and_b32 v{LANE}, 63, v0")
    a(f"v_readfirstlane_b32 s{S_WAVE}, v{T}")
    a("s_and_b32 s70, s2, 7")
    a("s_lshr_b32 s71, s2, 3")
    a(f"s_and_b32 s{S_HEAD}, s71, 1")
    a("s_lshl_b32 s70, s70, 1")
    a(f"s_add_u32 s{S_HEAD}, s{S_HEAD}, s70")
    a("s_lshr_b32 s72, s71, 1")
    a("s_and_b32 s72, s72, 7")
    a(f"s_lshr_b32 s{S_PAR}, s71, 4")
    a(f"s_mov_b32 s{S_CC}, {f2u(CEXP)}")
    a(f"s_mov_b32 s{S_T8}, 0x41000000")
    a(f"s_mov_b32 s{S_NEG}, {f2u(-1e30)}")
    a(f"s_lshl_b32 s{S_M0K}, s{S_WAVE}, 13")
    a(f"s_lshl_b32 s{S_M0V}, s{S_WAVE}, 13")
    a(f"s_lshl_b32 s{S_SLOT}, s{S_HEAD}, 3")
    a(f"s_add_u32 s{S_SLOT}, s{S_SLOT}, s72")
    a(f"s_mov_b32 s{S_PS}, s{S_SLOT}")
    a(f"s_lshl_b32 s73, s{S_HEAD}, 20")
    a(f"s_sub_u32 s{S_QT}, 15, s72")
    a("s_lshl_b32 s74, s72, 1")
    a("s_sub_u32 s77, 15, s74")
    a("s_add_u32 s78, s74, 2")
    a(f"s_cmp_eq_u32 s{S_PAR}, 0")
    a(f"s_cselect_b32 s{S_QY}, s72, s{S_QT}")
    a(f"s_cselect_b32 s{S_N}, s77, 17")
    a(f"s_cselect_b32 s{S_NY}, s78, 17")
    a(f"s_cselect_b32 s{S_TMP}, 0, s77")
    a(f"s_mov_b32 s{S_KL}, s{S_N}\ns_mov_b32 s{S_VL}, s{S_N}\ns_mov_b32 s{S_KT}, 17\ns_mov_b32 s{S_VT}, 17")
    a(f"s_mov_b32 s{S_KROT}, 0\ns_mov_b32 s{S_SIGP}, 0\ns_mov_b32 s{S_CNT}, 0")
    a(f"s_lshl_b32 s{S_VB}, s{S_WAVE}, 13")
    a(f"s_mov_b32 s{S_KB}, s{S_VB}")
    a(f"s_lshl_b32 s{S_TMP}, s{S_TMP}, 15")
    a(f"s_add_u32 s{S_KOFF}, s{S_KB}, s{S_TMP}")
    a(f"s_mov_b32 s{S_VOFF}, s{S_KOFF}")
    a(f"v_lshlrev_b32 v{VK_OFF}, 4, v{LANE}")
    a(f"v_mov_b32 v{VKA}, v{VK_OFF}")
    a(f"v_add_u32 v{VVA}, {VBUF}, v{VK_OFF}")
    a("s_waitcnt lgkmcnt(0)")
    def srd_head(d, off):
        a(f"s_add_u32 s{d}, s4, {off}\ns_addc_u32 s{d+1}, s5, 0\ns_add_u32 s{d}, s{d}, s73\ns_addc_u32 s{d+1}, s{d+1}, 0")
        a(f"s_mov_b32 s{d+2}, {1<<20}\ns_mov_b32 s{d+3}, 0x00020000")
    srd_head(S_K, WS_K); srd_head(S_V, WS_VT); srd_head(S_Q, WS_Q)
    a("s_cmp_ge_u32 s2, 224")
    a("s_cbranch_scc1 L_noconv1")
    conv_issue(a, LANE)
    if CW: a("s_waitcnt vmcnt(0)")
    a.label("L_noconv1")
    if STAMPA: srd(a, 96, 4, 200 << 20, 1 << 20)
    stamp(a)
    for u in dmak_list(): a(u)
    a(f"v_and_b32 v{T}, 31, v{LANE}")
    a(f"v_lshrrev_b32 v{T+1}, 5, v{LANE}")
    a(f"s_lshl_b32 s{S_TMP2}, s{S_WAVE}, 5")
    a(f"v_add_u32 v{T+2}, s{S_TMP2}, v{T}")
    a(f"s_lshl_b32 s76, s{S_WAVE}, 14")
    a(f"s_lshl_b32 s75, s{S_QT}, 16")
    a("s_add_u32 s75, s75, s76")
    for ks in range(16):
        if ks and ks % 4 == 0: a("s_add_u32 s75, s75, 4096")
        a(f"buffer_load_dwordx4 {ar(AQX+4*ks,4)}, v{VK_OFF}, s[{S_Q}:{S_Q+3}], s75 offen offset:{(ks%4)*1024}")
    for u in dmav_list(0): a(u)
    for u in dmak_list(): a(u)
    a(f"v_lshlrev_b32 v{T+4}, 2, v{T+1}")
    a(f"v_sub_u32 v{QREL}, v{T+2}, v{T+4}")
    a("s_cmp_ge_u32 s2, 224")
    a("s_cbranch_scc1 L_noconv2")
    conv_pre(a, LANE, S_WAVE)
    conv_run(a, LANE, S_WAVE, 40, stamp)
    a("s_nop 1")
    a.label("L_noconv2")
    srd(a, S_PT, 4, WS_PART, 256 * PART_SLOT)
    srd(a, S_C, 4, WS_CTX, 16 << 20)
    srd(a, S_DB, 6, 0, 256)
    a(f"s_lshr_b32 s{S_TMP}, s{S_SLOT}, 3")
    a(f"s_lshl_b32 s{S_TMP}, s{S_TMP}, 2")
    a(f"v_mov_b32 v{T+13}, s{S_TMP}")
    a(f"s_and_b32 s{S_TMP}, s{S_SLOT}, 7")
    a(f"s_lshl_b32 s{S_TMP}, s{S_TMP}, 2")
    a(f"s_add_u32 s{S_TMP}, s{S_TMP}, s{S_WAVE}")
    a(f"s_lshl_b32 s{S_FBIT}, 1, s{S_TMP}")
    a(f"v_mov_b32 v{MC}, s{S_NEG}")
    for i in range(4): a(f"v_mov_b32 v{LSUM+i}, 0")
    for i in range(128): a(f"v_mov_b32 v{O+i}, 0")
    a("s_waitcnt vmcnt(16)")
    a("s_barrier")
    stamp(a)
    ex = {}
    spread(ex, dmak_list(), 0, 10)
    spread(ex, [f"s_lshl_b32 s75, s{S_QY}, 16\ns_add_u32 s75, s75, s76"] + [("s_add_u32 s75, s75, 4096\n" if (ks and ks % 4 == 0) else "") + f"buffer_load_dwordx4 {ar(AQY+4*ks,4)}, v{VK_OFF}, s[{S_Q}:{S_Q+3}], s75 offen offset:{(ks%4)*1024}" for ks in range(16)], 10, 28)
    spread(ex, krot_list(), 30, 32)
    emit_stream(a, qk_items(SA, AQX), ex, False, None)
    stamp(a)
    resc = []
    a("s_waitcnt vmcnt(0)")
    a("s_barrier")
    for i in range(DEPTH): a(f"ds_read_b128 {ar(AF+4*i,4)}, {rd_k(i)}")
    a(f"s_cmp_eq_u32 s{S_PAR}, 0")
    a("s_cbranch_scc1 L_x0_entry")
    a("s_branch L_y0_entry")
    for par in range(2):
        a.label(f"L_x{par}")
        top(a, False)
        if par == 0: a.label("L_x0_entry")
        a(f"s_add_u32 s{S_CNT}, s{S_CNT}, 1")
        a(f"s_cmp_ge_u32 s{S_CNT}, s{S_N}")
        a(f"s_cbranch_scc1 L_xl{par}")
        step(a, par, 'xn', resc)
        if par == 1: a("s_branch L_x0")
    for par in range(2):
        a.label(f"L_xl{par}")
        step(a, par, 'xl', resc)
        stamp(a)
        a(f"s_mul_i32 s{S_TMP}, s{S_SLOT}, {PART_SLOT}")
        a(f"s_mul_i32 s{S_TMP2}, s{S_WAVE}, {17*1024}")
        a(f"s_add_u32 s{S_TMP}, s{S_TMP}, s{S_TMP2}")
        a(f"v_lshlrev_b32 v{T+4}, 4, v{LANE}")
        a(f"v_add_f32 v{T+1}, v{LSUM}, v{LSUM+1}")
        a(f"v_add_f32 v{T+2}, v{LSUM+2}, v{LSUM+3}")
        a(f"v_mov_b32 v{T}, v{MC}")
        a(f"v_add_f32 v{T+1}, v{T+1}, v{T+2}")
        a(f"s_add_u32 s{S_TMP2}, s{S_TMP}, {16*1024}")
        a(f"buffer_store_dwordx2 {vr(T,2)}, v{T+4}, s[{S_PT}:{S_PT+3}], s{S_TMP2} offen sc1")
        a(f"v_mov_b32 v{MC}, s{S_NEG}")
        for i in range(4): a(f"v_mov_b32 v{LSUM+i}, 0")
        a("s_nop 4")
        Sc = SA if par == 0 else SB_
        for c in range(16):
            pk = Sc + (c % 8) * 4
            for u in range(4):
                a(f"v_cvt_pk_bf16_f32 v{pk+u}, v{O+8*c+2*u}, v{O+8*c+2*u+1}")
            if c and c % 4 == 0: a(f"s_add_u32 s{S_TMP}, s{S_TMP}, 4096")
            a(f"buffer_store_dwordx4 {vr(pk,4)}, v{T+4}, s[{S_PT}:{S_PT+3}], s{S_TMP} offen offset:{(c%4)*1024} sc1")
        a(f"s_mov_b32 s{S_CNT}, 0")
        a(f"s_mov_b32 s{S_N}, s{S_NY}")
        a(f"s_mov_b32 s{S_SIGP}, 1")
        a("s_waitcnt vmcnt(25)")
        a("s_barrier")
        a(f"s_branch L_y{par^1}_entry")
    for par in range(2):
        a.label(f"L_y{par}")
        top(a, True)
        a.label(f"L_y{par}_entry")
        a(f"s_add_u32 s{S_CNT}, s{S_CNT}, 1")
        a(f"s_cmp_ge_u32 s{S_CNT}, s{S_N}")
        a(f"s_cbranch_scc1 L_yl{par}")
        a(f"s_add_u32 s{S_TMP2}, s{S_CNT}, 1")
        a(f"s_cmp_ge_u32 s{S_TMP2}, s{S_N}")
        a(f"s_cbranch_scc1 L_ym{par}")
        step(a, par, 'yn', resc)
        if par == 1: a("s_branch L_y0")
    for par in range(2):
        a.label(f"L_ym{par}")
        step(a, par, 'ym', resc)
        a(f"s_branch L_y{par^1}")
    for par in range(2):
        a.label(f"L_yl{par}")
        step(a, par, 'yl', resc)
        if par == 0: a("s_branch L_fin")
    a.label("L_fin")
    stamp(a)
    a(f"v_add_f32 v{T+1}, v{LSUM}, v{LSUM+1}")
    a(f"v_add_f32 v{T+2}, v{LSUM+2}, v{LSUM+3}")
    a(f"v_add_f32 v{T+1}, v{T+1}, v{T+2}")
    a(f"v_lshlrev_b32 v{T+4}, 4, v{LANE}")
    a(f"s_lshl_b32 s{S_TMP}, s{S_QY}, 2")
    a(f"s_add_u32 s{S_TMP}, s{S_TMP}, s{S_WAVE}")
    a(f"s_lshl_b32 s{S_TMP}, s{S_TMP}, 18")
    a(f"s_lshl_b32 s{S_TMP2}, s{S_HEAD}, 14")
    a(f"s_add_u32 s{S_TMP}, s{S_TMP}, s{S_TMP2}")
    a(f"s_cmp_lg_u32 s{S_PAR}, 0")
    a("s_cbranch_scc1 L_fin_merge")
    a(f"v_mov_b32 v{T+2}, v{T+1}")
    a("s_nop 1")
    a(f"v_permlane32_swap_b32 v{T+1}, v{T+2}")
    a(f"v_add_f32 v{T+1}, v{T+1}, v{T+2}")
    a(f"v_rcp_f32 v{T+8}, v{T+1}")
    a("s_nop 0")
    a(f"v_mov_b32 v{T+9}, v{T+8}")
    for c in range(16):
        r = O + 8 * c; pr = SA + 4 * c
        for i in range(4): a(f"v_pk_mul_f32 {vr(r+2*i,2)}, {vr(r+2*i,2)}, {vr(T+8,2)}")
        for i in range(4): a(f"v_cvt_pk_bf16_f32 v{pr+i}, v{r+2*i}, v{r+2*i+1}")
        if c and c % 4 == 0: a(f"s_add_u32 s{S_TMP}, s{S_TMP}, 4096")
        a(f"buffer_store_dwordx4 {vr(pr,4)}, v{T+4}, s[{S_C}:{S_C+3}], s{S_TMP} offen offset:{(c%4)*1024} sc1")
    a("s_branch L_fin_done")
    a.label("L_fin_merge")
    a("s_waitcnt vmcnt(0)")
    a(f"v_mov_b32 v{T+6}, v{T+14}\nv_mov_b32 v{T+7}, v{T+15}")
    for i in range(64): a(f"v_accvgpr_read_b32 v{SA+i}, a{160+i}")
    a(f"v_max_f32 v{T+2}, v{MC}, v{T+6}")
    a(f"v_sub_f32 v{T+3}, v{MC}, v{T+2}")
    a(f"v_sub_f32 v{T+5}, v{T+6}, v{T+2}")
    a(f"v_exp_f32 v{T+3}, v{T+3}")
    a(f"v_exp_f32 v{T+5}, v{T+5}")
    a("s_nop 0")
    a(f"v_mul_f32 v{T+1}, v{T+1}, v{T+3}")
    a(f"v_fma_f32 v{T+1}, v{T+7}, v{T+5}, v{T+1}")
    a(f"v_mov_b32 v{T+2}, v{T+1}")
    a("s_nop 1")
    a(f"v_permlane32_swap_b32 v{T+1}, v{T+2}")
    a(f"v_add_f32 v{T+1}, v{T+1}, v{T+2}")
    a(f"v_rcp_f32 v{T+1}, v{T+1}")
    a("s_nop 0")
    a(f"v_mul_f32 v{T+8}, v{T+3}, v{T+1}")
    a(f"v_mul_f32 v{T+10}, v{T+5}, v{T+1}")
    a(f"v_mov_b32 v{T+9}, v{T+8}\nv_mov_b32 v{T+11}, v{T+10}")
    for c in range(16):
        r = O + 8 * c; pr = SA + 4 * c
        u = P + (c % 2) * 8
        for i in range(4):
            a(f"v_lshlrev_b32 v{u+2*i}, 16, v{pr+i}")
            a(f"v_and_b32 v{u+2*i+1}, 0xffff0000, v{pr+i}")
        for i in range(4):
            a(f"v_pk_mul_f32 {vr(r+2*i,2)}, {vr(r+2*i,2)}, {vr(T+8,2)}")
        for i in range(4):
            a(f"v_pk_fma_f32 {vr(r+2*i,2)}, {vr(u+2*i,2)}, {vr(T+10,2)}, {vr(r+2*i,2)}")
        for i in range(4):
            a(f"v_cvt_pk_bf16_f32 v{pr+i}, v{r+2*i}, v{r+2*i+1}")
        if c and c % 4 == 0: a(f"s_add_u32 s{S_TMP}, s{S_TMP}, 4096")
        a(f"buffer_store_dwordx4 {vr(pr,4)}, v{T+4}, s[{S_C}:{S_C+3}], s{S_TMP} offen offset:{(c%4)*1024}" + (" sc1" if int(os.environ.get("SC1", "2")) >= 2 else ""))
    a.label("L_fin_done")
    if STAMPA:
        a("s_waitcnt vmcnt(0)")
        stamp(a)
    a.label("L_attn_end")
    a("s_endpgm")
    for uid in resc: rescale_block(a, uid)
```

```python
import os
from asmlib import *

WS_Q = 0
WS_K = 16 << 20
WS_VT = 32 << 20
WS_CTX = 48 << 20
WS_Y2T = 64 << 20
WS_UT = WS_Y2T + (2 << 20)
WS_G = WS_Y2T + (4 << 20)
WS_WO = WS_Y2T + (5 << 20)
WS_PART = 76 << 20

V_LANE = 1; V_XOFF = 2; V_WOFF = 4; V_XA = 6; V_WA = 14; V_T = 18; V_FR = 32; V_SD = 80; V_PF = 28; V_ACC = 128
S_X = 8; S_W = 12; S_O = 16
S_WAVE = 30; S_M0X = 31; S_M0W = 32; S_XOFF = 33; S_WOFF = 34; S_TMP = 35; S_OB = 36; S_WS_ = 37; S_WN_ = 38
SC1 = int(os.environ.get("SC1", "2"))
QPF = int(os.environ.get("QPF", "11"))
BPF = int(os.environ.get("BPF", "0"))
DSP = int(os.environ.get("DSP", "2"))
DPOS = int(os.environ.get("DPOS", "0"))
PFD = int(os.environ.get("PFD", "0"))
STAMP = int(os.environ.get("STAMP", "0"))
_stn = [0]
def stamp(a):
    if not STAMP: return
    i = _stn[0]; _stn[0] += 1
    a("s_memtime s[90:91]\ns_memrealtime s[92:93]\ns_waitcnt lgkmcnt(0)\nv_mov_b32 v26, s90\nv_mov_b32 v27, s92")
    a(f"s_lshl_b32 s94, s2, 8\ns_add_u32 s94, s94, {i*8}\nv_mov_b32 v25, s94")
    a(f"s_cmp_lg_u32 s{S_WAVE}, 0\ns_cbranch_scc1 L_st_{i}")
    a("buffer_store_dwordx2 v[26:27], v25, s[96:99], 0 offen")
    a.label(f"L_st_{i}")

class Job:
    def __init__(self, a, TS, KT, ldx, vtype, sx, sw, so):
        self.a = a; self.TS = TS; self.KT = KT; self.ldx = ldx; self.vtype = vtype
        self.SB = TS // 64; self.sx = sx; self.sw = sw; self.so = so
    def setup_dma(self, s_m0, s_n0):
        a = self.a; T = V_T; TS = self.TS; ldx = self.ldx
        a(f"v_lshrrev_b32 v{T}, 3, v{V_LANE}")
        a(f"v_mul_u32_u24 v{T+1}, {ldx}, v{T}")
        a(f"v_lshrrev_b32 v{T+2}, 4, v{V_LANE}")
        a(f"v_and_b32 v{T+3}, 7, v{V_LANE}")
        a(f"v_xor_b32 v{T+4}, v{T+3}, v{T+2}")
        a(f"v_lshl_add_u32 v{V_XOFF}, v{T+4}, 4, v{T+1}")
        a(f"v_xor_b32 v{T+4}, 4, v{T+4}")
        a(f"v_lshl_add_u32 v{V_XOFF+1}, v{T+4}, 4, v{T+1}")
        a(f"s_mul_i32 s{S_M0X}, s{S_WAVE}, {TS//8*128}")
        a(f"s_mul_i32 s{S_XOFF}, s{S_WAVE}, {TS//8}")
        a(f"s_add_u32 s{S_XOFF}, s{S_XOFF}, s{s_m0}")
        a(f"s_mul_i32 s{S_XOFF}, s{S_XOFF}, {ldx}")
        a(f"s_lshl_b32 s{S_WOFF}, s{S_WAVE}, 16")
        a(f"s_add_u32 s{S_WOFF}, s{S_WOFF}, s{s_n0}")
    def dma(self, stage, kt, part=None):
        a = self.a
        if part is not None:
            b = Asm(); self.a = b; self.dma(stage, kt); self.a = a
            L = b.lines; n = len(L) // 3
            lo, hi = (part * n) // DSP, ((part + 1) * n) // DSP
            for l in L[3*lo:3*hi]: a(l)
            return
        for j in range(self.TS // 64):
            a(f"s_add_u32 m0, s{S_M0X}, {stage*65536 + j*1024}")
            a(f"s_add_u32 s{S_TMP}, s{S_XOFF}, {kt*128 + j*8*self.ldx}")
            a(f"buffer_load_dwordx4 v{V_XOFF+(j&1)}, s[{self.sx}:{self.sx+3}], s{S_TMP} offen lds")
        for j in range(4):
            a(f"s_add_u32 m0, s{S_M0W}, {stage*65536 + 32768 + j*1024}")
            a(f"s_add_u32 s{S_TMP}, s{S_WOFF}, {(kt*64 + 2*j)*8192}")
            a(f"buffer_load_dwordx4 v{V_WOFF+(j&1)}, s[{self.sw}:{self.sw+3}], s{S_TMP} offen lds")
    def setup_xa(self):
        a = self.a; T = V_T
        a(f"v_and_b32 v{T}, 31, v{V_LANE}")
        a(f"v_lshrrev_b32 v{T+1}, 5, v{V_LANE}")
        a(f"v_bfe_u32 v{T+2}, v{V_LANE}, 1, 3")
        a(f"v_xor_b32 v{T+2}, v{T+2}, v{T+1}")
        a(f"s_mul_i32 s{S_TMP}, s{S_WS_}, {self.TS//2*128}")
        a(f"v_lshlrev_b32 v{T+3}, 7, v{T}")
        a(f"v_add_u32 v{T+3}, s{S_TMP}, v{T+3}")
        a(f"v_lshl_add_u32 v{V_XA}, v{T+2}, 4, v{T+3}")
        for ks in range(1, 4): a(f"v_xor_b32 v{V_XA+ks}, {ks<<5}, v{V_XA}")
        for ks in range(4): a(f"v_add_u32 v{V_XA+4+ks}, 0x10000, v{V_XA+ks}")
    def fx(self, st, sb): return V_FR + st * 24 + sb * 4
    def fw(self, st, nb): return V_FR + st * 24 + 16 + nb * 4
    def acc(self, sb, nb): return V_ACC + (sb * 2 + nb) * 16
    def reads(self, stage, ks, st):
        a = self.a
        for nb in range(2):
            a(f"ds_read_b64_tr_b16 {vr(self.fw(st,nb),2)}, v{V_WA+stage*2+nb} offset:{(16*ks)*512}")
            a(f"ds_read_b64_tr_b16 {vr(self.fw(st,nb)+2,2)}, v{V_WA+stage*2+nb} offset:{(16*ks+4)*512}")
        for sb in range(self.SB):
            a(f"ds_read_b128 {vr(self.fx(st,sb),4)}, v{V_XA+stage*4+ks} offset:{sb*4096}")
    def mfmas(self, st, first):
        a = self.a
        for sb in range(self.SB):
            for nb in range(2):
                c = "0" if first else vr(self.acc(sb, nb), 16)
                A, B = (self.fx(st, sb), self.fw(st, nb)) if self.vtype else (self.fw(st, nb), self.fx(st, sb))
                a(f"v_mfma_f32_32x32x16_bf16 {vr(self.acc(sb,nb),16)}, {vr(A,4)}, {vr(B,4)}, {c}")
    def tile(self, t, wait, do_dma, extras=None, pf=None, post_dma=None):
        a = self.a; stg = t & 1
        a(f"s_waitcnt vmcnt({wait})")
        a("s_barrier")
        if not self.vtype and (t % 4 == 0): stamp(a)
        if do_dma and not (DSP and self.TS == 256): self.dma(stg ^ 1, t + 1)
        if pf is not None:
            a(f"s_add_u32 s{S_TMP}, s{S_XOFF}, {pf*128}")
            a(f"buffer_load_dword v{V_PF+2}, v{V_PF}, s[{self.sx}:{self.sx+3}], s{S_TMP} offen")
            a(f"s_add_u32 s{S_TMP}, s{S_WOFF}, {pf*64*8192}")
            a(f"buffer_load_dword v{V_PF+3}, v{V_PF+1}, s[{self.sw}:{self.sw+3}], s{S_TMP} offen")
        if post_dma: post_dma()
        self.reads(stg, 0, 0)
        for ks in range(4):
            if ks < 3:
                self.reads(stg, ks + 1, (ks + 1) & 1)
                a(f"s_waitcnt lgkmcnt({self.SB+4})")
            else:
                a("s_waitcnt lgkmcnt(0)")
            if do_dma and DSP and self.TS == 256 and DPOS == 0 and ks < DSP: self.dma(stg ^ 1, t + 1, part=ks)
            self.mfmas(ks & 1, t == 0 and ks == 0)
            if do_dma and DSP and self.TS == 256 and DPOS == 1 and ks < DSP: self.dma(stg ^ 1, t + 1, part=ks)
            if extras: a(extras.pop(0))
    def epilogue(self, s_ob):
        a = self.a; T = V_T
        a(f"v_lshlrev_b32 v{T}, 4, v{V_LANE}")
        n = 0
        for sb in range(self.SB):
            for nb in range(2):
                for tp in range(2):
                    r = self.acc(sb, nb) + 8 * tp
                    p = V_FR + (n % 8) * 4; n += 1
                    for u in range(4):
                        a(f"v_cvt_pk_bf16_f32 v{p+u}, v{r+2*u}, v{r+2*u+1}")
                    if self.vtype:
                        off = (sb >> 1) * 32768 + (nb * 4 + 2 * (sb & 1) + tp) * 1024
                    else:
                        off = sb * 16384 + (2 * nb + tp) * 1024
                    a(f"s_add_u32 s{S_TMP}, s{s_ob}, {off}")
                    a(f"buffer_store_dwordx4 {vr(p,4)}, v{T}, s[{self.so}:{self.so+3}], s{S_TMP} offen" + (" sc1" if SC1 >= 2 else ""))

def pack_acc(a):
    for p in range(63, -1, -1):
        a(f"v_cvt_pk_bf16_f32 v{V_ACC+64+p}, v{V_ACC+2*p}, v{V_ACC+2*p+1}")
def kv_store_list(vtype, s_ob, so):
    L = []; n = 0
    for sb in range(4):
        for nb in range(2):
            for tp in range(2):
                off = ((sb >> 1) * 32768 + (nb * 4 + 2 * (sb & 1) + tp) * 1024) if vtype else (sb * 16384 + (2 * nb + tp) * 1024)
                L.append(off); n += 1
    return L

def side_issue(a):
    R = V_SD; K = R; V = R + 11; SK = R + 20; GX = R + 24; GW = R + 28; TT = R + 32
    a("s_lshl_b32 s80, s2, 3")
    srd(a, 64, 56, 0, 2048 * 448 * 2)
    srd(a, 68, 58, 0, 2048 * 448 * 2)
    srd(a, 72, 60, 0, 448 * 8)
    srd(a, 76, 62, 0, 448 * 2)
    srd(a, 84, 86, 0, 4096 * 448 * 2)
    srd(a, 44, 4, 0, 2048 * 448 * 2)
    a(f"v_lshlrev_b32 v{TT}, 4, v{V_LANE}")
    a("s_mul_i32 s81, s2, 14336")
    a(f"s_lshl_b32 s82, s{S_WAVE}, 10")
    a("s_add_u32 s81, s81, s82")
    a("s_add_u32 m0, s82, 131072")
    a("s_nop 0")
    a(f"buffer_load_dwordx4 v{TT}, s[84:87], s81 offen lds")
    a(f"s_cmp_ge_u32 s{S_WAVE}, 6")
    a("s_cbranch_scc1 L_sd_now2_" + str(a.uid))
    a("s_add_u32 m0, s82, 139264")
    a("s_add_u32 s81, s81, 8192")
    a(f"buffer_load_dwordx4 v{TT}, s[84:87], s81 offen lds")
    a.label("L_sd_now2_" + str(a.uid))
    a(f"s_add_u32 s81, s80, s{S_WAVE}")
    a("s_mul_i32 s81, s81, 896")
    a(f"v_cmp_gt_u32 vcc, 56, v{V_LANE}")
    a(f"v_mov_b32 v{TT+1}, 0x7f000000")
    a(f"v_cndmask_b32 v{TT+1}, v{TT+1}, v{TT}, vcc")
    a(f"buffer_load_dwordx4 {vr(GX,4)}, v{TT+1}, s[44:47], s81 offen")
    a(f"buffer_load_dwordx4 {vr(GW,4)}, v{TT+1}, s[76:79], 0 offen")
    a("s_mul_i32 s81, s80, 896")
    a("s_sub_u32 s82, s81, 2688")
    a(f"v_lshlrev_b32 v{TT}, 1, v0")
    a(f"v_add_u32 v{TT+1}, s82, v{TT}")
    for j in range(11):
        a(f"buffer_load_ushort v{K+j}, v{TT+1}, s[64:67], 0 offen")
        if j < 10: a(f"v_add_u32 v{TT+1}, 896, v{TT+1}")
    a(f"v_add_u32 v{TT+1}, s81, v{TT}")
    for j in range(8):
        a(f"buffer_load_ushort v{V+j}, v{TT+1}, s[68:71], 0 offen")
        if j < 7: a(f"v_add_u32 v{TT+1}, 896, v{TT+1}")
    a(f"v_lshlrev_b32 v{TT+2}, 3, v0")
    a(f"buffer_load_dwordx2 {vr(SK,2)}, v{TT+2}, s[72:75], 0 offen")
    a.uid += 1

def side_chunks(n):
    b = Asm(); b.uid = 9000
    side_compute(b)
    L = [l.strip() for l in b.lines]
    out = []; per = (len(L) + n - 1) // n; cur = []
    for i, l in enumerate(L):
        cur.append(l)
        nxt = L[i+1] if i + 1 < len(L) else ""
        ok = not (l.startswith(("s_nop", "v_exp", "v_rcp", "v_mov_b32", "ds_", "s_add_u32 s6", "s_addc", "s_mov_b32 s")) or nxt.startswith(("s_nop", "v_permlane", "s_waitcnt")))
        if len(cur) >= per and ok:
            out.append("\n".join(cur)); cur = []
    if cur: out.append("\n".join(cur))
    return out

def side_compute(a):
    R = V_SD; K = R; V = R + 11; SK = R + 20; W = R + 32; GX = R + 24; GW = R + 28; TT = R + 36; A0 = R + 44
    tag = a.uid; a.uid += 1
    srd(a, 64, 26, WS_UT, 448 * 4096)
    srd(a, 68, 26, WS_G, 2048 * 4)
    srd(a, 72, 26, WS_WO, 14 * 256 * 1024)
    a(f"v_lshrrev_b32 v{TT}, 5, v{V_LANE}")
    a(f"v_bfe_u32 v{TT+1}, v{V_LANE}, 2, 2")
    a(f"v_lshl_add_u32 v{TT}, v{TT}, 2, v{TT+1}")
    a(f"v_mul_u32_u24 v{TT}, 896, v{TT}")
    a(f"v_bfe_u32 v{TT+1}, v{V_LANE}, 4, 1")
    a(f"v_lshl_add_u32 v{TT}, v{TT+1}, 5, v{TT}")
    a(f"v_and_b32 v{TT+1}, 3, v{V_LANE}")
    a(f"v_lshl_add_u32 v{TT}, v{TT+1}, 3, v{TT}")
    a(f"s_lshl_b32 s81, s{S_WAVE}, 6")
    a("s_add_u32 s81, s81, 131072")
    a(f"v_add_u32 v{TT}, s81, v{TT}")
    a(f"ds_read_b64_tr_b16 {vr(A0,2)}, v{TT}")
    a(f"ds_read_b64_tr_b16 {vr(A0+2,2)}, v{TT} offset:{8*896}")
    a(f"ds_read_b64_tr_b16 {vr(W,2)}, v{TT} offset:512")
    a(f"ds_read_b64_tr_b16 {vr(W+2,2)}, v{TT} offset:{8*896+512}")
    a(f"v_lshlrev_b32 v{TT+1}, 4, v{V_LANE}")
    a(f"s_lshl_b32 s81, s{S_WAVE}, 18")
    a("s_lshl_b32 s82, s2, 10")
    a("s_add_u32 s81, s81, s82")
    a("s_waitcnt lgkmcnt(0)")
    a(f"buffer_store_dwordx4 {vr(A0,4)}, v{TT+1}, s[72:75], s81 offen")
    a(f"s_add_u32 s81, s81, {8<<18}")
    a(f"buffer_store_dwordx4 {vr(W,4)}, v{TT+1}, s[72:75], s81 offen")
    a(f"v_mov_b32 v{TT+3}, 0")
    for j in range(4):
        a(f"v_lshlrev_b32 v{TT+4}, 16, v{GX+j}")
        a(f"v_lshlrev_b32 v{TT+5}, 16, v{GW+j}")
        a(f"v_and_b32 v{TT+6}, 0xffff0000, v{GX+j}")
        a(f"v_and_b32 v{TT+7}, 0xffff0000, v{GW+j}")
        a(f"v_mul_f32 v{TT+4}, v{TT+4}, v{TT+5}")
        a(f"v_mul_f32 v{TT+6}, v{TT+6}, v{TT+7}")
        a(f"v_cvt_pk_bf16_f32 v{TT+4}, v{TT+4}, v{TT+6}")
        a(f"v_lshlrev_b32 v{TT+5}, 16, v{TT+4}")
        a(f"v_and_b32 v{TT+6}, 0xffff0000, v{TT+4}")
        a(f"v_add_f32 v{TT+3}, v{TT+3}, v{TT+5}")
        a(f"v_add_f32 v{TT+3}, v{TT+3}, v{TT+6}")
    for off in (0x041F, 0x081F, 0x101F, 0x201F, 0x401F):
        a(f"ds_swizzle_b32 v{TT+4}, v{TT+3} offset:{off}")
        a("s_waitcnt lgkmcnt(0)")
        a(f"v_add_f32 v{TT+3}, v{TT+3}, v{TT+4}")
    a(f"v_mov_b32 v{TT+4}, v{TT+3}")
    a("s_nop 1")
    a(f"v_permlane32_swap_b32 v{TT+3}, v{TT+4}")
    a(f"v_add_f32 v{TT+3}, v{TT+3}, v{TT+4}")
    a(f"v_cvt_pk_bf16_f32 v{TT+3}, v{TT+3}, v{TT+3}")
    a(f"v_lshlrev_b32 v{TT+3}, 16, v{TT+3}")
    a(f"v_mul_f32 v{TT+3}, 0xbfb8aa3b, v{TT+3}")
    a(f"v_exp_f32 v{TT+3}, v{TT+3}")
    a("s_nop 0")
    a(f"v_add_f32 v{TT+3}, 1.0, v{TT+3}")
    a(f"v_rcp_f32 v{TT+3}, v{TT+3}")
    a("s_nop 0")
    a(f"v_cvt_pk_bf16_f32 v{TT+3}, v{TT+3}, v{TT+3}")
    a(f"v_lshlrev_b32 v{TT+3}, 16, v{TT+3}")
    a(f"s_add_u32 s81, s80, s{S_WAVE}")
    a("s_lshl_b32 s81, s81, 2")
    a(f"v_mov_b32 v{TT+4}, s81")
    a(f"buffer_store_dword v{TT+3}, v{TT+4}, s[68:71], 0 offen")
    for j in range(11): a(f"v_lshlrev_b32 v{K+j}, 16, v{K+j}")
    for j in range(8): a(f"v_lshlrev_b32 v{V+j}, 16, v{V+j}")
    a("s_nop 0")
    a(f"v_lshlrev_b32 v{W}, 16, v{SK}")
    a(f"v_and_b32 v{W+1}, 0xffff0000, v{SK}")
    a(f"v_lshlrev_b32 v{W+2}, 16, v{SK+1}")
    a(f"v_and_b32 v{W+3}, 0xffff0000, v{SK+1}")
    for i in range(0, 8, 2):
        p0, p1, pk, c0, c1 = TT, TT + 1, TT + 2, TT + 3, TT + 4
        a(f"v_mul_f32 v{p0}, v{K+i}, v{W+3}")
        a(f"v_mul_f32 v{p1}, v{K+i+1}, v{W+3}")
        a(f"v_cvt_pk_bf16_f32 v{pk}, v{p0}, v{p1}")
        a(f"v_lshlrev_b32 v{c0}, 16, v{pk}")
        a(f"v_and_b32 v{c1}, 0xffff0000, v{pk}")
        for off, w in ((1, 2), (2, 1), (3, 0)):
            a(f"v_mul_f32 v{p0}, v{K+i+off}, v{W+w}")
            a(f"v_mul_f32 v{p1}, v{K+i+1+off}, v{W+w}")
            a(f"v_cvt_pk_bf16_f32 v{pk}, v{p0}, v{p1}")
            a(f"v_lshlrev_b32 v{p0}, 16, v{pk}")
            a(f"v_and_b32 v{p1}, 0xffff0000, v{pk}")
            a(f"v_add_f32 v{c0}, v{c0}, v{p0}")
            a(f"v_add_f32 v{c1}, v{c1}, v{p1}")
            a(f"v_cvt_pk_bf16_f32 v{pk}, v{c0}, v{c1}")
            a(f"v_lshlrev_b32 v{c0}, 16, v{pk}")
            a(f"v_and_b32 v{c1}, 0xffff0000, v{pk}")
        a(f"v_mul_f32 v{c0}, v{c0}, v{V+i}")
        a(f"v_mul_f32 v{c1}, v{c1}, v{V+i+1}")
        a(f"v_cvt_pk_bf16_f32 v{A0+3-i//2}, v{c1}, v{c0}")
    a(f"v_lshlrev_b32 v{TT+1}, 12, v0")
    a("s_lshl_b32 s81, s80, 1")
    a(f"buffer_store_dwordx4 {vr(A0,4)}, v{TT+1}, s[64:67], s81 offen")

def gen_proj(a, name="proj_kernel"):
    T = V_T
    a.raw(f".globl {name}\n.p2align 8\n.type {name},@function\n{name}:")
    a("s_cmp_ge_u32 s2, 256")
    a("s_cbranch_scc1 L_proj_end")
    a("s_load_dwordx2 s[4:5], s[0:1], 0")
    a("s_load_dwordx2 s[6:7], s[0:1], 56")
    a("s_load_dwordx2 s[20:21], s[0:1], 64")
    a("s_load_dwordx2 s[22:23], s[0:1], 72")
    a("s_load_dwordx2 s[24:25], s[0:1], 80")
    a("s_load_dwordx2 s[26:27], s[0:1], 120")
    a("s_load_dwordx2 s[56:57], s[0:1], 8")
    a("s_load_dwordx2 s[58:59], s[0:1], 16")
    a("s_load_dwordx2 s[60:61], s[0:1], 24")
    a("s_load_dwordx2 s[62:63], s[0:1], 96")
    a("s_load_dwordx2 s[86:87], s[0:1], 88")
    a(f"v_lshrrev_b32 v{T}, 6, v0")
    a(f"v_and_b32 v{V_LANE}, 63, v0")
    a(f"v_readfirstlane_b32 s{S_WAVE}, v{T}")
    a("s_nop 3")
    a(f"s_lshr_b32 s{S_WS_}, s{S_WAVE}, 2")
    a(f"s_and_b32 s{S_WN_}, s{S_WAVE}, 3")
    a(f"s_lshl_b32 s{S_M0W}, s{S_WAVE}, 12")
    a("s_and_b32 s48, s2, 7")
    a("s_lshr_b32 s49, s2, 3")
    a("s_and_b32 s50, s49, 3")
    a("s_lshl_b32 s51, s48, 2")
    a("s_add_u32 s50, s50, s51")
    a("s_lshr_b32 s51, s49, 2")
    a("s_lshl_b32 s40, s51, 8")
    a("s_and_b32 s52, s50, 15")
    a("s_lshl_b32 s41, s52, 9")
    a(f"v_lshrrev_b32 v{T}, 5, v{V_LANE}")
    a(f"v_and_b32 v{T+1}, 31, v{V_LANE}")
    a(f"v_lshlrev_b32 v{T+2}, 2, v{T}")
    a(f"v_xor_b32 v{T+1}, v{T+1}, v{T+2}")
    a(f"v_lshlrev_b32 v{T+3}, 13, v{T}")
    a(f"v_lshl_add_u32 v{V_WOFF}, v{T+1}, 4, v{T+3}")
    a(f"v_xor_b32 v{T+1}, 8, v{T+1}")
    a(f"v_lshl_add_u32 v{V_WOFF+1}, v{T+1}, 4, v{T+3}")
    a(f"v_lshrrev_b32 v{T+1}, 5, v{V_LANE}")
    a(f"v_bfe_u32 v{T}, v{V_LANE}, 2, 2")
    a(f"v_lshl_add_u32 v{T+2}, v{T+1}, 3, v{T}")
    a(f"v_lshlrev_b32 v{T+2}, 9, v{T+2}")
    a(f"v_bfe_u32 v{T+3}, v{V_LANE}, 4, 1")
    a(f"v_lshl_add_u32 v{T+2}, v{T+3}, 5, v{T+2}")
    a(f"v_bfe_u32 v{T+3}, v{V_LANE}, 1, 1")
    a(f"v_lshl_add_u32 v{T+2}, v{T+3}, 4, v{T+2}")
    a(f"v_and_b32 v{T+3}, 1, v{V_LANE}")
    a(f"v_lshl_add_u32 v{T+2}, v{T+3}, 3, v{T+2}")
    a(f"v_add_u32 v{T+2}, 0x8000, v{T+2}")
    for nb in range(2):
        a(f"s_lshl_b32 s{S_TMP}, s{S_WN_}, 1")
        a(f"s_add_u32 s{S_TMP}, s{S_TMP}, {nb}")
        a(f"v_xor_b32 v{T+3}, s{S_TMP}, v{T}")
        a(f"v_lshl_add_u32 v{V_WA+nb}, v{T+3}, 6, v{T+2}")
        a(f"v_add_u32 v{V_WA+2+nb}, 0x10000, v{V_WA+nb}")
    a("s_waitcnt lgkmcnt(0)")
    if STAMP: srd(a, 96, 26, 200 << 20, 1 << 20)
    stamp(a)
    srd(a, S_X, 6, 0, 2048 * 1024 * 2)
    a("s_and_b32 s53, s49, 1")
    a("s_lshl_b32 s54, s48, 1")
    a("s_add_u32 s53, s53, s54")
    a("s_lshr_b32 s54, s49, 1")
    a("s_lshl_b32 s54, s54, 7")
    a("s_lshl_b32 s55, s53, 9")
    jq = Job(a, 128, 7, 896, False, S_X, S_W, S_O)
    def q_prefetch():
        srd(a, S_X, 4, 0, 2048 * 448 * 2)
        srd(a, S_W, 20, 0, 448 * 4096 * 2)
        jq.setup_dma(54, 55)
        jq.dma(0, 0); jq.dma(1, 1)
    def q_l2pf(i):
        uid = a.newlabel("qp")
        a(f"s_lshr_b32 s81, s{S_WAVE}, 1")
        a(f"s_cmp_lg_u32 s81, {i}")
        a(f"s_cbranch_scc1 L_{uid}")
        if i < 3:
            pass
        a("s_and_b32 s81, s49, 1")
        a("s_lshl_b32 s81, s81, 6")
        a("s_add_u32 s81, s81, s54")
        a("s_mul_i32 s81, s81, 896")
        a(f"s_lshl_b32 s82, s{S_WAVE}, 7")
        a("s_add_u32 s81, s81, s82")
        a(f"v_mul_u32_u24 v{T}, 896, v{V_LANE}")
        if i == 3:
            a(f"s_cmp_eq_u32 s{S_WAVE}, 7")
            a(f"s_cbranch_scc1 L_{uid}_w")
        a(f"buffer_load_dword v{T+2}, v{T}, s[44:47], s81 offen")
        if i == 3:
            a(f"s_branch L_{uid}")
            a.label(f"L_{uid}_w")
            srd(a, 72, 20, 0, 448 * 4096 * 2)
            a("s_lshr_b32 s81, s49, 1")
            a("s_mul_i32 s81, s81, 28")
            a("s_lshl_b32 s81, s81, 13")
            a("s_add_u32 s81, s81, s55")
            a(f"v_lshrrev_b32 v{T+1}, 2, v{V_LANE}")
            a(f"v_lshlrev_b32 v{T+1}, 13, v{T+1}")
            a(f"v_and_b32 v{T+3}, 3, v{V_LANE}")
            a(f"v_lshl_add_u32 v{T+1}, v{T+3}, 7, v{T+1}")
            a(f"buffer_load_dword v{T+3}, v{T+1}, s[72:75], s81 offen")
            a(f"s_add_u32 s81, s81, {16*8192}")
            a(f"buffer_load_dword v{T+2}, v{T+1}, s[72:75], s81 offen")
        a.label(f"L_{uid}")
    def big_pf():
        a("s_mov_b32 s72, s6\ns_mov_b32 s73, s7\ns_mov_b32 s74, 4194304\ns_lshl_b32 s81, s2, 14")
        for lo, ptr, nb, sh in ((1, 22, 8388608, 32768), (3, 24, 8388608, 32768), (5, 20, 3670016, 14336), (6, 4, 1835008, 7168)):
            a(f"s_cmp_ge_u32 s{S_WAVE}, {lo}")
            a(f"s_cselect_b32 s72, s{ptr}, s72\ns_cselect_b32 s73, s{ptr+1}, s73\ns_cselect_b32 s74, {nb}, s74")
            a(f"s_mul_i32 s82, s2, {sh}")
            a("s_cselect_b32 s81, s82, s81")
        a("s_mov_b32 s75, 0x00020000")
        a(f"s_cmp_eq_u32 s{S_WAVE}, 2\ns_cselect_b32 s82, 16384, 0\ns_cmp_eq_u32 s{S_WAVE}, 4\ns_cselect_b32 s82, 16384, s82")
        a("s_add_u32 s81, s81, s82")
        a(f"v_lshlrev_b32 v{T}, 7, v{V_LANE}")
        a(f"buffer_load_dword v{T+2}, v{T}, s[72:75], s81 offen")
        a("s_add_u32 s81, s81, 8192")
        a(f"buffer_load_dword v{T+3}, v{T}, s[72:75], s81 offen")
    a("s_cmp_ge_u32 s50, 16")
    a("s_cbranch_scc1 L_proj_v")
    for vtype in (False, True):
        if vtype: a.label("L_proj_v")
        srd(a, S_W, 24 if vtype else 22, 0, 1024 * 4096 * 2)
        srd(a, S_O, 26, WS_VT if vtype else WS_K, 16 << 20)
        j = Job(a, 256, 16, 2048, vtype, S_X, S_W, S_O)
        j.setup_dma(40, 41)
        j.dma(0, 0)
        side_issue(a)
        j.setup_xa()
        a(f"v_and_b32 v{V_PF}, 31, v{V_LANE}")
        a(f"v_lshlrev_b32 v{V_PF}, 11, v{V_PF}")
        a(f"v_bfe_u32 v{V_PF+1}, v{V_LANE}, 2, 3")
        a(f"v_lshlrev_b32 v{V_PF+1}, 13, v{V_PF+1}")
        a(f"v_and_b32 v{T}, 3, v{V_LANE}")
        a(f"v_lshl_add_u32 v{V_PF+1}, v{T}, 7, v{V_PF+1}")
        if PFD:
            for pf in range(1, PFD):
                a(f"s_add_u32 s{S_TMP}, s{S_XOFF}, {pf*128}")
                a(f"buffer_load_dword v{V_PF+2}, v{V_PF}, s[{S_X}:{S_X+3}], s{S_TMP} offen")
                a(f"s_add_u32 s{S_TMP}, s{S_WOFF}, {pf*64*8192}")
                a(f"buffer_load_dword v{V_PF+3}, v{V_PF+1}, s[{S_W}:{S_W+3}], s{S_TMP} offen")
        ch = side_chunks(28)
        if BPF: big_pf()
        for t in range(16):
            pf = t + PFD if (PFD and t + PFD < 16) else None
            prev_pf = PFD and ((t - 1 + PFD < 16 and t > 0) or t == 0)
            w = (2 * (PFD - 1) if t == 0 else 2) if prev_pf else 0
            if BPF and t == 0: w += 2
            j.tile(t, w, t + 1 < 16, extras=ch, pf=pf, post_dma=((lambda i=t-QPF: q_l2pf(i)) if (QPF and QPF <= t < QPF + 4) else None))
        assert not ch
        a("s_barrier")
        if not vtype: stamp(a)
        q_prefetch()
        a("s_lshl_b32 s42, s52, 20")
        a(f"s_lshl_b32 s{S_TMP}, s{S_WS_}, 7")
        a(f"s_add_u32 s{S_TMP}, s{S_TMP}, s40")
        a(f"s_lshl_b32 s{S_TMP}, s{S_TMP}, 9")
        a(f"s_add_u32 s42, s42, s{S_TMP}")
        a(f"s_lshl_b32 s{S_TMP}, s{S_WN_}, {13 if vtype else 12}")
        a(f"s_add_u32 s42, s42, s{S_TMP}")
        for n, off in enumerate(kv_store_list(vtype, 42, S_O)):
            a(f"s_add_u32 s{56+n}, s42, {off}")
        pack_acc(a)
        if not vtype: a("s_branch L_proj_q")
    a.label("L_proj_q")
    stamp(a)
    jq.setup_xa()
    a(f"v_lshlrev_b32 v{V_PF}, 4, v{V_LANE}")
    st = [f"buffer_store_dwordx4 {vr(V_ACC+64+4*n,4)}, v{V_PF}, s[{S_O}:{S_O+3}], s{56+n} offen" + (" sc1" if SC1 else "") for n in range(16)]
    plan = [3, 3, 3, 3, 2, 2, 0]
    prev = 0
    for t in range(7):
        ex = []
        for ks in range(4):
            ex.append(st.pop(0) if ks < plan[t] else "s_nop 0")
        jq.tile(t, 6 if t == 0 else prev, 1 <= t < 6, extras=ex)
        prev = plan[t]
    srd(a, S_O, 26, WS_Q, 16 << 20)
    a("s_lshl_b32 s42, s53, 20")
    a(f"s_lshl_b32 s{S_TMP}, s{S_WS_}, 6")
    a(f"s_add_u32 s{S_TMP}, s{S_TMP}, s54")
    a(f"s_lshl_b32 s{S_TMP}, s{S_TMP}, 9")
    a(f"s_add_u32 s42, s42, s{S_TMP}")
    a(f"s_lshl_b32 s{S_TMP}, s{S_WN_}, 12")
    a(f"s_add_u32 s42, s42, s{S_TMP}")
    a("s_nop 7")
    stamp(a)
    jq.epilogue(42)
    if STAMP:
        a("s_waitcnt vmcnt(0)")
        stamp(a)
    a.label("L_proj_end")
    a("s_endpgm")
```

```python
import os
from asmlib import *
from k_conv3 import conv_issue, conv_run, conv_pre
from k_proj2 import WS_Q, WS_K, WS_VT, WS_CTX, WS_PART

PART_SLOT = 4 * 17 * 1024
LANE = 1
VK_OFF = 2
VV_OFF = 10
VKA = 12
VVA = 20
MC = 24; LSUM = 25
QREL = 29
T = 30
P = 48
SA = 64; SB_ = 96
O = 128
AQX = 0; AQY = 64; AF = 128; NF = 8
S_K = 8; S_V = 12; S_Q = 16; S_PT = 20; S_C = 24; S_DB = 28
S_WAVE = 32; S_N = 33; S_CNT = 34; S_KOFF = 35; S_VOFF = 36; S_TMP = 37; S_M0K = 38
S_QT = 39; S_PAR = 40; S_HEAD = 41; S_SLOT = 42; S_CC = 43; S_T8 = 44; S_TMP2 = 45; S_NEG = 46
S_KB = 47; S_VB = 48; S_KL = 49; S_VL = 50; S_KT = 51; S_VT = 52; S_QY = 53; S_KROT = 54; S_KDEL = 55; S_M0V = 56; S_SIG = 57
S_PS = 58; S_NY = 59; S_TMPK = 68; S_SIGP = 69; S_FBIT = 79
CEXP = 0.0625 * 1.4426950408889634
DEPTH = int(os.environ.get('DEPTH', '4'))
CW = int(os.environ.get('CW', '1'))
ACONV = int(os.environ.get('ACONV', '0'))
SV = int(os.environ.get('SV', '0'))
KBUF = 0; VBUF = 98304
STAMPA = int(os.environ.get("STAMPA", "0"))
_stn = [0]
def stamp(a):
    if not STAMPA: return
    i = _stn[0]; _stn[0] += 1
    a("s_memtime s[90:91]\ns_memrealtime s[92:93]\ns_waitcnt lgkmcnt(0)\nv_mov_b32 v46, s90\nv_mov_b32 v47, s92")
    a(f"s_lshl_b32 s94, s2, 8\ns_add_u32 s94, s94, {i*8}\nv_mov_b32 v41, s94")
    a(f"s_cmp_lg_u32 s{S_WAVE}, 0\ns_cbranch_scc1 L_sta_{i}")
    a("buffer_store_dwordx2 v[46:47], v41, s[96:99], 0 offen")
    a.label(f"L_sta_{i}")

def f2u(x):
    import struct
    return struct.unpack("<I", struct.pack("<f", x))[0]

def dmak_list():
    u = []
    for j in range(8):
        pre = ""
        if j % 4 == 0:
            pre = f"s_add_u32 m0, s{S_M0K}, {j*1024}\ns_add_u32 s{S_TMPK}, s{S_KOFF}, {j*1024}\n"
        u.append(pre + f"buffer_load_dwordx4 v{VK_OFF}, s[{S_K}:{S_K+3}], s{S_TMPK} offen offset:{(j%4)*1024} lds")
    u.append(f"s_add_u32 s{S_KOFF}, s{S_KOFF}, 32768\ns_sub_u32 s{S_KL}, s{S_KL}, 1\ns_cmp_eq_u32 s{S_KL}, 0\n"
             f"s_cselect_b32 s{S_KOFF}, s{S_KB}, s{S_KOFF}\ns_sub_u32 s{S_KT}, s{S_KT}, 1\ns_cmp_eq_u32 s{S_KT}, 0\n"
             f"s_cselect_b32 s{S_KOFF}, 0x80000000, s{S_KOFF}\ns_cselect_b32 s{S_KB}, 0x80000000, s{S_KB}")
    u.append(f"s_add_u32 s{S_M0K}, s{S_M0K}, 32768\ns_cmp_ge_u32 s{S_M0K}, 98304\ns_cselect_b32 s{S_TMPK}, 98304, 0\n"
             f"s_sub_u32 s{S_M0K}, s{S_M0K}, s{S_TMPK}")
    return u
def dmav_list(buf):
    u = []
    for j in range(8):
        pre = ""
        if j % 4 == 0:
            pre = f"s_add_u32 m0, s{S_M0V}, {VBUF + buf*32768 + j*1024}\ns_add_u32 s{S_TMPK}, s{S_VOFF}, {j*1024}\n"
        u.append(pre + f"buffer_load_dwordx4 v{VK_OFF}, s[{S_V}:{S_V+3}], s{S_TMPK} offen offset:{(j%4)*1024} lds")
    u.append(f"s_add_u32 s{S_VOFF}, s{S_VOFF}, 32768\ns_sub_u32 s{S_VL}, s{S_VL}, 1\ns_cmp_eq_u32 s{S_VL}, 0\n"
             f"s_cselect_b32 s{S_VOFF}, s{S_VB}, s{S_VOFF}\ns_sub_u32 s{S_VT}, s{S_VT}, 1\ns_cmp_eq_u32 s{S_VT}, 0\n"
             f"s_cselect_b32 s{S_VOFF}, 0x80000000, s{S_VOFF}\ns_cselect_b32 s{S_VB}, 0x80000000, s{S_VB}")
    return u
def krot_list():
    u = [f"s_add_u32 s{S_KROT}, s{S_KROT}, 1\ns_mov_b32 s{S_KDEL}, 32768\ns_cmp_eq_u32 s{S_KROT}, 3\ns_cselect_b32 s{S_KDEL}, 0xffff0000, s{S_KDEL}\n"
         f"s_cselect_b32 s{S_KROT}, 0, s{S_KROT}"]
    u.append(f"v_add_u32 v{VKA}, s{S_KDEL}, v{VKA}")
    return u

def rd_k(f):
    return f"v{VKA} offset:{f*1024}"
def rd_v(vbuf, f):
    ks, db = f >> 3, f & 7
    return f"v{VVA} offset:{vbuf*32768 + (db*4+ks)*1024}"

def softmax_valu(S, masked, uid):
    v = []
    if masked:
        v.append(f"v_mov_b32 v{T+8}, 0xff800000")
        for i in range(0, 32, 4):
            blk = []
            for u in range(4):
                e = i + u; kb, r = e >> 4, e & 15
                ko = 32 * kb + 8 * (r >> 2) + (r & 3)
                blk.append(f"v_cmp_lt_i32 s[{60+2*u}:{61+2*u}], v{QREL}, {ko}")
            for u in range(4):
                blk.append(f"v_cndmask_b32 v{S+i+u}, v{S+i+u}, v{T+8}, s[{60+2*u}:{61+2*u}]")
            v.append("\n".join(blk))
    v.append(f"v_max3_f32 v{T}, v{S}, v{S+1}, v{S+2}")
    v.append(f"v_max3_f32 v{T+1}, v{S+3}, v{S+4}, v{S+5}")
    for i in range(6, 30, 4):
        v.append(f"v_max3_f32 v{T}, v{T}, v{S+i}, v{S+i+1}")
        v.append(f"v_max3_f32 v{T+1}, v{T+1}, v{S+i+2}, v{S+i+3}")
    v.append(f"v_max3_f32 v{T}, v{T}, v{S+30}, v{S+31}")
    v.append(f"v_max_f32 v{T}, v{T}, v{T+1}")
    v.append(f"v_mov_b32 v{T+1}, v{T}\ns_nop 1\nv_permlane32_swap_b32 v{T}, v{T+1}\nv_max_f32 v{T}, v{T}, v{T+1}\n"
             f"v_fma_f32 v{T+1}, v{T}, s{S_CC}, -v{MC}\nv_cmp_lt_f32 vcc, s{S_T8}, v{T+1}\ns_cbranch_vccnz L_resc_{uid}\nL_resc_ret_{uid}:")
    nmax = len(v)
    for i in range(32):
        v.append(f"v_fma_f32 v{S+i}, v{S+i}, s{S_CC}, -v{MC}")
        if i >= 1: v.append(f"v_exp_f32 v{S+i-1}, v{S+i-1}")
        if i >= 3: v.append(f"v_add_f32 v{LSUM+((i-3)&3)}, v{LSUM+((i-3)&3)}, v{S+i-3}")
        if i >= 4 and (i & 1) == 0: v.append(f"v_cvt_pk_bf16_f32 v{P+(i-4)//2}, v{S+i-4}, v{S+i-3}")
    v.append(f"v_exp_f32 v{S+31}, v{S+31}")
    v.append(f"v_add_f32 v{LSUM+1}, v{LSUM+1}, v{S+29}")
    v.append(f"v_add_f32 v{LSUM+2}, v{LSUM+2}, v{S+30}")
    v.append(f"v_add_f32 v{LSUM+3}, v{LSUM+3}, v{S+31}")
    v.append(f"v_cvt_pk_bf16_f32 v{P+14}, v{S+28}, v{S+29}")
    v.append(f"v_cvt_pk_bf16_f32 v{P+15}, v{S+30}, v{S+31}")
    return v, nmax

def rescale_block(a, uid):
    a.label(f"L_resc_{uid}")
    a(f"v_mul_f32 v{T+1}, s{S_CC}, v{T}")
    a(f"v_max_f32 v{T+1}, v{T+1}, v{MC}")
    a(f"v_sub_f32 v{T+2}, v{MC}, v{T+1}")
    a(f"v_exp_f32 v{T+2}, v{T+2}")
    a(f"v_mov_b32 v{MC}, v{T+1}")
    for i in range(4): a(f"v_mul_f32 v{LSUM+i}, v{LSUM+i}, v{T+2}")
    for i in range(128): a(f"v_mul_f32 v{O+i}, v{O+i}, v{T+2}")
    a(f"s_branch L_resc_ret_{uid}")

def qk_items(Sn, AQ):
    items = []
    for f in range(32):
        kb, ks = f >> 4, f & 15
        def mf(fr, kb=kb, ks=ks):
            c = "0" if ks == 0 else vr(Sn + 16 * kb, 16)
            return f"v_mfma_f32_32x32x16_bf16 {vr(Sn+16*kb,16)}, {ar(fr,4)}, {ar(AQ+4*ks,4)}, {c}"
        items.append((rd_k(f), mf))
    return items
def pv_items(vbuf):
    items = []
    for f in range(32):
        ks, db = f >> 3, f & 7
        def mf(fr, ks=ks, db=db):
            return f"v_mfma_f32_32x32x16_bf16 {vr(O+16*db,16)}, {ar(fr,4)}, {vr(P+4*ks,4)}, {vr(O+16*db,16)}"
        items.append((rd_v(vbuf, f), mf))
    return items

def emit_stream(a, items, extras, preread_done, next_pre):
    n = len(items)
    assert n % NF == 0
    if not preread_done:
        for i in range(DEPTH): a(f"ds_read_b128 {ar(AF+4*(i%NF),4)}, {items[i][0]}")
    for i in range(n):
        tail = next_pre is not None
        outstanding = DEPTH - 1 if (tail or i + DEPTH <= n) else n - 1 - i
        if i % 2 == 0:
            o2 = DEPTH - 2 if (tail or i + DEPTH <= n) else max(0, n - 2 - i)
            a(f"s_waitcnt lgkmcnt({o2})")
        a(items[i][1](AF + 4 * (i % NF)))
        j = i + DEPTH
        if j < n:
            a(f"ds_read_b128 {ar(AF+4*(j%NF),4)}, {items[j][0]}")
        elif tail:
            for x in extras.get(("pre", j - n), []): a(x)
            a(f"ds_read_b128 {ar(AF+4*(j%NF),4)}, {next_pre[j-n]}")
        for x in extras.get(i, []): a(x)

def spread(extras, units, lo, hi):
    n = len(units)
    for k, u in enumerate(units):
        s = lo + (k * (hi - lo)) // n
        extras.setdefault(s, []).append(u)

def step(a, par, kind, resc):
    Sc = SA if par == 0 else SB_
    Sn = SB_ if par == 0 else SA
    uid = a.newlabel("a"); resc.append(uid)
    last = kind in ('ym', 'yl')
    sm, nmax = softmax_valu(Sc, last, uid)
    if kind == 'ym': sm.append(f"v_subrev_u32 v{QREL}, 64, v{QREL}")
    extras = {}
    dk = dmak_list(); dv = dmav_list(par ^ 1); kr = krot_list()
    AB = int(os.environ.get("ABLA", "0"))
    if AB & 1: dk = []; dv = []
    if AB & 2: sm = sm[:nmax]
    if AB & 4: sm = []; nmax = 0
    if kind != 'yl':
        AQ = AQY if kind in ('xl', 'yn', 'ym') else AQX
        items = qk_items(Sn, AQ) + pv_items(par)
        spread(extras, sm[:nmax], 0, 6 if not last else 12)
        spread(extras, sm[nmax:], 6 if not last else 12, 54)
        if SV == 0:
            spread(extras, dv, 2, 30); spread(extras, dk, 36, 62)
        elif SV == 1:
            spread(extras, dv, 2, 20); spread(extras, dk, 54, 64)
        elif SV == 2:
            spread(extras, dv, 8, 40); spread(extras, dk, 40, 64)
        spread(extras, kr, 50, 56)
        if kind in ('yn', 'ym'):
            extras.setdefault(34, []).append(flag_unit(a))
        if kind == 'ym':
            extras.setdefault(1, []).append(f"buffer_load_dword v{T+12}, v{T+13}, s[{S_DB}:{S_DB+3}], 0 offen sc1")
        emit_stream(a, items, extras, True, [rd_k(f) for f in range(DEPTH)])
    else:
        uid2 = a.newlabel("fs")
        a(f"s_mov_b32 s{S_SIG}, 1")
        a(f"s_cmp_eq_u32 s{S_PAR}, 0")
        a(f"s_cbranch_scc1 L_go_{uid2}")
        a("s_waitcnt vmcnt(8)")
        stamp(a)
        a(f"v_readfirstlane_b32 s{S_SIG}, v{T+12}")
        a("s_nop 3")
        a(f"s_and_b32 s{S_SIG}, s{S_SIG}, s{S_FBIT}")
        a(f"s_cmp_eq_u32 s{S_SIG}, 0")
        a(f"s_cbranch_scc1 L_late_{uid2}")
        partner_prefetch(a)
        a(f"s_branch L_go_{uid2}")
        a.label(f"L_late_{uid2}")
        a(f"buffer_load_dword v{T+12}, v{T+13}, s[{S_DB}:{S_DB+3}], 0 offen sc1")
        a.label(f"L_go_{uid2}")
        a("s_waitcnt lgkmcnt(0)")
        items = pv_items(par)
        for i in range(DEPTH): a(f"ds_read_b128 {ar(AF+4*(i%NF),4)}, {items[i][0]}")
        for x in sm: a(x)
        a(f"s_cmp_lg_u32 s{S_SIG}, 0")
        a(f"s_cbranch_scc1 L_go2_{uid2}")
        partner_prefetch(a)
        a.label(f"L_go2_{uid2}")
        stamp(a)
        a("s_nop 1")
        emit_stream(a, items, extras, True, None)

def partner_prefetch(a):
    uid = a.newlabel("pp")
    a.label(f"L_poll_{uid}")
    a("s_waitcnt vmcnt(0)")
    a(f"v_readfirstlane_b32 s{S_TMP}, v{T+12}")
    a("s_nop 3")
    a(f"s_and_b32 s{S_TMP}, s{S_TMP}, s{S_FBIT}")
    a(f"s_cmp_lg_u32 s{S_TMP}, 0")
    a(f"s_cbranch_scc1 L_pok_{uid}")
    a("s_sleep 1")
    a(f"buffer_load_dword v{T+12}, v{T+13}, s[{S_DB}:{S_DB+3}], 0 offen sc1")
    a(f"s_branch L_poll_{uid}")
    a.label(f"L_pok_{uid}")
    a(f"s_mul_i32 s{S_TMP}, s{S_PS}, {PART_SLOT}")
    a(f"s_mul_i32 s{S_TMP2}, s{S_WAVE}, {17*1024}")
    a(f"s_add_u32 s{S_TMP}, s{S_TMP}, s{S_TMP2}")
    a(f"v_lshlrev_b32 v{T+4}, 4, v{LANE}")
    for c in range(16):
        if c and c % 4 == 0: a(f"s_add_u32 s{S_TMP}, s{S_TMP}, 4096")
        a(f"buffer_load_dwordx4 {ar(160+4*c,4)}, v{T+4}, s[{S_PT}:{S_PT+3}], s{S_TMP} offen offset:{(c%4)*1024} sc1")
    a(f"s_add_u32 s{S_TMP}, s{S_TMP}, 4096")
    a(f"buffer_load_dwordx2 {vr(T+14,2)}, v{T+4}, s[{S_PT}:{S_PT+3}], s{S_TMP} offen sc1")

def flag_unit(a):
    uid = a.newlabel("sg")
    return (f"s_cmp_eq_u32 s{S_SIGP}, 0\ns_cbranch_scc1 L_nosig_{uid}\ns_mov_b32 s{S_SIGP}, 0\ns_waitcnt vmcnt(8)\n"
            f"v_mov_b32 v{T+10}, s{S_FBIT}\ns_mov_b64 exec, 1\n"
            f"buffer_atomic_or v{T+10}, v{T+13}, s[{S_DB}:{S_DB+3}], 0 offen\ns_mov_b64 exec, -1\nL_nosig_{uid}:")

def top(a, sig):
    a("s_waitcnt vmcnt(8)")
    a("s_barrier")

def gen_attn(a, name="attn_kernel", conv=None):
    a.raw(f".globl {name}\n.p2align 8\n.type {name},@function\n{name}:")
    a("s_cmp_ge_u32 s2, 256")
    a("s_cbranch_scc1 L_attn_end")
    a("s_load_dwordx2 s[4:5], s[0:1], 120")
    a("s_load_dwordx2 s[6:7], s[0:1], 112")
    a("s_load_dwordx2 s[82:83], s[0:1], 32")
    a("s_load_dwordx2 s[84:85], s[0:1], 40")
    a(f"v_lshrrev_b32 v{T}, 6, v0")
    a(f"v_and_b32 v{LANE}, 63, v0")
    a(f"v_readfirstlane_b32 s{S_WAVE}, v{T}")
    a("s_and_b32 s70, s2, 7")
    a("s_lshr_b32 s71, s2, 3")
    a(f"s_and_b32 s{S_HEAD}, s71, 1")
    a("s_lshl_b32 s70, s70, 1")
    a(f"s_add_u32 s{S_HEAD}, s{S_HEAD}, s70")
    a("s_lshr_b32 s72, s71, 1")
    a("s_and_b32 s72, s72, 7")
    a(f"s_lshr_b32 s{S_PAR}, s71, 4")
    a(f"s_mov_b32 s{S_CC}, {f2u(CEXP)}")
    a(f"s_mov_b32 s{S_T8}, 0x41000000")
    a(f"s_mov_b32 s{S_NEG}, {f2u(-1e30)}")
    a(f"s_lshl_b32 s{S_M0K}, s{S_WAVE}, 13")
    a(f"s_lshl_b32 s{S_M0V}, s{S_WAVE}, 13")
    a(f"s_lshl_b32 s{S_SLOT}, s{S_HEAD}, 3")
    a(f"s_add_u32 s{S_SLOT}, s{S_SLOT}, s72")
    a(f"s_mov_b32 s{S_PS}, s{S_SLOT}")
    a(f"s_lshl_b32 s73, s{S_HEAD}, 20")
    a(f"s_sub_u32 s{S_QT}, 15, s72")
    a("s_lshl_b32 s74, s72, 1")
    a("s_sub_u32 s77, 15, s74")
    a("s_add_u32 s78, s74, 2")
    a(f"s_cmp_eq_u32 s{S_PAR}, 0")
    a(f"s_cselect_b32 s{S_QY}, s72, s{S_QT}")
    a(f"s_cselect_b32 s{S_N}, s77, 17")
    a(f"s_cselect_b32 s{S_NY}, s78, 17")
    a(f"s_cselect_b32 s{S_TMP}, 0, s77")
    a(f"s_mov_b32 s{S_KL}, s{S_N}\ns_mov_b32 s{S_VL}, s{S_N}\ns_mov_b32 s{S_KT}, 17\ns_mov_b32 s{S_VT}, 17")
    a(f"s_mov_b32 s{S_KROT}, 0\ns_mov_b32 s{S_SIGP}, 0\ns_mov_b32 s{S_CNT}, 0")
    a(f"s_lshl_b32 s{S_VB}, s{S_WAVE}, 13")
    a(f"s_mov_b32 s{S_KB}, s{S_VB}")
    a(f"s_lshl_b32 s{S_TMP}, s{S_TMP}, 15")
    a(f"s_add_u32 s{S_KOFF}, s{S_KB}, s{S_TMP}")
    a(f"s_mov_b32 s{S_VOFF}, s{S_KOFF}")
    a(f"v_lshlrev_b32 v{VK_OFF}, 4, v{LANE}")
    a(f"v_mov_b32 v{VKA}, v{VK_OFF}")
    a(f"v_add_u32 v{VVA}, {VBUF}, v{VK_OFF}")
    a("s_waitcnt lgkmcnt(0)")
    def srd_head(d, off):
        a(f"s_add_u32 s{d}, s4, {off}\ns_addc_u32 s{d+1}, s5, 0\ns_add_u32 s{d}, s{d}, s73\ns_addc_u32 s{d+1}, s{d+1}, 0")
        a(f"s_mov_b32 s{d+2}, {1<<20}\ns_mov_b32 s{d+3}, 0x00020000")
    srd_head(S_K, WS_K); srd_head(S_V, WS_VT); srd_head(S_Q, WS_Q)
    if ACONV:
        a("s_cmp_ge_u32 s2, 224")
        a("s_cbranch_scc1 L_noconv1")
        conv_issue(a, LANE)
        if CW: a("s_waitcnt vmcnt(0)")
        a.label("L_noconv1")
    if STAMPA: srd(a, 96, 4, 200 << 20, 1 << 20)
    stamp(a)
    for u in dmak_list(): a(u)
    a(f"v_and_b32 v{T}, 31, v{LANE}")
    a(f"v_lshrrev_b32 v{T+1}, 5, v{LANE}")
    a(f"s_lshl_b32 s{S_TMP2}, s{S_WAVE}, 5")
    a(f"v_add_u32 v{T+2}, s{S_TMP2}, v{T}")
    a(f"s_lshl_b32 s76, s{S_WAVE}, 14")
    a(f"s_lshl_b32 s75, s{S_QT}, 16")
    a("s_add_u32 s75, s75, s76")
    for ks in range(16):
        if ks and ks % 4 == 0: a("s_add_u32 s75, s75, 4096")
        a(f"buffer_load_dwordx4 {ar(AQX+4*ks,4)}, v{VK_OFF}, s[{S_Q}:{S_Q+3}], s75 offen offset:{(ks%4)*1024}")
    for u in dmav_list(0): a(u)
    for u in dmak_list(): a(u)
    a(f"v_lshlrev_b32 v{T+4}, 2, v{T+1}")
    a(f"v_sub_u32 v{QREL}, v{T+2}, v{T+4}")
    if ACONV:
        a("s_cmp_ge_u32 s2, 224")
        a("s_cbranch_scc1 L_noconv2")
        conv_pre(a, LANE, S_WAVE)
        conv_run(a, LANE, S_WAVE, 40, stamp)
        a("s_nop 1")
        a.label("L_noconv2")
    srd(a, S_PT, 4, WS_PART, 256 * PART_SLOT)
    srd(a, S_C, 4, WS_CTX, 16 << 20)
    srd(a, S_DB, 6, 0, 256)
    a(f"s_lshr_b32 s{S_TMP}, s{S_SLOT}, 3")
    a(f"s_lshl_b32 s{S_TMP}, s{S_TMP}, 2")
    a(f"v_mov_b32 v{T+13}, s{S_TMP}")
    a(f"s_and_b32 s{S_TMP}, s{S_SLOT}, 7")
    a(f"s_lshl_b32 s{S_TMP}, s{S_TMP}, 2")
    a(f"s_add_u32 s{S_TMP}, s{S_TMP}, s{S_WAVE}")
    a(f"s_lshl_b32 s{S_FBIT}, 1, s{S_TMP}")
    a(f"v_mov_b32 v{MC}, s{S_NEG}")
    for i in range(4): a(f"v_mov_b32 v{LSUM+i}, 0")
    for i in range(128): a(f"v_mov_b32 v{O+i}, 0")
    a("s_waitcnt vmcnt(16)")
    a("s_barrier")
    stamp(a)
    ex = {}
    spread(ex, dmak_list(), 0, 10)
    spread(ex, [f"s_lshl_b32 s75, s{S_QY}, 16\ns_add_u32 s75, s75, s76"] + [("s_add_u32 s75, s75, 4096\n" if (ks and ks % 4 == 0) else "") + f"buffer_load_dwordx4 {ar(AQY+4*ks,4)}, v{VK_OFF}, s[{S_Q}:{S_Q+3}], s75 offen offset:{(ks%4)*1024}" for ks in range(16)], 10, 28)
    spread(ex, krot_list(), 30, 32)
    emit_stream(a, qk_items(SA, AQX), ex, False, None)
    stamp(a)
    resc = []
    a("s_waitcnt vmcnt(0)")
    a("s_barrier")
    for i in range(DEPTH): a(f"ds_read_b128 {ar(AF+4*i,4)}, {rd_k(i)}")
    a(f"s_cmp_eq_u32 s{S_PAR}, 0")
    a("s_cbranch_scc1 L_x0_entry")
    a("s_branch L_y0_entry")
    for par in range(2):
        a.label(f"L_x{par}")
        top(a, False)
        if par == 0: a.label("L_x0_entry")
        a(f"s_add_u32 s{S_CNT}, s{S_CNT}, 1")
        a(f"s_cmp_ge_u32 s{S_CNT}, s{S_N}")
        a(f"s_cbranch_scc1 L_xl{par}")
        step(a, par, 'xn', resc)
        if par == 1: a("s_branch L_x0")
    for par in range(2):
        a.label(f"L_xl{par}")
        step(a, par, 'xl', resc)
        stamp(a)
        a(f"s_mul_i32 s{S_TMP}, s{S_SLOT}, {PART_SLOT}")
        a(f"s_mul_i32 s{S_TMP2}, s{S_WAVE}, {17*1024}")
        a(f"s_add_u32 s{S_TMP}, s{S_TMP}, s{S_TMP2}")
        a(f"v_lshlrev_b32 v{T+4}, 4, v{LANE}")
        a(f"v_add_f32 v{T+1}, v{LSUM}, v{LSUM+1}")
        a(f"v_add_f32 v{T+2}, v{LSUM+2}, v{LSUM+3}")
        a(f"v_mov_b32 v{T}, v{MC}")
        a(f"v_add_f32 v{T+1}, v{T+1}, v{T+2}")
        a(f"s_add_u32 s{S_TMP2}, s{S_TMP}, {16*1024}")
        a(f"buffer_store_dwordx2 {vr(T,2)}, v{T+4}, s[{S_PT}:{S_PT+3}], s{S_TMP2} offen sc1")
        a(f"v_mov_b32 v{MC}, s{S_NEG}")
        for i in range(4): a(f"v_mov_b32 v{LSUM+i}, 0")
        a("s_nop 4")
        Sc = SA if par == 0 else SB_
        for c in range(16):
            pk = Sc + (c % 8) * 4
            for u in range(4):
                a(f"v_cvt_pk_bf16_f32 v{pk+u}, v{O+8*c+2*u}, v{O+8*c+2*u+1}")
            if c and c % 4 == 0: a(f"s_add_u32 s{S_TMP}, s{S_TMP}, 4096")
            a(f"buffer_store_dwordx4 {vr(pk,4)}, v{T+4}, s[{S_PT}:{S_PT+3}], s{S_TMP} offen offset:{(c%4)*1024} sc1")
        a(f"s_mov_b32 s{S_CNT}, 0")
        a(f"s_mov_b32 s{S_N}, s{S_NY}")
        a(f"s_mov_b32 s{S_SIGP}, 1")
        a("s_waitcnt vmcnt(25)")
        a("s_barrier")
        a(f"s_branch L_y{par^1}_entry")
    for par in range(2):
        a.label(f"L_y{par}")
        top(a, True)
        a.label(f"L_y{par}_entry")
        a(f"s_add_u32 s{S_CNT}, s{S_CNT}, 1")
        a(f"s_cmp_ge_u32 s{S_CNT}, s{S_N}")
        a(f"s_cbranch_scc1 L_yl{par}")
        a(f"s_add_u32 s{S_TMP2}, s{S_CNT}, 1")
        a(f"s_cmp_ge_u32 s{S_TMP2}, s{S_N}")
        a(f"s_cbranch_scc1 L_ym{par}")
        step(a, par, 'yn', resc)
        if par == 1: a("s_branch L_y0")
    for par in range(2):
        a.label(f"L_ym{par}")
        step(a, par, 'ym', resc)
        a(f"s_branch L_y{par^1}")
    for par in range(2):
        a.label(f"L_yl{par}")
        step(a, par, 'yl', resc)
        if par == 0: a("s_branch L_fin")
    a.label("L_fin")
    stamp(a)
    a(f"v_add_f32 v{T+1}, v{LSUM}, v{LSUM+1}")
    a(f"v_add_f32 v{T+2}, v{LSUM+2}, v{LSUM+3}")
    a(f"v_add_f32 v{T+1}, v{T+1}, v{T+2}")
    a(f"v_lshlrev_b32 v{T+4}, 4, v{LANE}")
    a(f"s_lshl_b32 s{S_TMP}, s{S_QY}, 2")
    a(f"s_add_u32 s{S_TMP}, s{S_TMP}, s{S_WAVE}")
    a(f"s_lshl_b32 s{S_TMP}, s{S_TMP}, 18")
    a(f"s_lshl_b32 s{S_TMP2}, s{S_HEAD}, 14")
    a(f"s_add_u32 s{S_TMP}, s{S_TMP}, s{S_TMP2}")
    a(f"s_cmp_lg_u32 s{S_PAR}, 0")
    a("s_cbranch_scc1 L_fin_merge")
    a(f"v_mov_b32 v{T+2}, v{T+1}")
    a("s_nop 1")
    a(f"v_permlane32_swap_b32 v{T+1}, v{T+2}")
    a(f"v_add_f32 v{T+1}, v{T+1}, v{T+2}")
    a(f"v_rcp_f32 v{T+8}, v{T+1}")
    a("s_nop 0")
    a(f"v_mov_b32 v{T+9}, v{T+8}")
    for c in range(16):
        r = O + 8 * c; pr = SA + 4 * c
        for i in range(4): a(f"v_pk_mul_f32 {vr(r+2*i,2)}, {vr(r+2*i,2)}, {vr(T+8,2)}")
        for i in range(4): a(f"v_cvt_pk_bf16_f32 v{pr+i}, v{r+2*i}, v{r+2*i+1}")
        if c and c % 4 == 0: a(f"s_add_u32 s{S_TMP}, s{S_TMP}, 4096")
        a(f"buffer_store_dwordx4 {vr(pr,4)}, v{T+4}, s[{S_C}:{S_C+3}], s{S_TMP} offen offset:{(c%4)*1024} sc1")
    a("s_branch L_fin_done")
    a.label("L_fin_merge")
    a("s_waitcnt vmcnt(0)")
    a(f"v_mov_b32 v{T+6}, v{T+14}\nv_mov_b32 v{T+7}, v{T+15}")
    for i in range(64): a(f"v_accvgpr_read_b32 v{SA+i}, a{160+i}")
    a(f"v_max_f32 v{T+2}, v{MC}, v{T+6}")
    a(f"v_sub_f32 v{T+3}, v{MC}, v{T+2}")
    a(f"v_sub_f32 v{T+5}, v{T+6}, v{T+2}")
    a(f"v_exp_f32 v{T+3}, v{T+3}")
    a(f"v_exp_f32 v{T+5}, v{T+5}")
    a("s_nop 0")
    a(f"v_mul_f32 v{T+1}, v{T+1}, v{T+3}")
    a(f"v_fma_f32 v{T+1}, v{T+7}, v{T+5}, v{T+1}")
    a(f"v_mov_b32 v{T+2}, v{T+1}")
    a("s_nop 1")
    a(f"v_permlane32_swap_b32 v{T+1}, v{T+2}")
    a(f"v_add_f32 v{T+1}, v{T+1}, v{T+2}")
    a(f"v_rcp_f32 v{T+1}, v{T+1}")
    a("s_nop 0")
    a(f"v_mul_f32 v{T+8}, v{T+3}, v{T+1}")
    a(f"v_mul_f32 v{T+10}, v{T+5}, v{T+1}")
    a(f"v_mov_b32 v{T+9}, v{T+8}\nv_mov_b32 v{T+11}, v{T+10}")
    for c in range(16):
        r = O + 8 * c; pr = SA + 4 * c
        u = P + (c % 2) * 8
        for i in range(4):
            a(f"v_lshlrev_b32 v{u+2*i}, 16, v{pr+i}")
            a(f"v_and_b32 v{u+2*i+1}, 0xffff0000, v{pr+i}")
        for i in range(4):
            a(f"v_pk_mul_f32 {vr(r+2*i,2)}, {vr(r+2*i,2)}, {vr(T+8,2)}")
        for i in range(4):
            a(f"v_pk_fma_f32 {vr(r+2*i,2)}, {vr(u+2*i,2)}, {vr(T+10,2)}, {vr(r+2*i,2)}")
        for i in range(4):
            a(f"v_cvt_pk_bf16_f32 v{pr+i}, v{r+2*i}, v{r+2*i+1}")
        if c and c % 4 == 0: a(f"s_add_u32 s{S_TMP}, s{S_TMP}, 4096")
        a(f"buffer_store_dwordx4 {vr(pr,4)}, v{T+4}, s[{S_C}:{S_C+3}], s{S_TMP} offen offset:{(c%4)*1024}" + (" sc1" if int(os.environ.get("SC1", "2")) >= 2 else ""))
    a.label("L_fin_done")
    if STAMPA:
        a("s_waitcnt vmcnt(0)")
        stamp(a)
    a.label("L_attn_end")
    a("s_endpgm")
    for uid in resc: rescale_block(a, uid)
```

```python
import os
from asmlib import *
from k_proj2 import WS_CTX, WS_Y2T, WS_G, WS_UT, WS_WO

STAMPO = int(os.environ.get("STAMPO", "0"))
_sto = [0]
def stamp(a):
    if not STAMPO: return
    i = _sto[0]; _sto[0] += 1
    a("s_memtime s[90:91]\ns_memrealtime s[92:93]\ns_waitcnt lgkmcnt(0)\nv_mov_b32 v30, s90\nv_mov_b32 v31, s92")
    a(f"s_lshl_b32 s94, s2, 8\ns_add_u32 s94, s94, {i*8}\nv_mov_b32 v29, s94")
    a(f"s_cmp_lg_u32 s32, 0\ns_cbranch_scc1 L_sto_{i}")
    a("buffer_store_dwordx2 v[30:31], v29, s[96:99], 0 offen")
    a.label(f"L_sto_{i}")

CPK = int(os.environ.get('CPK', '1')); PK1 = int(os.environ.get('PK1', '54')); PK2 = int(os.environ.get('PK2', '61'))
HYB = int(os.environ.get('HYB', '0')); SGD = int(os.environ.get('SGD', '7'))
HS = 4416; RG = (0, 32768); UO = 4 * HS; UPAD = 32 * 80
R0 = 152
CT = R0; HA = R0 + 10; UA = R0 + 11; UV = R0 + 12; DV = R0 + 20
LD = 176; HO = 196; FA = 200; FB = 212; RED = 176; CX = 240
CA = 64
S1 = 52; S2 = 56; S4 = 60; ST = 64
LANE = 1; S_WAVE = 32; S_Y = 24; S_DB = 76

def conv_chunks():
    T = CT
    C = []
    def ch(s): C.append(s)
    p = []
    p += [f"v_and_b32 v{T}, 31, v{LANE}", f"v_lshrrev_b32 v{T+1}, 5, v{LANE}", f"v_add_u32 v{T+2}, 1, v{T}", f"v_and_b32 v{T+2}, 3, v{T+2}",
          f"v_mul_u32_u24 v{HA}, {HS-2}, v{T+2}", f"v_lshl_add_u32 v{HA}, v{T}, 1, v{HA}", f"v_lshlrev_b32 v{T+3}, 4, v{T+1}", f"v_sub_u32 v{HA}, v{HA}, v{T+3}",
          f"s_lshl_b32 s{ST+2}, s{S_WAVE}, 6", f"s_add_u32 s{ST+2}, s{ST+2}, {RG[0]+114-32}", f"v_add_u32 v{HA}, s{ST+2}, v{HA}",
          f"v_mul_u32_u24 v{UA}, 80, v{T}", f"v_add_u32 v{UA}, v{UA}, v{T+3}", f"s_mul_i32 s{ST+2}, s{S_WAVE}, 80",
          f"s_sub_u32 s{ST+2}, {RG[0]+UO+UPAD-60*80}, s{ST+2}", f"v_add_u32 v{UA}, s{ST+2}, v{UA}"]
    p += [f"v_mov_b32 v{FA+i}, 0" for i in range(4)]
    p += [f"v_add_u32 v{T+5}, {RG[0]+UO}, v{T+4}", f"v_add_u32 v{T+6}, {RG[1]+UO}, v{T+4}", "v_cmp_gt_u32 vcc, 160, v0", "s_and_saveexec_b64 s[68:69], vcc",
          f"ds_write_b128 v{T+5}, {vr(FA,4)}", f"ds_write_b128 v{T+6}, {vr(FA,4)}", "s_mov_b64 exec, s[68:69]",
          f"v_lshrrev_b32 v{T+6}, 3, v0", f"v_mul_u32_u24 v{T+8}, {HS}, v{T+6}", f"v_and_b32 v{T+7}, 7, v0", f"v_lshl_add_u32 v{T+8}, v{T+7}, 4, v{T+8}",
          f"v_add_u32 v{T+5}, {RG[0]}, v{T+8}", f"v_add_u32 v{T+6}, {RG[1]}, v{T+8}", "v_cmp_gt_u32 vcc, 32, v0", "s_and_saveexec_b64 s[68:69], vcc",
          f"ds_write_b128 v{T+5}, {vr(FA,4)}", f"ds_write_b128 v{T+6}, {vr(FA,4)}", "s_mov_b64 exec, s[68:69]", "s_waitcnt lgkmcnt(0)", "s_barrier"]
    ch("\n".join(p))
    for c_ in range(2):
        H = LD + 10 * c_; U = H + 4
        p = []
        if c_ == 0:
            p += ["@WAITCONV", f"v_lshrrev_b32 v{T+7}, 2, v0", f"v_mul_u32_u24 v{T+7}, 80, v{T+7}", f"v_and_b32 v{T+6}, 3, v0", f"v_lshl_add_u32 v{T+7}, v{T+6}, 4, v{T+7}"]
        p += [f"v_alignbit_b32 v{HO+j}, v{H+j+1}, v{H+j}, 16" for j in range(3)] + [f"v_alignbit_b32 v{HO+3}, v{H+9}, v{H+3}, 16"]
        for c in range(4):
            src = H if c % 2 == 0 else HO
            byte = RG[c_] + c * HS + 128 - 2 * c + (2 if c % 2 else 0)
            p += [f"v_add_u32 v{T+8+(c&1)}, {byte}, v{T+4}", f"ds_write2_b32 v{T+8+(c&1)}, v{src}, v{src+1} offset0:0 offset1:1",
                  f"ds_write2_b32 v{T+8+(c&1)}, v{src+2}, v{src+3} offset0:2 offset1:3"]
        p += [f"v_add_u32 v{T+5}, {RG[c_]+UO+UPAD}, v{T+7}", f"ds_write_b128 v{T+5}, {vr(U,4)}", f"v_mov_b32 v{T+5}, {RG[c_]}", "v_cmp_eq_u32 vcc, 0, v0",
              "s_and_saveexec_b64 s[68:69], vcc"]
        p += [f"ds_write_b16 v{T+5}, v{H} offset:{c*HS + 128 - 2*c}" for c in (1, 3)]
        p += ["s_mov_b64 exec, s[68:69]", f"v_lshlrev_b32 v{DV+c_}, 16, v{H+8}"]
        if c_ == 1:
            p += [f"v_add_u32 v{T+8}, {RG[1]-RG[0]}, v{HA}", f"v_add_u32 v{T+9}, {RG[1]-RG[0]}, v{UA}", "s_waitcnt lgkmcnt(0)", "s_barrier"]
        ch("\n".join(p))
    steps = [(c_, i, ks) for c_ in range(2) for i in range(16) for ks in range(2)]
    PD = 2; cnt = []
    def issue(n):
        c_, i, ks = steps[n]; st = n % 3
        ha = HA if c_ == 0 else T + 8; ua = UA if c_ == 0 else T + 9
        o = 256 * i + (32 if ks == 0 else 0)
        r = [f"ds_read_b64 {vr(FA+4*st,2)}, v{ha} offset:{o}", f"ds_read_b64 {vr(FA+4*st+2,2)}, v{ha} offset:{o+8}",
             f"ds_read_b128 {vr(FB+8*st+4,4)}, v{ua} offset:{(60-4*i)*80 + 2560 + ks*32}"]
        if i < 8: r.append(f"ds_read_b128 {vr(FB+8*st,4)}, v{ua} offset:{(60-4*i)*80 + ks*32}")
        cnt.append(len(r)); return r
    p = issue(0) + issue(1)
    for n in range(64):
        c_, i, ks = steps[n]; st = n % 3
        if n + PD < 64: p += issue(n + PD)
        p.append(f"s_waitcnt lgkmcnt({sum(cnt[n+1:])})")
        A1 = CA + 32 * c_ + 16; A0 = CA + 32 * c_; first = (n % 32 == 0)
        p.append(f"v_mfma_f32_32x32x16_bf16 {ar(A1,16)}, {vr(FA+4*st,4)}, {vr(FB+8*st+4,4)}, {'0' if first else ar(A1,16)}")
        if i < 8: p.append(f"v_mfma_f32_32x32x16_bf16 {ar(A0,16)}, {vr(FA+4*st,4)}, {vr(FB+8*st,4)}, {'0' if first else ar(A0,16)}")
        if n % 2 == 1: ch("\n".join(p)); p = []
    p = [f"s_lshr_b32 s{ST+2}, s{S_WAVE}, 1", f"s_lshl_b32 s{ST+2}, s{ST+2}, 15", f"s_and_b32 s{ST+3}, s{S_WAVE}, 1", f"s_mul_i32 s{ST+3}, s{ST+3}, 2560",
         f"s_add_u32 s{ST+2}, s{ST+2}, s{ST+3}", f"s_add_u32 s{ST+2}, s{ST+2}, {RG[0]+UO+UPAD+8}", f"v_mul_u32_u24 v{T+7}, 80, v{T}", f"v_lshlrev_b32 v{T+3}, 3, v{T+1}",
         f"v_sub_u32 v{T+7}, v{T+7}, v{T+3}", f"v_add_u32 v{T+7}, s{ST+2}, v{T+7}"]
    p += [f"ds_read_b64 {vr(UV+2*q4,2)}, v{T+7} offset:{16*q4}" for q4 in range(4)]
    p += ["s_waitcnt lgkmcnt(0)", "s_barrier", f"v_lshlrev_b32 v{T+5}, 4, v{LANE}", f"s_lshl_b32 s{ST+2}, s{S_WAVE}, 14", f"v_add_u32 v{T+7}, s{ST+2}, v{T+5}"]
    p += [f"ds_write_b128 v{T+7}, {ar(CA+4*c,4)} offset:{c*1024}" for c in range(16)]
    p += ["s_waitcnt lgkmcnt(0)", "s_barrier"]
    ch("\n".join(p))
    p = [f"s_lshl_b32 s{ST+2}, s{S_WAVE}, 12", f"v_add_u32 v{T+7}, s{ST+2}, v{T+5}"]
    for w in range(4):
        p += [f"ds_read_b128 {vr(RED+16*w+4*c,4)}, v{T+7} offset:{w*16384 + c*1024}" for c in range(4)]
    p += [f"s_cmp_ge_u32 s{S_WAVE}, 2", "s_cselect_b64 vcc, -1, 0", f"v_cndmask_b32 v{T+6}, v{DV}, v{DV+1}, vcc", "s_waitcnt lgkmcnt(0)"]
    ch("\n".join(p))
    for h_ in range(2):
        p = []
        for i in range(8 * h_, 8 * h_ + 8):
            p += [f"v_add_f32 v{RED+i}, v{RED+i}, v{RED+16+i}", f"v_add_f32 v{RED+32+i}, v{RED+32+i}, v{RED+48+i}", f"v_add_f32 v{RED+i}, v{RED+i}, v{RED+32+i}"]
        ch("\n".join(p))
    X = CX; OUT = CX + 8
    for c in range(4):
        p = []
        for pr in range(2):
            ud = UV + 2 * c + (1 - pr)
            p += [f"v_and_b32 v{X}, 0xffff0000, v{ud}", f"v_lshlrev_b32 v{X+1}, 16, v{ud}", f"v_mul_f32 v{X}, v{X}, v{T+6}", f"v_mul_f32 v{X+1}, v{X+1}, v{T+6}",
                  f"v_cvt_pk_bf16_f32 v{X}, v{X}, v{X+1}", f"v_cvt_pk_bf16_f32 v{X+2}, v{RED+4*c+2*pr}, v{RED+4*c+2*pr+1}", f"v_lshlrev_b32 v{X+1}, 16, v{X}",
                  f"v_and_b32 v{X}, 0xffff0000, v{X}", f"v_lshlrev_b32 v{X+3}, 16, v{X+2}", f"v_and_b32 v{X+2}, 0xffff0000, v{X+2}", f"v_add_f32 v{X+1}, v{X+1}, v{X+3}",
                  f"v_add_f32 v{X}, v{X}, v{X+2}", f"v_cvt_pk_bf16_f32 v{OUT+2*c+pr}, v{X+1}, v{X}"]
        ch("\n".join(p))
    p = [f"v_lshlrev_b32 v{T+7}, 6, v{T}", f"v_lshl_add_u32 v{T+7}, v{T+1}, 3, v{T+7}", f"s_lshl_b32 s{ST+3}, s{S_WAVE}, 11",
         f"s_add_u32 s{ST+2}, s{ST+3}, 65536", f"v_add_u32 v{T+7}, s{ST+2}, v{T+7}", f"v_add_u32 v{T+8}, s{ST+2}, v{T+5}"]
    p += [f"ds_write_b64 v{T+7}, {vr(OUT+2*c,2)} offset:{16*c}" for c in range(4)]
    p += ["s_waitcnt lgkmcnt(0)", f"ds_read_b128 {vr(RED,4)}, v{T+8}", f"ds_read_b128 {vr(RED+4,4)}, v{T+8} offset:1024",
          f"s_lshl_b32 s{ST+2}, s2, 13", f"s_add_u32 s{ST+2}, s{ST+2}, s{ST+3}", "s_waitcnt lgkmcnt(0)",
          f"buffer_store_dwordx4 {vr(RED,4)}, v{T+5}, s[{S_Y}:{S_Y+3}], s{ST+2} offen sc1",
          f"buffer_store_dwordx4 {vr(RED+4,4)}, v{T+5}, s[{S_Y}:{S_Y+3}], s{ST+2} offen offset:1024 sc1"]
    ch("\n".join(p))
    return C

def gen_out(a, name="out_kernel"):
    VXO = 2; T = 12; FR = 32; ACC = 56
    S_X = 8; S_W = 12; S_O = 16; S_Q = 20; S_G = 28
    S_M0 = 33; S_XOFF = 34; S_WOFF = 35; S_TMP = 36; S_RB = 37; S_CB = 38; S_TMP2 = 39
    a.raw(f".globl {name}\n.p2align 8\n.type {name},@function\n{name}:")
    a("s_cmp_ge_u32 s2, 224")
    a("s_cbranch_scc1 L_out_end")
    a("s_load_dwordx2 s[4:5], s[0:1], 120")
    a("s_load_dwordx2 s[40:41], s[0:1], 104")
    a("s_load_dwordx2 s[42:43], s[0:1], 0")
    a("s_load_dwordx2 s[70:71], s[0:1], 32")
    a("s_load_dwordx2 s[72:73], s[0:1], 40")
    a("s_load_dwordx2 s[74:75], s[0:1], 112")
    a(f"v_lshrrev_b32 v{T}, 6, v0")
    a(f"v_and_b32 v{LANE}, 63, v0")
    a(f"v_readfirstlane_b32 s{S_WAVE}, v{T}")
    a("s_and_b32 s44, s2, 7")
    a("s_lshr_b32 s45, s2, 3")
    a("s_mul_i32 s46, s45, 37")
    a("s_lshr_b32 s46, s46, 8")
    a("s_mul_i32 s47, s46, 7")
    a(f"s_sub_u32 s{S_CB}, s45, s47")
    a(f"s_lshl_b32 s{S_RB}, s44, 2")
    a(f"s_add_u32 s{S_RB}, s{S_RB}, s46")
    a("s_waitcnt lgkmcnt(0)")
    srd(a, S_X, 4, WS_CTX, 16 << 20)
    srd(a, S_W, 4, WS_WO, 14 * 256 * 1024)
    srd(a, S_O, 40, 0, 2048 * 448 * 2)
    srd(a, S_Q, 42, 0, 2048 * 448 * 2)
    srd(a, S_Y, 4, WS_Y2T, 448 * 2048 * 2)
    srd(a, S_G, 4, WS_G, 2048 * 4)
    srd(a, S1, 70, 0, 448 * 4096)
    srd(a, S2, 4, WS_UT, 448 * 4096)
    srd(a, S4, 72, 0, 896)
    srd(a, S_DB, 74, 0, 256)
    if STAMPO: srd(a, 96, 4, 202 << 20, 1 << 20)
    stamp(a)
    ops = []
    def emit(s, tag="o"):
        for l in s.split("\n"):
            if l == "@WAITCONV":
                wait_for("conv"); continue
            a(l)
            if l.startswith("buffer_"): ops.append(tag)
    def wait_for(tag):
        idx = max(i for i, t_ in enumerate(ops) if t_ == tag)
        a(f"s_waitcnt vmcnt({len(ops)-1-idx})")
    a(f"v_lshlrev_b32 v{CT+4}, 4, v0")
    for c_ in range(2):
        emit(f"s_lshl_b32 s{ST}, s2, 1\ns_add_u32 s{ST}, s{ST}, {c_}\ns_lshl_b32 s{ST+1}, s{ST}, 12\n"
             f"buffer_load_dwordx4 {vr(LD+10*c_,4)}, v{CT+4}, s[{S1}:{S1+3}], s{ST+1} offen\n"
             f"buffer_load_dwordx4 {vr(LD+10*c_+4,4)}, v{CT+4}, s[{S2}:{S2+3}], s{ST+1} offen\n"
             f"buffer_load_dword v{LD+10*c_+9}, v{CT+4}, s[{S1}:{S1+3}], s{ST+1} offen offset:16\n"
             f"s_lshl_b32 s{ST+1}, s{ST}, 1\nv_mov_b32 v{CT+5}, s{ST+1}\n"
             f"buffer_load_ushort v{LD+10*c_+8}, v{CT+5}, s[{S4}:{S4+3}], 0 offen", "conv")
    XR = 56; XD = 6
    a(f"v_lshlrev_b32 v{VXO}, 4, v{LANE}")
    a(f"s_lshl_b32 s{S_TMP}, s{S_WAVE}, 16")
    a(f"s_lshl_b32 s{S_XOFF}, s{S_RB}, 19")
    a(f"s_add_u32 s{S_XOFF}, s{S_XOFF}, s{S_TMP}")
    a(f"s_add_u32 s{S_TMP2}, s{S_XOFF}, {256*1024}")
    a(f"s_lshl_b32 s{S_WOFF}, s{S_CB}, 19")
    a(f"s_add_u32 s{S_WOFF}, s{S_WOFF}, s{S_TMP}")
    a(f"s_add_u32 s{S_M0}, s{S_WOFF}, {256*1024}")
    def ld(k):
        r = XR + (k % XD) * 16
        if k % 4 == 0 and k:
            for sreg in (S_XOFF, S_TMP2, S_WOFF, S_M0): a(f"s_add_u32 s{sreg}, s{sreg}, 4096")
        emit(f"buffer_load_dwordx4 {vr(r,4)}, v{VXO}, s[{S_X}:{S_X+3}], s{S_XOFF} offen offset:{(k%4)*1024}\n"
             f"buffer_load_dwordx4 {vr(r+8,4)}, v{VXO}, s[{S_W}:{S_W+3}], s{S_WOFF} offen offset:{(k%4)*1024}\n"
             f"buffer_load_dwordx4 {vr(r+4,4)}, v{VXO}, s[{S_X}:{S_X+3}], s{S_TMP2} offen offset:{(k%4)*1024}\n"
             f"buffer_load_dwordx4 {vr(r+12,4)}, v{VXO}, s[{S_W}:{S_W+3}], s{S_M0} offen offset:{(k%4)*1024}", ("k", k))
    for k in range(XD - 1): ld(k)
    a(f"s_lshr_b32 s44, s{S_WAVE}, 1")
    a(f"s_and_b32 s45, s{S_WAVE}, 1")
    a(f"v_and_b32 v{T}, 31, v{LANE}")
    a(f"v_lshrrev_b32 v{T+1}, 5, v{LANE}")
    a(f"s_lshl_b32 s46, s{S_RB}, 6")
    a("s_lshl_b32 s47, s44, 5")
    a("s_add_u32 s46, s46, s47")
    a(f"v_add_u32 v{T+2}, s46, v{T}")
    a(f"s_lshl_b32 s47, s{S_CB}, 6")
    a("s_lshl_b32 s48, s45, 5")
    a("s_add_u32 s47, s47, s48")
    a(f"v_lshlrev_b32 v{T+3}, 2, v{T+2}")
    emit(f"buffer_load_dword v{T+8}, v{T+3}, s[{S_G}:{S_G+3}], 0 offen")
    a(f"v_mul_u32_u24 v{T+3}, 896, v{T+2}")
    a(f"v_lshl_add_u32 v{T+3}, v{T+1}, 3, v{T+3}")
    a("s_lshl_b32 s48, s47, 1")
    a(f"v_add_u32 v{T+3}, s48, v{T+3}")
    XQ = FR; YQ = FR + 8
    for q4 in range(4):
        emit(f"buffer_load_dwordx2 {vr(XQ+2*q4,2)}, v{T+3}, s[{S_Q}:{S_Q+3}], 0 offen offset:{q4*16}")
    a(f"v_lshlrev_b32 v{T+4}, 14, v{T+1}")
    a(f"v_lshl_add_u32 v{T+4}, v{T+2}, 1, v{T+4}")
    a("s_lshl_b32 s48, s47, 12")
    a(f"s_lshl_b32 s{S_TMP}, s{S_CB}, 2\nv_mov_b32 v{T+10}, s{S_TMP}")
    a(f"s_lshr_b32 s{S_TMP}, s2, 5\ns_lshl_b32 s{S_TMP}, s{S_TMP}, 2\nv_mov_b32 v{T+11}, s{S_TMP}\nv_mov_b32 v{T+12}, 1")
    C = conv_chunks()
    for k in range(64):
        if k + XD - 1 < 64: ld(k + XD - 1)
        wait_for(("k", k))
        if k % 16 == 0: stamp(a)
        r = XR + (k % XD) * 16
        for sb in range(2):
            for nb in range(2):
                d = ar((sb * 2 + nb) * 16, 16)
                a(f"v_mfma_f32_32x32x16_bf16 {d}, {vr(r+8+4*nb,4)}, {vr(r+4*sb,4)}, {'0' if k == 0 else d}")
        if C:
            n_ = CPK
            if HYB and (len(C) > 41 or len(C) <= 9): n_ = HYB
            for _ in range(n_):
                if C: emit(C.pop(0), "cs" if len(C) == 0 else "o")
            last_conv = k
        elif k == last_conv + SGD:
            wait_for("cs")
            a("s_barrier")
            a(f"s_cmp_eq_u32 s{S_WAVE}, 0")
            a("s_mov_b64 exec, 1")
            a(f"s_cselect_b32 s{S_TMP}, 0, 0x1000")
            emit(f"buffer_atomic_add v{T+12}, v{T+11}, s[{S_DB}:{S_DB+3}], s{S_TMP} offen")
            a("s_mov_b64 exec, -1")
        if k == PK1:
            emit(f"buffer_load_dword v{T+13}, v{T+10}, s[{S_DB}:{S_DB+3}], 0 offen sc1", "poll")
        if k == PK2:
            wait_for("poll")
            a.label("L_out_poll")
            a(f"v_readfirstlane_b32 s{S_TMP}, v{T+13}")
            a("s_nop 3")
            a(f"s_cmp_ge_u32 s{S_TMP}, 32")
            a("s_cbranch_scc1 L_out_pok")
            a("s_sleep 8")
            a(f"buffer_load_dword v{T+13}, v{T+10}, s[{S_DB}:{S_DB+3}], 0 offen sc1")
            a("s_waitcnt vmcnt(0)")
            a("s_branch L_out_poll")
            a.label("L_out_pok")
            for q4 in range(4):
                for i in range(4):
                    a(f"s_add_u32 s49, s48, {(8*q4+i)*4096}")
                    emit(f"buffer_load_ushort v{YQ+4*q4+i}, v{T+4}, s[{S_Y}:{S_Y+3}], s49 offen sc1")
    assert not C and last_conv + SGD < PK1
    stamp(a)
    a("s_barrier")
    a("s_nop 7")
    a(f"v_lshlrev_b32 v{T+5}, 4, v{LANE}")
    a(f"s_lshl_b32 s{S_TMP}, s{S_WAVE}, 14")
    a(f"v_add_u32 v{T+6}, s{S_TMP}, v{T+5}")
    for c in range(16): a(f"ds_write_b128 v{T+6}, {ar(4*c,4)} offset:{c*1024}")
    a("s_waitcnt lgkmcnt(0)")
    a("s_barrier")
    a(f"s_lshl_b32 s{S_TMP}, s{S_WAVE}, 12")
    a(f"v_add_u32 v{T+6}, s{S_TMP}, v{T+5}")
    for w in range(4):
        for c in range(4): a(f"ds_read_b128 {vr(ACC+16*w+4*c,4)}, v{T+6} offset:{w*16384 + c*1024}")
    a("s_waitcnt lgkmcnt(0)")
    for i in range(16):
        a(f"v_add_f32 v{ACC+i}, v{ACC+i}, v{ACC+16+i}")
        a(f"v_add_f32 v{ACC+32+i}, v{ACC+32+i}, v{ACC+48+i}")
        a(f"v_add_f32 v{ACC+i}, v{ACC+i}, v{ACC+32+i}")
    a("s_waitcnt vmcnt(0)")
    G = T + 8; G1 = T + 9
    a(f"v_sub_f32 v{G1}, 1.0, v{G}")
    a(f"v_cvt_pk_bf16_f32 v{G1}, v{G1}, v{G1}")
    a(f"v_lshlrev_b32 v{G1}, 16, v{G1}")
    U = ACC + 16
    for q4 in range(4):
        for pr in range(2):
            i0 = 4 * q4 + 2 * pr; xr = XQ + 2 * q4 + pr
            a(f"""v_cvt_pk_bf16_f32 v{U}, v{ACC+i0}, v{ACC+i0+1}
v_lshlrev_b32 v{U+1}, 16, v{U}
v_and_b32 v{U+2}, 0xffff0000, v{U}
v_mul_f32 v{U+1}, v{U+1}, v{G1}
v_mul_f32 v{U+2}, v{U+2}, v{G1}
v_cvt_pk_bf16_f32 v{U}, v{U+1}, v{U+2}
v_lshlrev_b32 v{U+3}, 16, v{xr}
v_and_b32 v{U+4}, 0xffff0000, v{xr}
v_lshlrev_b32 v{U+5}, 16, v{YQ+i0}
v_lshlrev_b32 v{U+6}, 16, v{YQ+i0+1}
v_mul_f32 v{U+3}, v{U+3}, v{U+5}
v_mul_f32 v{U+4}, v{U+4}, v{U+6}
v_cvt_pk_bf16_f32 v{U+3}, v{U+3}, v{U+4}
v_lshlrev_b32 v{U+4}, 16, v{U+3}
v_and_b32 v{U+5}, 0xffff0000, v{U+3}
v_mul_f32 v{U+4}, v{U+4}, v{G}
v_mul_f32 v{U+5}, v{U+5}, v{G}
v_cvt_pk_bf16_f32 v{U+3}, v{U+4}, v{U+5}
v_lshlrev_b32 v{U+4}, 16, v{U+3}
v_and_b32 v{U+5}, 0xffff0000, v{U+3}
v_lshlrev_b32 v{U+1}, 16, v{U}
v_and_b32 v{U+2}, 0xffff0000, v{U}
v_add_f32 v{U+4}, v{U+4}, v{U+1}
v_add_f32 v{U+5}, v{U+5}, v{U+2}
v_cvt_pk_bf16_f32 v{U+8+2*q4+pr}, v{U+4}, v{U+5}""")
        a(f"buffer_store_dwordx2 {vr(U+8+2*q4,2)}, v{T+3}, s[{S_O}:{S_O+3}], 0 offen offset:{q4*16}")
    if STAMPO:
        a("s_waitcnt vmcnt(0)")
        stamp(a)
    a.label("L_out_end")
    a("s_endpgm")
```

```python
import os
from asmlib import *
from k_conv3 import conv_issue, conv_run, conv_pre
from k_proj3 import WS_Q, WS_K, WS_VT, WS_CTX, WS_PART

PART_SLOT = 4 * 17 * 1024
LANE = 1
VK_OFF = 2
VV_OFF = 10
VKA = 12
VVA = 20
MC = 24; LSUM = 25
QREL = 29
T = 30
P = 48
SA = 64; SB_ = 96
O = 128
AQX = 0; AQY = 64; AF = 128; NF = 8
S_K = 8; S_V = 12; S_Q = 16; S_PT = 20; S_C = 24; S_DB = 28
S_WAVE = 32; S_N = 33; S_CNT = 34; S_KOFF = 35; S_VOFF = 36; S_TMP = 37; S_M0K = 38
S_QT = 39; S_PAR = 40; S_HEAD = 41; S_SLOT = 42; S_CC = 43; S_T8 = 44; S_TMP2 = 45; S_NEG = 46
S_KB = 47; S_VB = 48; S_KL = 49; S_VL = 50; S_KT = 51; S_VT = 52; S_QY = 53; S_KROT = 54; S_KDEL = 55; S_M0V = 56; S_SIG = 57
S_PS = 58; S_NY = 59; S_TMPK = 68; S_SIGP = 69; S_FBIT = 79
CEXP = 0.0625 * 1.4426950408889634
DEPTH = int(os.environ.get('DEPTH', '4'))
CW = int(os.environ.get('CW', '1'))
ACONV = int(os.environ.get('ACONV', '1'))
M16 = int(os.environ.get('M16A', '0'))
SV = int(os.environ.get('SV', '0'))
KBUF = 0; VBUF = 98304
STAMPA = int(os.environ.get("STAMPA", "0"))
_stn = [0]
def stamp(a):
    if not STAMPA: return
    i = _stn[0]; _stn[0] += 1
    a("s_memtime s[90:91]\ns_memrealtime s[92:93]\ns_waitcnt lgkmcnt(0)\nv_mov_b32 v46, s90\nv_mov_b32 v47, s92")
    a(f"s_lshl_b32 s94, s2, 8\ns_add_u32 s94, s94, {i*8}\nv_mov_b32 v41, s94")
    a(f"s_cmp_lg_u32 s{S_WAVE}, 0\ns_cbranch_scc1 L_sta_{i}")
    a("buffer_store_dwordx2 v[46:47], v41, s[96:99], 0 offen")
    a.label(f"L_sta_{i}")

def f2u(x):
    import struct
    return struct.unpack("<I", struct.pack("<f", x))[0]

def dmak_list():
    u = []
    for j in range(8):
        pre = ""
        if j % 4 == 0:
            pre = f"s_add_u32 m0, s{S_M0K}, {j*1024}\ns_add_u32 s{S_TMPK}, s{S_KOFF}, {j*1024}\n"
        u.append(pre + f"buffer_load_dwordx4 v{VK_OFF}, s[{S_K}:{S_K+3}], s{S_TMPK} offen offset:{(j%4)*1024} lds")
    u.append(f"s_add_u32 s{S_KOFF}, s{S_KOFF}, 32768\ns_sub_u32 s{S_KL}, s{S_KL}, 1\ns_cmp_eq_u32 s{S_KL}, 0\n"
             f"s_cselect_b32 s{S_KOFF}, s{S_KB}, s{S_KOFF}\ns_sub_u32 s{S_KT}, s{S_KT}, 1\ns_cmp_eq_u32 s{S_KT}, 0\n"
             f"s_cselect_b32 s{S_KOFF}, 0x80000000, s{S_KOFF}\ns_cselect_b32 s{S_KB}, 0x80000000, s{S_KB}")
    u.append(f"s_add_u32 s{S_M0K}, s{S_M0K}, 32768\ns_cmp_ge_u32 s{S_M0K}, 98304\ns_cselect_b32 s{S_TMPK}, 98304, 0\n"
             f"s_sub_u32 s{S_M0K}, s{S_M0K}, s{S_TMPK}")
    return u
def dmav_list(buf):
    u = []
    for j in range(8):
        pre = ""
        if j % 4 == 0:
            pre = f"s_add_u32 m0, s{S_M0V}, {VBUF + buf*32768 + j*1024}\ns_add_u32 s{S_TMPK}, s{S_VOFF}, {j*1024}\n"
        u.append(pre + f"buffer_load_dwordx4 v{VK_OFF}, s[{S_V}:{S_V+3}], s{S_TMPK} offen offset:{(j%4)*1024} lds")
    u.append(f"s_add_u32 s{S_VOFF}, s{S_VOFF}, 32768\ns_sub_u32 s{S_VL}, s{S_VL}, 1\ns_cmp_eq_u32 s{S_VL}, 0\n"
             f"s_cselect_b32 s{S_VOFF}, s{S_VB}, s{S_VOFF}\ns_sub_u32 s{S_VT}, s{S_VT}, 1\ns_cmp_eq_u32 s{S_VT}, 0\n"
             f"s_cselect_b32 s{S_VOFF}, 0x80000000, s{S_VOFF}\ns_cselect_b32 s{S_VB}, 0x80000000, s{S_VB}")
    return u
def krot_list():
    u = [f"s_add_u32 s{S_KROT}, s{S_KROT}, 1\ns_mov_b32 s{S_KDEL}, 32768\ns_cmp_eq_u32 s{S_KROT}, 3\ns_cselect_b32 s{S_KDEL}, 0xffff0000, s{S_KDEL}\n"
         f"s_cselect_b32 s{S_KROT}, 0, s{S_KROT}"]
    u.append(f"v_add_u32 v{VKA}, s{S_KDEL}, v{VKA}")
    return u

def rd_k(f):
    return f"v{VKA} offset:{f*1024}"
def rd_v(vbuf, f):
    ks, db = f >> 3, f & 7
    return f"v{VVA} offset:{vbuf*32768 + (db*4+ks)*1024}"

def softmax_valu(S, masked, uid):
    v = []
    if masked:
        v.append(f"v_mov_b32 v{T+8}, 0xff800000")
        for i in range(0, 32, 4):
            blk = []
            for u in range(4):
                e = i + u; kb, r = e >> 4, e & 15
                ko = 32 * kb + 8 * (r >> 2) + (r & 3)
                blk.append(f"v_cmp_lt_i32 s[{60+2*u}:{61+2*u}], v{QREL}, {ko}")
            for u in range(4):
                blk.append(f"v_cndmask_b32 v{S+i+u}, v{S+i+u}, v{T+8}, s[{60+2*u}:{61+2*u}]")
            v.append("\n".join(blk))
    v.append(f"v_max3_f32 v{T}, v{S}, v{S+1}, v{S+2}")
    v.append(f"v_max3_f32 v{T+1}, v{S+3}, v{S+4}, v{S+5}")
    for i in range(6, 30, 4):
        v.append(f"v_max3_f32 v{T}, v{T}, v{S+i}, v{S+i+1}")
        v.append(f"v_max3_f32 v{T+1}, v{T+1}, v{S+i+2}, v{S+i+3}")
    v.append(f"v_max3_f32 v{T}, v{T}, v{S+30}, v{S+31}")
    v.append(f"v_max_f32 v{T}, v{T}, v{T+1}")
    v.append(f"v_mov_b32 v{T+1}, v{T}\ns_nop 1\nv_permlane32_swap_b32 v{T}, v{T+1}\nv_max_f32 v{T}, v{T}, v{T+1}\n"
             f"v_fma_f32 v{T+1}, v{T}, s{S_CC}, -v{MC}\nv_cmp_lt_f32 vcc, s{S_T8}, v{T+1}\ns_cbranch_vccnz L_resc_{uid}\nL_resc_ret_{uid}:")
    nmax = len(v)
    for i in range(32):
        v.append(f"v_fma_f32 v{S+i}, v{S+i}, s{S_CC}, -v{MC}")
        if i >= 1: v.append(f"v_exp_f32 v{S+i-1}, v{S+i-1}")
        if i >= 3: v.append(f"v_add_f32 v{LSUM+((i-3)&3)}, v{LSUM+((i-3)&3)}, v{S+i-3}")
        if i >= 4 and (i & 1) == 0: v.append(f"v_cvt_pk_bf16_f32 v{P+(i-4)//2}, v{S+i-4}, v{S+i-3}")
    v.append(f"v_exp_f32 v{S+31}, v{S+31}")
    v.append(f"v_add_f32 v{LSUM+1}, v{LSUM+1}, v{S+29}")
    v.append(f"v_add_f32 v{LSUM+2}, v{LSUM+2}, v{S+30}")
    v.append(f"v_add_f32 v{LSUM+3}, v{LSUM+3}, v{S+31}")
    v.append(f"v_cvt_pk_bf16_f32 v{P+14}, v{S+28}, v{S+29}")
    v.append(f"v_cvt_pk_bf16_f32 v{P+15}, v{S+30}, v{S+31}")
    return v, nmax

def rescale_block(a, uid):
    a.label(f"L_resc_{uid}")
    a(f"v_mul_f32 v{T+1}, s{S_CC}, v{T}")
    a(f"v_max_f32 v{T+1}, v{T+1}, v{MC}")
    a(f"v_sub_f32 v{T+2}, v{MC}, v{T+1}")
    a(f"v_exp_f32 v{T+2}, v{T+2}")
    a(f"v_mov_b32 v{MC}, v{T+1}")
    for i in range(4): a(f"v_mul_f32 v{LSUM+i}, v{LSUM+i}, v{T+2}")
    for i in range(128): a(f"v_mul_f32 v{O+i}, v{O+i}, v{T+2}")
    a(f"s_branch L_resc_ret_{uid}")

def qk_items(Sn, AQ):
    items = []
    for f in range(32):
        kb, ks = f >> 4, f & 15
        def mf(fr, kb=kb, ks=ks):
            c = "0" if ks == 0 else vr(Sn + 16 * kb, 16)
            if M16:
                r = Sn + 16 * kb + 8 * (ks & 1)
                return "\n".join(f"v_mfma_f32_16x16x32_bf16 {vr(r+4*hh,4)}, {ar(fr,4)}, {ar(AQ+4*ks,4)}, {'0' if ks < 2 else vr(r+4*hh,4)}" for hh in range(2))
            return f"v_mfma_f32_32x32x16_bf16 {vr(Sn+16*kb,16)}, {ar(fr,4)}, {ar(AQ+4*ks,4)}, {c}"
        items.append((rd_k(f), mf))
    return items
def pv_items(vbuf):
    items = []
    for f in range(32):
        ks, db = f >> 3, f & 7
        def mf(fr, ks=ks, db=db):
            if M16:
                r = O + 16 * db + 8 * (ks & 1)
                return "\n".join(f"v_mfma_f32_16x16x32_bf16 {vr(r+4*hh,4)}, {ar(fr,4)}, {vr(P+4*ks,4)}, {vr(r+4*hh,4)}" for hh in range(2))
            return f"v_mfma_f32_32x32x16_bf16 {vr(O+16*db,16)}, {ar(fr,4)}, {vr(P+4*ks,4)}, {vr(O+16*db,16)}"
        items.append((rd_v(vbuf, f), mf))
    return items

def emit_stream(a, items, extras, preread_done, next_pre):
    n = len(items)
    assert n % NF == 0
    if not preread_done:
        for i in range(DEPTH): a(f"ds_read_b128 {ar(AF+4*(i%NF),4)}, {items[i][0]}")
    for i in range(n):
        tail = next_pre is not None
        outstanding = DEPTH - 1 if (tail or i + DEPTH <= n) else n - 1 - i
        if i % 2 == 0:
            o2 = DEPTH - 2 if (tail or i + DEPTH <= n) else max(0, n - 2 - i)
            a(f"s_waitcnt lgkmcnt({o2})")
        a(items[i][1](AF + 4 * (i % NF)))
        j = i + DEPTH
        if j < n:
            a(f"ds_read_b128 {ar(AF+4*(j%NF),4)}, {items[j][0]}")
        elif tail:
            for x in extras.get(("pre", j - n), []): a(x)
            a(f"ds_read_b128 {ar(AF+4*(j%NF),4)}, {next_pre[j-n]}")
        for x in extras.get(i, []): a(x)

def spread(extras, units, lo, hi):
    n = len(units)
    for k, u in enumerate(units):
        s = lo + (k * (hi - lo)) // n
        extras.setdefault(s, []).append(u)

def step(a, par, kind, resc):
    Sc = SA if par == 0 else SB_
    Sn = SB_ if par == 0 else SA
    uid = a.newlabel("a"); resc.append(uid)
    last = kind in ('ym', 'yl')
    sm, nmax = softmax_valu(Sc, last, uid)
    if kind == 'ym': sm.append(f"v_subrev_u32 v{QREL}, 64, v{QREL}")
    extras = {}
    dk = dmak_list(); dv = dmav_list(par ^ 1); kr = krot_list()
    AB = int(os.environ.get("ABLA", "0"))
    if AB & 1: dk = []; dv = []
    if AB & 2: sm = sm[:nmax]
    if AB & 4: sm = []; nmax = 0
    if kind != 'yl':
        AQ = AQY if kind in ('xl', 'yn', 'ym') else AQX
        items = qk_items(Sn, AQ) + pv_items(par)
        spread(extras, sm[:nmax], 0, 6 if not last else 12)
        spread(extras, sm[nmax:], 6 if not last else 12, 54)
        if SV == 0:
            spread(extras, dv, 2, 30); spread(extras, dk, 36, 62)
        elif SV == 1:
            spread(extras, dv, 2, 20); spread(extras, dk, 54, 64)
        elif SV == 2:
            spread(extras, dv, 8, 40); spread(extras, dk, 40, 64)
        spread(extras, kr, 50, 56)
        if kind in ('yn', 'ym'):
            extras.setdefault(34, []).append(flag_unit(a))
        if kind == 'ym':
            extras.setdefault(1, []).append(f"buffer_load_dword v{T+12}, v{T+13}, s[{S_DB}:{S_DB+3}], 0 offen sc1")
        emit_stream(a, items, extras, True, [rd_k(f) for f in range(DEPTH)])
    else:
        uid2 = a.newlabel("fs")
        a(f"s_mov_b32 s{S_SIG}, 1")
        a(f"s_cmp_eq_u32 s{S_PAR}, 0")
        a(f"s_cbranch_scc1 L_go_{uid2}")
        a("s_waitcnt vmcnt(8)")
        stamp(a)
        a(f"v_readfirstlane_b32 s{S_SIG}, v{T+12}")
        a("s_nop 3")
        a(f"s_and_b32 s{S_SIG}, s{S_SIG}, s{S_FBIT}")
        a(f"s_cmp_eq_u32 s{S_SIG}, 0")
        a(f"s_cbranch_scc1 L_late_{uid2}")
        partner_prefetch(a)
        a(f"s_branch L_go_{uid2}")
        a.label(f"L_late_{uid2}")
        a(f"buffer_load_dword v{T+12}, v{T+13}, s[{S_DB}:{S_DB+3}], 0 offen sc1")
        a.label(f"L_go_{uid2}")
        a("s_waitcnt lgkmcnt(0)")
        items = pv_items(par)
        for i in range(DEPTH): a(f"ds_read_b128 {ar(AF+4*(i%NF),4)}, {items[i][0]}")
        for x in sm: a(x)
        a(f"s_cmp_lg_u32 s{S_SIG}, 0")
        a(f"s_cbranch_scc1 L_go2_{uid2}")
        partner_prefetch(a)
        a.label(f"L_go2_{uid2}")
        stamp(a)
        a("s_nop 1")
        emit_stream(a, items, extras, True, None)

def partner_prefetch(a):
    uid = a.newlabel("pp")
    a.label(f"L_poll_{uid}")
    a("s_waitcnt vmcnt(0)")
    a(f"v_readfirstlane_b32 s{S_TMP}, v{T+12}")
    a("s_nop 3")
    a(f"s_and_b32 s{S_TMP}, s{S_TMP}, s{S_FBIT}")
    a(f"s_cmp_lg_u32 s{S_TMP}, 0")
    a(f"s_cbranch_scc1 L_pok_{uid}")
    a("s_sleep 1")
    a(f"buffer_load_dword v{T+12}, v{T+13}, s[{S_DB}:{S_DB+3}], 0 offen sc1")
    a(f"s_branch L_poll_{uid}")
    a.label(f"L_pok_{uid}")
    a(f"s_mul_i32 s{S_TMP}, s{S_PS}, {PART_SLOT}")
    a(f"s_mul_i32 s{S_TMP2}, s{S_WAVE}, {17*1024}")
    a(f"s_add_u32 s{S_TMP}, s{S_TMP}, s{S_TMP2}")
    a(f"v_lshlrev_b32 v{T+4}, 4, v{LANE}")
    for c in range(16):
        if c and c % 4 == 0: a(f"s_add_u32 s{S_TMP}, s{S_TMP}, 4096")
        a(f"buffer_load_dwordx4 {ar(160+4*c,4)}, v{T+4}, s[{S_PT}:{S_PT+3}], s{S_TMP} offen offset:{(c%4)*1024} sc1")
    a(f"s_add_u32 s{S_TMP}, s{S_TMP}, 4096")
    a(f"buffer_load_dwordx2 {vr(T+14,2)}, v{T+4}, s[{S_PT}:{S_PT+3}], s{S_TMP} offen sc1")

def flag_unit(a):
    uid = a.newlabel("sg")
    return (f"s_cmp_eq_u32 s{S_SIGP}, 0\ns_cbranch_scc1 L_nosig_{uid}\ns_mov_b32 s{S_SIGP}, 0\ns_waitcnt vmcnt(8)\n"
            f"v_mov_b32 v{T+10}, s{S_FBIT}\ns_mov_b64 exec, 1\n"
            f"buffer_atomic_or v{T+10}, v{T+13}, s[{S_DB}:{S_DB+3}], 0 offen\ns_mov_b64 exec, -1\nL_nosig_{uid}:")

def top(a, sig):
    a("s_waitcnt vmcnt(8)")
    a("s_barrier")

def gen_attn(a, name="attn_kernel", conv=None):
    a.raw(f".globl {name}\n.p2align 8\n.type {name},@function\n{name}:")
    a("s_cmp_ge_u32 s2, 256")
    a("s_cbranch_scc1 L_attn_end")
    a("s_load_dwordx2 s[4:5], s[0:1], 120")
    a("s_load_dwordx2 s[6:7], s[0:1], 112")
    a("s_load_dwordx2 s[82:83], s[0:1], 32")
    a("s_load_dwordx2 s[84:85], s[0:1], 40")
    a(f"v_lshrrev_b32 v{T}, 6, v0")
    a(f"v_and_b32 v{LANE}, 63, v0")
    a(f"v_readfirstlane_b32 s{S_WAVE}, v{T}")
    a("s_and_b32 s70, s2, 7")
    a("s_lshr_b32 s71, s2, 3")
    a(f"s_and_b32 s{S_HEAD}, s71, 1")
    a("s_lshl_b32 s70, s70, 1")
    a(f"s_add_u32 s{S_HEAD}, s{S_HEAD}, s70")
    a("s_lshr_b32 s72, s71, 1")
    a("s_and_b32 s72, s72, 7")
    a(f"s_lshr_b32 s{S_PAR}, s71, 4")
    a(f"s_mov_b32 s{S_CC}, {f2u(CEXP)}")
    a(f"s_mov_b32 s{S_T8}, 0x41000000")
    a(f"s_mov_b32 s{S_NEG}, {f2u(-1e30)}")
    a(f"s_lshl_b32 s{S_M0K}, s{S_WAVE}, 13")
    a(f"s_lshl_b32 s{S_M0V}, s{S_WAVE}, 13")
    a(f"s_lshl_b32 s{S_SLOT}, s{S_HEAD}, 3")
    a(f"s_add_u32 s{S_SLOT}, s{S_SLOT}, s72")
    a(f"s_mov_b32 s{S_PS}, s{S_SLOT}")
    a(f"s_lshl_b32 s73, s{S_HEAD}, 20")
    a(f"s_sub_u32 s{S_QT}, 15, s72")
    a("s_lshl_b32 s74, s72, 1")
    a("s_sub_u32 s77, 15, s74")
    a("s_add_u32 s78, s74, 2")
    a(f"s_cmp_eq_u32 s{S_PAR}, 0")
    a(f"s_cselect_b32 s{S_QY}, s72, s{S_QT}")
    a(f"s_cselect_b32 s{S_N}, s77, 17")
    a(f"s_cselect_b32 s{S_NY}, s78, 17")
    a(f"s_cselect_b32 s{S_TMP}, 0, s77")
    a(f"s_mov_b32 s{S_KL}, s{S_N}\ns_mov_b32 s{S_VL}, s{S_N}\ns_mov_b32 s{S_KT}, 17\ns_mov_b32 s{S_VT}, 17")
    a(f"s_mov_b32 s{S_KROT}, 0\ns_mov_b32 s{S_SIGP}, 0\ns_mov_b32 s{S_CNT}, 0")
    a(f"s_lshl_b32 s{S_VB}, s{S_WAVE}, 13")
    a(f"s_mov_b32 s{S_KB}, s{S_VB}")
    a(f"s_lshl_b32 s{S_TMP}, s{S_TMP}, 15")
    a(f"s_add_u32 s{S_KOFF}, s{S_KB}, s{S_TMP}")
    a(f"s_mov_b32 s{S_VOFF}, s{S_KOFF}")
    a(f"v_lshlrev_b32 v{VK_OFF}, 4, v{LANE}")
    a(f"v_mov_b32 v{VKA}, v{VK_OFF}")
    a(f"v_add_u32 v{VVA}, {VBUF}, v{VK_OFF}")
    a("s_waitcnt lgkmcnt(0)")
    def srd_head(d, off):
        a(f"s_add_u32 s{d}, s4, {off}\ns_addc_u32 s{d+1}, s5, 0\ns_add_u32 s{d}, s{d}, s73\ns_addc_u32 s{d+1}, s{d+1}, 0")
        a(f"s_mov_b32 s{d+2}, {1<<20}\ns_mov_b32 s{d+3}, 0x00020000")
    srd_head(S_K, WS_K); srd_head(S_V, WS_VT); srd_head(S_Q, WS_Q)
    if ACONV:
        a("s_cmp_ge_u32 s2, 224")
        a("s_cbranch_scc1 L_noconv1")
        conv_issue(a, LANE)
        if CW: a("s_waitcnt vmcnt(0)")
        a.label("L_noconv1")
    if STAMPA: srd(a, 96, 4, 200 << 20, 1 << 20)
    stamp(a)
    for u in dmak_list(): a(u)
    a(f"v_and_b32 v{T}, 31, v{LANE}")
    a(f"v_lshrrev_b32 v{T+1}, 5, v{LANE}")
    a(f"s_lshl_b32 s{S_TMP2}, s{S_WAVE}, 5")
    a(f"v_add_u32 v{T+2}, s{S_TMP2}, v{T}")
    a(f"s_lshl_b32 s76, s{S_WAVE}, 14")
    a(f"s_lshl_b32 s75, s{S_QT}, 16")
    a("s_add_u32 s75, s75, s76")
    for ks in range(16):
        if ks and ks % 4 == 0: a("s_add_u32 s75, s75, 4096")
        a(f"buffer_load_dwordx4 {ar(AQX+4*ks,4)}, v{VK_OFF}, s[{S_Q}:{S_Q+3}], s75 offen offset:{(ks%4)*1024}")
    for u in dmav_list(0): a(u)
    for u in dmak_list(): a(u)
    a(f"v_lshlrev_b32 v{T+4}, 2, v{T+1}")
    a(f"v_sub_u32 v{QREL}, v{T+2}, v{T+4}")
    if ACONV:
        a("s_cmp_ge_u32 s2, 224")
        a("s_cbranch_scc1 L_noconv2")
        conv_pre(a, LANE, S_WAVE)
        conv_run(a, LANE, S_WAVE, 40, stamp)
        a("s_nop 1")
        a.label("L_noconv2")
    srd(a, S_PT, 4, WS_PART, 256 * PART_SLOT)
    srd(a, S_C, 4, WS_CTX, 16 << 20)
    srd(a, S_DB, 6, 0, 256)
    a(f"s_lshr_b32 s{S_TMP}, s{S_SLOT}, 3")
    a(f"s_lshl_b32 s{S_TMP}, s{S_TMP}, 2")
    a(f"v_mov_b32 v{T+13}, s{S_TMP}")
    a(f"s_and_b32 s{S_TMP}, s{S_SLOT}, 7")
    a(f"s_lshl_b32 s{S_TMP}, s{S_TMP}, 2")
    a(f"s_add_u32 s{S_TMP}, s{S_TMP}, s{S_WAVE}")
    a(f"s_lshl_b32 s{S_FBIT}, 1, s{S_TMP}")
    a(f"v_mov_b32 v{MC}, s{S_NEG}")
    for i in range(4): a(f"v_mov_b32 v{LSUM+i}, 0")
    for i in range(128): a(f"v_mov_b32 v{O+i}, 0")
    a("s_waitcnt vmcnt(16)")
    a("s_barrier")
    stamp(a)
    ex = {}
    spread(ex, dmak_list(), 0, 10)
    spread(ex, [f"s_lshl_b32 s75, s{S_QY}, 16\ns_add_u32 s75, s75, s76"] + [("s_add_u32 s75, s75, 4096\n" if (ks and ks % 4 == 0) else "") + f"buffer_load_dwordx4 {ar(AQY+4*ks,4)}, v{VK_OFF}, s[{S_Q}:{S_Q+3}], s75 offen offset:{(ks%4)*1024}" for ks in range(16)], 10, 28)
    spread(ex, krot_list(), 30, 32)
    emit_stream(a, qk_items(SA, AQX), ex, False, None)
    stamp(a)
    resc = []
    a("s_waitcnt vmcnt(0)")
    a("s_barrier")
    for i in range(DEPTH): a(f"ds_read_b128 {ar(AF+4*i,4)}, {rd_k(i)}")
    a(f"s_cmp_eq_u32 s{S_PAR}, 0")
    a("s_cbranch_scc1 L_x0_entry")
    a("s_branch L_y0_entry")
    for par in range(2):
        a.label(f"L_x{par}")
        top(a, False)
        if par == 0: a.label("L_x0_entry")
        a(f"s_add_u32 s{S_CNT}, s{S_CNT}, 1")
        a(f"s_cmp_ge_u32 s{S_CNT}, s{S_N}")
        a(f"s_cbranch_scc1 L_xl{par}")
        step(a, par, 'xn', resc)
        if par == 1: a("s_branch L_x0")
    for par in range(2):
        a.label(f"L_xl{par}")
        step(a, par, 'xl', resc)
        stamp(a)
        a(f"s_mul_i32 s{S_TMP}, s{S_SLOT}, {PART_SLOT}")
        a(f"s_mul_i32 s{S_TMP2}, s{S_WAVE}, {17*1024}")
        a(f"s_add_u32 s{S_TMP}, s{S_TMP}, s{S_TMP2}")
        a(f"v_lshlrev_b32 v{T+4}, 4, v{LANE}")
        a(f"v_add_f32 v{T+1}, v{LSUM}, v{LSUM+1}")
        a(f"v_add_f32 v{T+2}, v{LSUM+2}, v{LSUM+3}")
        a(f"v_mov_b32 v{T}, v{MC}")
        a(f"v_add_f32 v{T+1}, v{T+1}, v{T+2}")
        a(f"s_add_u32 s{S_TMP2}, s{S_TMP}, {16*1024}")
        a(f"buffer_store_dwordx2 {vr(T,2)}, v{T+4}, s[{S_PT}:{S_PT+3}], s{S_TMP2} offen sc1")
        a(f"v_mov_b32 v{MC}, s{S_NEG}")
        for i in range(4): a(f"v_mov_b32 v{LSUM+i}, 0")
        a("s_nop 4")
        Sc = SA if par == 0 else SB_
        for c in range(16):
            pk = Sc + (c % 8) * 4
            for u in range(4):
                a(f"v_cvt_pk_bf16_f32 v{pk+u}, v{O+8*c+2*u}, v{O+8*c+2*u+1}")
            if c and c % 4 == 0: a(f"s_add_u32 s{S_TMP}, s{S_TMP}, 4096")
            a(f"buffer_store_dwordx4 {vr(pk,4)}, v{T+4}, s[{S_PT}:{S_PT+3}], s{S_TMP} offen offset:{(c%4)*1024} sc1")
        a(f"s_mov_b32 s{S_CNT}, 0")
        a(f"s_mov_b32 s{S_N}, s{S_NY}")
        a(f"s_mov_b32 s{S_SIGP}, 1")
        a("s_waitcnt vmcnt(25)")
        a("s_barrier")
        a(f"s_branch L_y{par^1}_entry")
    for par in range(2):
        a.label(f"L_y{par}")
        top(a, True)
        a.label(f"L_y{par}_entry")
        a(f"s_add_u32 s{S_CNT}, s{S_CNT}, 1")
        a(f"s_cmp_ge_u32 s{S_CNT}, s{S_N}")
        a(f"s_cbranch_scc1 L_yl{par}")
        a(f"s_add_u32 s{S_TMP2}, s{S_CNT}, 1")
        a(f"s_cmp_ge_u32 s{S_TMP2}, s{S_N}")
        a(f"s_cbranch_scc1 L_ym{par}")
        step(a, par, 'yn', resc)
        if par == 1: a("s_branch L_y0")
    for par in range(2):
        a.label(f"L_ym{par}")
        step(a, par, 'ym', resc)
        a(f"s_branch L_y{par^1}")
    for par in range(2):
        a.label(f"L_yl{par}")
        step(a, par, 'yl', resc)
        if par == 0: a("s_branch L_fin")
    a.label("L_fin")
    stamp(a)
    a(f"v_add_f32 v{T+1}, v{LSUM}, v{LSUM+1}")
    a(f"v_add_f32 v{T+2}, v{LSUM+2}, v{LSUM+3}")
    a(f"v_add_f32 v{T+1}, v{T+1}, v{T+2}")
    a(f"v_lshlrev_b32 v{T+4}, 4, v{LANE}")
    a(f"s_lshl_b32 s{S_TMP}, s{S_QY}, 2")
    a(f"s_add_u32 s{S_TMP}, s{S_TMP}, s{S_WAVE}")
    a(f"s_lshl_b32 s{S_TMP}, s{S_TMP}, 18")
    a(f"s_lshl_b32 s{S_TMP2}, s{S_HEAD}, 14")
    a(f"s_add_u32 s{S_TMP}, s{S_TMP}, s{S_TMP2}")
    a(f"s_cmp_lg_u32 s{S_PAR}, 0")
    a("s_cbranch_scc1 L_fin_merge")
    a(f"v_mov_b32 v{T+2}, v{T+1}")
    a("s_nop 1")
    a(f"v_permlane32_swap_b32 v{T+1}, v{T+2}")
    a(f"v_add_f32 v{T+1}, v{T+1}, v{T+2}")
    a(f"v_rcp_f32 v{T+8}, v{T+1}")
    a("s_nop 0")
    a(f"v_mov_b32 v{T+9}, v{T+8}")
    for c in range(16):
        r = O + 8 * c; pr = SA + 4 * c
        for i in range(4): a(f"v_pk_mul_f32 {vr(r+2*i,2)}, {vr(r+2*i,2)}, {vr(T+8,2)}")
        for i in range(4): a(f"v_cvt_pk_bf16_f32 v{pr+i}, v{r+2*i}, v{r+2*i+1}")
        if c and c % 4 == 0: a(f"s_add_u32 s{S_TMP}, s{S_TMP}, 4096")
        a(f"buffer_store_dwordx4 {vr(pr,4)}, v{T+4}, s[{S_C}:{S_C+3}], s{S_TMP} offen offset:{(c%4)*1024} sc1")
    a("s_branch L_fin_done")
    a.label("L_fin_merge")
    a("s_waitcnt vmcnt(0)")
    a(f"v_mov_b32 v{T+6}, v{T+14}\nv_mov_b32 v{T+7}, v{T+15}")
    for i in range(64): a(f"v_accvgpr_read_b32 v{SA+i}, a{160+i}")
    a(f"v_max_f32 v{T+2}, v{MC}, v{T+6}")
    a(f"v_sub_f32 v{T+3}, v{MC}, v{T+2}")
    a(f"v_sub_f32 v{T+5}, v{T+6}, v{T+2}")
    a(f"v_exp_f32 v{T+3}, v{T+3}")
    a(f"v_exp_f32 v{T+5}, v{T+5}")
    a("s_nop 0")
    a(f"v_mul_f32 v{T+1}, v{T+1}, v{T+3}")
    a(f"v_fma_f32 v{T+1}, v{T+7}, v{T+5}, v{T+1}")
    a(f"v_mov_b32 v{T+2}, v{T+1}")
    a("s_nop 1")
    a(f"v_permlane32_swap_b32 v{T+1}, v{T+2}")
    a(f"v_add_f32 v{T+1}, v{T+1}, v{T+2}")
    a(f"v_rcp_f32 v{T+1}, v{T+1}")
    a("s_nop 0")
    a(f"v_mul_f32 v{T+8}, v{T+3}, v{T+1}")
    a(f"v_mul_f32 v{T+10}, v{T+5}, v{T+1}")
    a(f"v_mov_b32 v{T+9}, v{T+8}\nv_mov_b32 v{T+11}, v{T+10}")
    for c in range(16):
        r = O + 8 * c; pr = SA + 4 * c
        u = P + (c % 2) * 8
        for i in range(4):
            a(f"v_lshlrev_b32 v{u+2*i}, 16, v{pr+i}")
            a(f"v_and_b32 v{u+2*i+1}, 0xffff0000, v{pr+i}")
        for i in range(4):
            a(f"v_pk_mul_f32 {vr(r+2*i,2)}, {vr(r+2*i,2)}, {vr(T+8,2)}")
        for i in range(4):
            a(f"v_pk_fma_f32 {vr(r+2*i,2)}, {vr(u+2*i,2)}, {vr(T+10,2)}, {vr(r+2*i,2)}")
        for i in range(4):
            a(f"v_cvt_pk_bf16_f32 v{pr+i}, v{r+2*i}, v{r+2*i+1}")
        if c and c % 4 == 0: a(f"s_add_u32 s{S_TMP}, s{S_TMP}, 4096")
        a(f"buffer_store_dwordx4 {vr(pr,4)}, v{T+4}, s[{S_C}:{S_C+3}], s{S_TMP} offen offset:{(c%4)*1024}" + (" sc1" if int(os.environ.get("SC1", "2")) >= 2 else ""))
    a.label("L_fin_done")
    if STAMPA:
        a("s_waitcnt vmcnt(0)")
        stamp(a)
    a.label("L_attn_end")
    a("s_endpgm")
    for uid in resc: rescale_block(a, uid)
```

```python
from asmlib import *
from k_proj3 import WS_CTX, WS_Y2T, WS_G, WS_UT, WS_WO

import os
STAMPO = int(os.environ.get("STAMPO", "0"))
_sto = [0]
def stamp(a):
    if not STAMPO: return
    i = _sto[0]; _sto[0] += 1
    a("s_memtime s[90:91]\ns_memrealtime s[92:93]\ns_waitcnt lgkmcnt(0)\nv_mov_b32 v30, s90\nv_mov_b32 v31, s92")
    a(f"s_lshl_b32 s94, s2, 8\ns_add_u32 s94, s94, {i*8}\nv_mov_b32 v29, s94")
    a(f"s_cmp_lg_u32 s32, 0\ns_cbranch_scc1 L_sto_{i}")
    a("buffer_store_dwordx2 v[30:31], v29, s[96:99], 0 offen")
    a.label(f"L_sto_{i}")
def gen_out(a, name="out_kernel"):
    LANE = 1; VXO = 2; VWO = 4; VXA = 5; VWA = 9; T = 12; FR = 32; ACC = 64
    S_X = 8; S_W = 12; S_O = 16; S_Q = 20; S_Y = 24; S_G = 28
    S_WAVE = 32; S_M0 = 33; S_XOFF = 34; S_WOFF = 35; S_TMP = 36; S_RB = 37; S_CB = 38; S_TMP2 = 39
    a.raw(f".globl {name}\n.p2align 8\n.type {name},@function\n{name}:")
    a("s_cmp_ge_u32 s2, 224")
    a("s_cbranch_scc1 L_out_end")
    a("s_load_dwordx2 s[4:5], s[0:1], 120")
    a("s_load_dwordx2 s[6:7], s[0:1], 88")
    a("s_load_dwordx2 s[40:41], s[0:1], 104")
    a("s_load_dwordx2 s[42:43], s[0:1], 0")
    a(f"v_lshrrev_b32 v{T}, 6, v0")
    a(f"v_and_b32 v{LANE}, 63, v0")
    a(f"v_readfirstlane_b32 s{S_WAVE}, v{T}")
    a("s_and_b32 s44, s2, 7")
    a("s_lshr_b32 s45, s2, 3")
    a("s_mul_i32 s46, s45, 37")
    a("s_lshr_b32 s46, s46, 8")
    a("s_mul_i32 s47, s46, 7")
    a(f"s_sub_u32 s{S_CB}, s45, s47")
    a(f"s_lshl_b32 s{S_RB}, s44, 2")
    a(f"s_add_u32 s{S_RB}, s{S_RB}, s46")
    a("s_waitcnt lgkmcnt(0)")
    srd(a, S_X, 4, WS_CTX, 16 << 20)
    srd(a, S_W, 4, WS_WO, 14 * 256 * 1024)
    srd(a, S_O, 40, 0, 2048 * 448 * 2)
    srd(a, S_Q, 42, 0, 2048 * 448 * 2)
    srd(a, S_Y, 4, WS_Y2T, 448 * 2048 * 2)
    srd(a, S_G, 4, WS_G, 2048 * 4)
    if STAMPO: srd(a, 96, 4, 202 << 20, 1 << 20)
    stamp(a)
    XR = 64; XD = int(os.environ.get("XD", "8"))
    a(f"v_lshlrev_b32 v{VXO}, 4, v{LANE}")
    a(f"s_lshl_b32 s{S_TMP}, s{S_WAVE}, 16")
    a(f"s_lshl_b32 s{S_XOFF}, s{S_RB}, 19")
    a(f"s_add_u32 s{S_XOFF}, s{S_XOFF}, s{S_TMP}")
    a(f"s_add_u32 s{S_TMP2}, s{S_XOFF}, {256*1024}")
    a(f"s_lshl_b32 s{S_WOFF}, s{S_CB}, 19")
    a(f"s_add_u32 s{S_WOFF}, s{S_WOFF}, s{S_TMP}")
    a(f"s_add_u32 s{S_M0}, s{S_WOFF}, {256*1024}")
    def ld(k):
        r = XR + (k % XD) * 16
        if k % 4 == 0 and k:
            for sreg in (S_XOFF, S_TMP2, S_WOFF, S_M0): a(f"s_add_u32 s{sreg}, s{sreg}, 4096")
        a(f"buffer_load_dwordx4 {vr(r,4)}, v{VXO}, s[{S_X}:{S_X+3}], s{S_XOFF} offen offset:{(k%4)*1024}")
        a(f"buffer_load_dwordx4 {vr(r+8,4)}, v{VXO}, s[{S_W}:{S_W+3}], s{S_WOFF} offen offset:{(k%4)*1024}")
        a(f"buffer_load_dwordx4 {vr(r+4,4)}, v{VXO}, s[{S_X}:{S_X+3}], s{S_TMP2} offen offset:{(k%4)*1024}")
        a(f"buffer_load_dwordx4 {vr(r+12,4)}, v{VXO}, s[{S_W}:{S_W+3}], s{S_M0} offen offset:{(k%4)*1024}")
    for k in range(XD - 1): ld(k)
    a(f"s_lshr_b32 s44, s{S_WAVE}, 1")
    a(f"s_and_b32 s45, s{S_WAVE}, 1")
    a(f"v_and_b32 v{T}, 31, v{LANE}")
    a(f"v_lshrrev_b32 v{T+1}, 5, v{LANE}")
    a(f"s_lshl_b32 s46, s{S_RB}, 6")
    a("s_lshl_b32 s47, s44, 5")
    a("s_add_u32 s46, s46, s47")
    a(f"v_add_u32 v{T+2}, s46, v{T}")
    a(f"s_lshl_b32 s47, s{S_CB}, 6")
    a("s_lshl_b32 s48, s45, 5")
    a("s_add_u32 s47, s47, s48")
    a(f"v_lshlrev_b32 v{T+3}, 2, v{T+2}")
    a(f"buffer_load_dword v{T+8}, v{T+3}, s[{S_G}:{S_G+3}], 0 offen")
    a(f"v_mul_u32_u24 v{T+3}, 896, v{T+2}")
    a(f"v_lshl_add_u32 v{T+3}, v{T+1}, 3, v{T+3}")
    a("s_lshl_b32 s48, s47, 1")
    a(f"v_add_u32 v{T+3}, s48, v{T+3}")
    XQ = FR
    for q4 in range(4):
        a(f"buffer_load_dwordx2 {vr(XQ+2*q4,2)}, v{T+3}, s[{S_Q}:{S_Q+3}], 0 offen offset:{q4*16}")
    a(f"v_lshlrev_b32 v{T+4}, 14, v{T+1}")
    a(f"v_lshl_add_u32 v{T+4}, v{T+2}, 1, v{T+4}")
    a("s_lshl_b32 s48, s47, 12")
    YQ = FR + 8
    for q4 in range(4):
        for i in range(4):
            a(f"s_add_u32 s49, s48, {(8*q4+i)*4096}")
            a(f"buffer_load_ushort v{YQ+4*q4+i}, v{T+4}, s[{S_Y}:{S_Y+3}], s49 offen")
    def acc(sb, nb): return ACC + (sb * 2 + nb) * 16
    NE = 21
    for k in range(64):
        if k + XD - 1 < 64: ld(k + XD - 1)
        younger = 4 * (min(63, k + XD - 1) - k) + (NE if k < XD - 1 else 0)
        a(f"s_waitcnt vmcnt({younger})")
        if k % 16 == 0: stamp(a)
        r = XR + (k % XD) * 16
        for sb in range(2):
            for nb in range(2):
                c = "0" if k == 0 else ar(acc(sb, nb)-ACC, 16)
                a(f"v_mfma_f32_32x32x16_bf16 {ar(acc(sb,nb)-ACC,16)}, {vr(r+8+4*nb,4)}, {vr(r+4*sb,4)}, {c}")
    stamp(a)
    a("s_nop 7\ns_nop 3")
    a(f"v_lshlrev_b32 v{T+5}, 4, v{LANE}")
    a(f"s_lshl_b32 s{S_TMP}, s{S_WAVE}, 15")
    a(f"v_add_u32 v{T+6}, s{S_TMP}, v{T+5}")
    for c in range(16):
        a(f"ds_write_b128 v{T+6}, {ar(4*c,4)} offset:{c*1024}")
    a("s_waitcnt lgkmcnt(0)")
    a("s_barrier")
    a(f"s_lshl_b32 s{S_TMP}, s{S_WAVE}, 12")
    a(f"v_add_u32 v{T+6}, s{S_TMP}, v{T+5}")
    a(f"v_add_u32 v{T+7}, 0x10000, v{T+6}")
    for w in range(4):
        for c in range(4):
            a(f"ds_read_b128 {vr(ACC+16*w+4*c,4)}, v{T+6+(w>>1)} offset:{(w&1)*32768 + c*1024}")
    a("s_waitcnt lgkmcnt(0)")
    for i in range(16):
        a(f"v_add_f32 v{ACC+i}, v{ACC+i}, v{ACC+16+i}")
        a(f"v_add_f32 v{ACC+32+i}, v{ACC+32+i}, v{ACC+48+i}")
        a(f"v_add_f32 v{ACC+i}, v{ACC+i}, v{ACC+32+i}")
    a("s_waitcnt vmcnt(0)")
    G = T + 8; G1 = T + 9
    a(f"v_sub_f32 v{G1}, 1.0, v{G}")
    a(f"v_cvt_pk_bf16_f32 v{G1}, v{G1}, v{G1}")
    a(f"v_lshlrev_b32 v{G1}, 16, v{G1}")
    U = ACC + 16
    for q4 in range(4):
        for pr in range(2):
            i0 = 4 * q4 + 2 * pr
            xr = XQ + 2 * q4 + pr
            a(f"v_cvt_pk_bf16_f32 v{U}, v{ACC+i0}, v{ACC+i0+1}")
            a(f"v_lshlrev_b32 v{U+1}, 16, v{U}")
            a(f"v_and_b32 v{U+2}, 0xffff0000, v{U}")
            a(f"v_mul_f32 v{U+1}, v{U+1}, v{G1}")
            a(f"v_mul_f32 v{U+2}, v{U+2}, v{G1}")
            a(f"v_cvt_pk_bf16_f32 v{U}, v{U+1}, v{U+2}")
            a(f"v_lshlrev_b32 v{U+3}, 16, v{xr}")
            a(f"v_and_b32 v{U+4}, 0xffff0000, v{xr}")
            a(f"v_lshlrev_b32 v{U+5}, 16, v{YQ+i0}")
            a(f"v_lshlrev_b32 v{U+6}, 16, v{YQ+i0+1}")
            a(f"v_mul_f32 v{U+3}, v{U+3}, v{U+5}")
            a(f"v_mul_f32 v{U+4}, v{U+4}, v{U+6}")
            a(f"v_cvt_pk_bf16_f32 v{U+3}, v{U+3}, v{U+4}")
            a(f"v_lshlrev_b32 v{U+4}, 16, v{U+3}")
            a(f"v_and_b32 v{U+5}, 0xffff0000, v{U+3}")
            a(f"v_mul_f32 v{U+4}, v{U+4}, v{G}")
            a(f"v_mul_f32 v{U+5}, v{U+5}, v{G}")
            a(f"v_cvt_pk_bf16_f32 v{U+3}, v{U+4}, v{U+5}")
            a(f"v_lshlrev_b32 v{U+4}, 16, v{U+3}")
            a(f"v_and_b32 v{U+5}, 0xffff0000, v{U+3}")
            a(f"v_lshlrev_b32 v{U+1}, 16, v{U}")
            a(f"v_and_b32 v{U+2}, 0xffff0000, v{U}")
            a(f"v_add_f32 v{U+4}, v{U+4}, v{U+1}")
            a(f"v_add_f32 v{U+5}, v{U+5}, v{U+2}")
            a(f"v_cvt_pk_bf16_f32 v{U+8+2*q4+pr}, v{U+4}, v{U+5}")
        a(f"buffer_store_dwordx2 {vr(U+8+2*q4,2)}, v{T+3}, s[{S_O}:{S_O+3}], 0 offen offset:{q4*16}")
    if STAMPO:
        a("s_waitcnt vmcnt(0)")
        stamp(a)
    a.label("L_out_end")
    a("s_endpgm")
```

```python
import os
from asmlib import *

WS_Q = 0
WS_K = 16 << 20
WS_VT = 32 << 20
WS_CTX = 48 << 20
WS_Y2T = 64 << 20
WS_UT = WS_Y2T + (2 << 20)
WS_G = WS_Y2T + (4 << 20)
WS_WO = WS_Y2T + (5 << 20)
WS_PART = 76 << 20

V_LANE = 1; V_XOFF = 2; V_WOFF = 4; V_XA = 6; V_WA = 10; V_T = 18; V_FR = 32; V_SD = 96; V_PF = 28; V_ACC = 128
S_X = 8; S_W = 12; S_O = 16
S_WAVE = 30; S_M0X = 31; S_M0W = 32; S_XOFF = 33; S_WOFF = 34; S_TMP = 35; S_OB = 36; S_WS_ = 37; S_WN_ = 38
SC1 = int(os.environ.get("SC1", "2"))
QPF = int(os.environ.get("QPF", "11"))
BPF = int(os.environ.get("BPF", "0"))
DSP = int(os.environ.get("DSP", "2"))
DPOS = int(os.environ.get("DPOS", "0"))
PRIO = int(os.environ.get("PRIO", "0"))
M16 = int(os.environ.get("M16", "0"))
PFD = int(os.environ.get("PFD", "0"))
STAMP = int(os.environ.get("STAMP", "0"))
_stn = [0]
def stamp(a):
    if not STAMP: return
    i = _stn[0]; _stn[0] += 1
    a("s_memtime s[90:91]\ns_memrealtime s[92:93]\ns_waitcnt lgkmcnt(0)\nv_mov_b32 v126, s90\nv_mov_b32 v127, s92")
    a(f"s_lshl_b32 s94, s2, 8\ns_add_u32 s94, s94, {i*8}\nv_mov_b32 v115, s94")
    a(f"s_cmp_lg_u32 s{S_WAVE}, 0\ns_cbranch_scc1 L_st_{i}")
    a("buffer_store_dwordx2 v[126:127], v115, s[96:99], 0 offen")
    a.label(f"L_st_{i}")

class Job:
    def __init__(self, a, TS, KT, ldx, vtype, sx, sw, so):
        self.a = a; self.TS = TS; self.KT = KT; self.ldx = ldx; self.vtype = vtype
        self.cnt16 = 0; self.SB = TS // 64; self.sx = sx; self.sw = sw; self.so = so
    def setup_dma(self, s_m0, s_n0):
        a = self.a; T = V_T; TS = self.TS; ldx = self.ldx
        a(f"v_lshrrev_b32 v{T}, 3, v{V_LANE}")
        a(f"v_mul_u32_u24 v{T+1}, {ldx}, v{T}")
        a(f"v_lshrrev_b32 v{T+2}, 4, v{V_LANE}")
        a(f"v_and_b32 v{T+3}, 7, v{V_LANE}")
        a(f"v_xor_b32 v{T+4}, v{T+3}, v{T+2}")
        a(f"v_lshl_add_u32 v{V_XOFF}, v{T+4}, 4, v{T+1}")
        a(f"v_xor_b32 v{T+4}, 4, v{T+4}")
        a(f"v_lshl_add_u32 v{V_XOFF+1}, v{T+4}, 4, v{T+1}")
        a(f"s_mul_i32 s{S_M0X}, s{S_WAVE}, {TS//8*128}")
        a(f"s_mul_i32 s{S_XOFF}, s{S_WAVE}, {TS//8}")
        a(f"s_add_u32 s{S_XOFF}, s{S_XOFF}, s{s_m0}")
        a(f"s_mul_i32 s{S_XOFF}, s{S_XOFF}, {ldx}")
        a(f"s_lshl_b32 s{S_WOFF}, s{S_WAVE}, 16")
        a(f"s_add_u32 s{S_WOFF}, s{S_WOFF}, s{s_n0}")
    def dma(self, stage, kt, part=None):
        a = self.a
        if part is not None:
            b = Asm(); self.a = b; self.dma(stage, kt); self.a = a
            L = b.lines; n = len(L) // 3
            lo, hi = (part * n) // DSP, ((part + 1) * n) // DSP
            for l in L[3*lo:3*hi]: a(l)
            return
        for j in range(self.TS // 64):
            a(f"s_add_u32 m0, s{S_M0X}, {stage*65536 + j*1024}")
            a(f"s_add_u32 s{S_TMP}, s{S_XOFF}, {kt*128 + j*8*self.ldx}")
            a(f"buffer_load_dwordx4 v{V_XOFF+(j&1)}, s[{self.sx}:{self.sx+3}], s{S_TMP} offen lds")
        for j in range(4):
            a(f"s_add_u32 m0, s{S_M0W}, {stage*65536 + 32768 + j*1024}")
            a(f"s_add_u32 s{S_TMP}, s{S_WOFF}, {(kt*64 + 2*j)*8192}")
            a(f"buffer_load_dwordx4 v{V_WOFF+(j&1)}, s[{self.sw}:{self.sw+3}], s{S_TMP} offen lds")
    def setup_xa(self):
        a = self.a; T = V_T
        a(f"v_and_b32 v{T}, 15, v{V_LANE}")
        a(f"v_lshrrev_b32 v{T+1}, 4, v{V_LANE}")
        a(f"v_bfe_u32 v{T+2}, v{V_LANE}, 1, 3")
        a(f"v_xor_b32 v{T+2}, v{T+2}, v{T+1}")
        a(f"s_mul_i32 s{S_TMP}, s{S_WS_}, {self.TS//2*128}")
        a(f"v_lshlrev_b32 v{T+3}, 7, v{T}")
        a(f"v_add_u32 v{T+3}, s{S_TMP}, v{T+3}")
        a(f"v_lshl_add_u32 v{V_XA}, v{T+2}, 4, v{T+3}")
        a(f"v_xor_b32 v{V_XA+1}, 64, v{V_XA}")
        a(f"v_add_u32 v{V_XA+2}, 0x10000, v{V_XA}")
        a(f"v_add_u32 v{V_XA+3}, 0x10000, v{V_XA+1}")
    def fx(self, hs, i): return V_FR + 32 + hs * 16 + i * 4
    def fw(self, ws, nb): return V_FR + ws * 16 + nb * 4
    def acc(self, sb, nb): return V_ACC + (sb * 4 + nb) * 4
    def rd_w(self, stage, ks2):
        a = self.a
        for nb in range(4):
            a(f"ds_read_b64_tr_b16 {vr(self.fw(ks2,nb),2)}, v{V_WA+stage*4+nb} offset:{(32*ks2)*512}")
            a(f"ds_read_b64_tr_b16 {vr(self.fw(ks2,nb)+2,2)}, v{V_WA+stage*4+nb} offset:{(32*ks2+4)*512}")
    def rd_x(self, stage, ks2, half, hs):
        a = self.a
        for i in range(4):
            a(f"ds_read_b128 {vr(self.fx(hs,i),4)}, v{V_XA+stage*2+ks2} offset:{(half*4+i)*2048}")
    def mfmas(self, ks2, half, hs, first):
        a = self.a
        for i in range(4):
            for nb in range(4):
                d = vr(self.acc(half * 4 + i, nb), 4)
                A, B = (self.fx(hs, i), self.fw(ks2, nb)) if self.vtype else (self.fw(ks2, nb), self.fx(hs, i))
                a(f"v_mfma_f32_16x16x32_bf16 {d}, {vr(A,4)}, {vr(B,4)}, {'0' if first else d}")
    def tile(self, t, wait, do_dma, extras=None, pf=None, post_dma=None):
        a = self.a; stg = t & 1
        a(f"s_waitcnt vmcnt({wait})")
        a("s_barrier")
        if not self.vtype and (t % 4 == 0): stamp(a)
        if do_dma and not (DSP and self.TS == 256): self.dma(stg ^ 1, t + 1)
        if pf is not None:
            a(f"s_add_u32 s{S_TMP}, s{S_XOFF}, {pf*128}")
            a(f"buffer_load_dword v{V_PF+2}, v{V_PF}, s[{self.sx}:{self.sx+3}], s{S_TMP} offen")
            a(f"s_add_u32 s{S_TMP}, s{S_WOFF}, {pf*64*8192}")
            a(f"buffer_load_dword v{V_PF+3}, v{V_PF+1}, s[{self.sw}:{self.sw+3}], s{S_TMP} offen")
        if post_dma: post_dma()
        NH = self.SB // 2
        groups = [(ks2, h) for ks2 in range(2) for h in range(NH)]
        self.rd_w(stg, 0); self.rd_x(stg, 0, 0, 0)
        for gi, (ks2, h) in enumerate(groups):
            n = 0
            if gi + 1 < len(groups):
                k2, h2 = groups[gi + 1]
                if k2 != ks2: self.rd_w(stg, k2); n += 8
                self.rd_x(stg, k2, h2, (gi + 1) & 1); n += 4
            a(f"s_waitcnt lgkmcnt({n})")
            if do_dma and DSP and self.TS == 256 and gi < DSP: self.dma(stg ^ 1, t + 1, part=gi)
            self.mfmas(ks2, h, gi & 1, t == 0 and ks2 == 0)
            for _ in range(4 // len(groups)):
                if extras: a(extras.pop(0))
    def epilogue(self, s_ob):
        a = self.a; T = V_T
        kt_voff(a, T)
        n = 0
        for sb in range(self.SB * 2):
            for j in range(2):
                r = V_ACC + sb * 16 + 8 * j
                p = V_FR + (n % 8) * 4; n += 1
                for u in range(4): a(f"v_cvt_pk_bf16_f32 v{p+u}, v{r+2*u}, v{r+2*u+1}")
                a(f"s_add_u32 s{S_TMP}, s{s_ob}, {(sb >> 1) * 16384 + 2 * j * 1024 + (sb & 1) * 256}")
                a(f"buffer_store_dwordx4 {vr(p,4)}, v{T}, s[{self.so}:{self.so+3}], s{S_TMP} offen" + (" sc1" if SC1 >= 2 else ""))

def kt_voff(a, d):
    a(f"v_and_b32 v{d}, 15, v{V_LANE}")
    a(f"v_lshlrev_b32 v{d}, 4, v{d}")
    a(f"v_bfe_u32 v{d+1}, v{V_LANE}, 4, 1")
    a(f"v_lshl_add_u32 v{d}, v{d+1}, 9, v{d}")
    a(f"v_lshrrev_b32 v{d+1}, 5, v{V_LANE}")
    a(f"v_lshl_add_u32 v{d}, v{d+1}, 10, v{d}")
def vt_voff(a, d):
    a(f"v_and_b32 v{d}, 15, v{V_LANE}")
    a(f"v_lshlrev_b32 v{d}, 4, v{d}")
    a(f"v_bfe_u32 v{d+1}, v{V_LANE}, 4, 1")
    a(f"v_lshl_add_u32 v{d}, v{d+1}, 9, v{d}")
    a(f"v_lshrrev_b32 v{d+1}, 5, v{V_LANE}")
    a(f"v_lshl_add_u32 v{d}, v{d+1}, 8, v{d}")

def pack_acc(a):
    for p in range(63, -1, -1):
        a(f"v_cvt_pk_bf16_f32 v{V_ACC+64+p}, v{V_ACC+2*p}, v{V_ACC+2*p+1}")
def kv_store_list(vtype, s_ob, so):
    L = []
    for sb in range(8):
        for j in range(2):
            L.append(((sb >> 2) * 32768 + (j * 4 + (sb & 3)) * 1024) if vtype else ((sb >> 1) * 16384 + 2 * j * 1024 + (sb & 1) * 256))
    return L

def side_issue(a):
    R = V_SD; K = R; V = R + 11; SK = R + 20; GX = R + 22; GW = R + 26; TT = V_T
    a("s_lshl_b32 s80, s2, 3")
    srd(a, 64, 56, 0, 2048 * 448 * 2)
    srd(a, 68, 58, 0, 2048 * 448 * 2)
    srd(a, 72, 60, 0, 448 * 8)
    srd(a, 76, 62, 0, 448 * 2)
    srd(a, 84, 86, 0, 4096 * 448 * 2)
    srd(a, 44, 4, 0, 2048 * 448 * 2)
    a(f"v_lshlrev_b32 v{TT}, 4, v{V_LANE}")
    a("s_mul_i32 s81, s2, 14336")
    a(f"s_lshl_b32 s82, s{S_WAVE}, 10")
    a("s_add_u32 s81, s81, s82")
    a("s_add_u32 m0, s82, 131072")
    a("s_nop 0")
    a(f"buffer_load_dwordx4 v{TT}, s[84:87], s81 offen lds")
    a(f"s_cmp_ge_u32 s{S_WAVE}, 6")
    a("s_cbranch_scc1 L_sd_now2_" + str(a.uid))
    a("s_add_u32 m0, s82, 139264")
    a("s_add_u32 s81, s81, 8192")
    a(f"buffer_load_dwordx4 v{TT}, s[84:87], s81 offen lds")
    a.label("L_sd_now2_" + str(a.uid))
    a(f"s_add_u32 s81, s80, s{S_WAVE}")
    a("s_mul_i32 s81, s81, 896")
    a(f"v_cmp_gt_u32 vcc, 56, v{V_LANE}")
    a(f"v_mov_b32 v{TT+1}, 0x7f000000")
    a("s_nop 0")
    a(f"v_cndmask_b32 v{TT+1}, v{TT+1}, v{TT}, vcc")
    a(f"buffer_load_dwordx4 {vr(GX,4)}, v{TT+1}, s[44:47], s81 offen")
    a(f"buffer_load_dwordx4 {vr(GW,4)}, v{TT+1}, s[76:79], 0 offen")
    a("s_mul_i32 s81, s80, 896")
    a("s_sub_u32 s82, s81, 2688")
    a(f"v_lshlrev_b32 v{TT}, 1, v0")
    a(f"v_add_u32 v{TT+1}, s82, v{TT}")
    for j in range(11):
        a(f"buffer_load_ushort v{K+j}, v{TT+1}, s[64:67], 0 offen")
        if j < 10: a(f"v_add_u32 v{TT+1}, 896, v{TT+1}")
    a(f"v_add_u32 v{TT+1}, s81, v{TT}")
    for j in range(8):
        a(f"buffer_load_ushort v{V+j}, v{TT+1}, s[68:71], 0 offen")
        if j < 7: a(f"v_add_u32 v{TT+1}, 896, v{TT+1}")
    a(f"v_lshlrev_b32 v{TT+2}, 3, v0")
    a(f"buffer_load_dwordx2 {vr(SK,2)}, v{TT+2}, s[72:75], 0 offen")
    a.uid += 1

def side_chunks(n):
    b = Asm(); b.uid = 9000
    side_compute(b)
    L = [l.strip() for l in b.lines]
    out = []; per = (len(L) + n - 1) // n; cur = []
    for i, l in enumerate(L):
        cur.append(l)
        nxt = L[i+1] if i + 1 < len(L) else ""
        ok = not (l.startswith(("s_nop", "v_exp", "v_rcp", "v_mov_b32", "ds_", "s_add_u32 s6", "s_addc", "s_mov_b32 s")) or nxt.startswith(("s_nop", "v_permlane", "s_waitcnt")))
        if len(cur) >= per and ok:
            out.append("\n".join(cur)); cur = []
    if cur: out.append("\n".join(cur))
    return out

def side_compute(a):
    R = V_SD; K = R; V = R + 11; SK = R + 20; GX = R + 22; GW = R + 26; W = GX; TT = V_T; A0 = V_PF; W2 = V_T + 4
    tag = a.uid; a.uid += 1
    srd(a, 64, 26, WS_UT, 448 * 4096)
    srd(a, 68, 26, WS_G, 2048 * 4)
    srd(a, 72, 26, WS_WO, 14 * 256 * 1024)
    a(f"v_lshrrev_b32 v{TT}, 5, v{V_LANE}")
    a(f"v_bfe_u32 v{TT+1}, v{V_LANE}, 2, 2")
    a(f"v_lshl_add_u32 v{TT}, v{TT}, 2, v{TT+1}")
    a(f"v_mul_u32_u24 v{TT}, 896, v{TT}")
    a(f"v_bfe_u32 v{TT+1}, v{V_LANE}, 4, 1")
    a(f"v_lshl_add_u32 v{TT}, v{TT+1}, 5, v{TT}")
    a(f"v_and_b32 v{TT+1}, 3, v{V_LANE}")
    a(f"v_lshl_add_u32 v{TT}, v{TT+1}, 3, v{TT}")
    a(f"s_lshl_b32 s81, s{S_WAVE}, 6")
    a("s_add_u32 s81, s81, 131072")
    a(f"v_add_u32 v{TT}, s81, v{TT}")
    a(f"ds_read_b64_tr_b16 {vr(A0,2)}, v{TT}")
    a(f"ds_read_b64_tr_b16 {vr(A0+2,2)}, v{TT} offset:{8*896}")
    a(f"ds_read_b64_tr_b16 {vr(W2,2)}, v{TT} offset:512")
    a(f"ds_read_b64_tr_b16 {vr(W2+2,2)}, v{TT} offset:{8*896+512}")
    a(f"v_lshlrev_b32 v{TT+1}, 4, v{V_LANE}")
    a(f"s_lshl_b32 s81, s{S_WAVE}, 18")
    a("s_lshl_b32 s82, s2, 10")
    a("s_add_u32 s81, s81, s82")
    a("s_waitcnt lgkmcnt(0)")
    a(f"buffer_store_dwordx4 {vr(A0,4)}, v{TT+1}, s[72:75], s81 offen")
    a(f"s_add_u32 s81, s81, {8<<18}")
    a(f"buffer_store_dwordx4 {vr(W2,4)}, v{TT+1}, s[72:75], s81 offen")
    a("s_nop 1")
    a(f"v_mov_b32 v{TT+3}, 0")
    for j in range(4):
        a(f"v_lshlrev_b32 v{TT+4}, 16, v{GX+j}")
        a(f"v_lshlrev_b32 v{TT+5}, 16, v{GW+j}")
        a(f"v_and_b32 v{TT+6}, 0xffff0000, v{GX+j}")
        a(f"v_and_b32 v{TT+7}, 0xffff0000, v{GW+j}")
        a(f"v_mul_f32 v{TT+4}, v{TT+4}, v{TT+5}")
        a(f"v_mul_f32 v{TT+6}, v{TT+6}, v{TT+7}")
        a(f"v_cvt_pk_bf16_f32 v{TT+4}, v{TT+4}, v{TT+6}")
        a(f"v_lshlrev_b32 v{TT+5}, 16, v{TT+4}")
        a(f"v_and_b32 v{TT+6}, 0xffff0000, v{TT+4}")
        a(f"v_add_f32 v{TT+3}, v{TT+3}, v{TT+5}")
        a(f"v_add_f32 v{TT+3}, v{TT+3}, v{TT+6}")
    for off in (0x041F, 0x081F, 0x101F, 0x201F, 0x401F):
        a(f"ds_swizzle_b32 v{TT+4}, v{TT+3} offset:{off}")
        a("s_waitcnt lgkmcnt(0)")
        a(f"v_add_f32 v{TT+3}, v{TT+3}, v{TT+4}")
    a(f"v_mov_b32 v{TT+4}, v{TT+3}")
    a("s_nop 1")
    a(f"v_permlane32_swap_b32 v{TT+3}, v{TT+4}")
    a(f"v_add_f32 v{TT+3}, v{TT+3}, v{TT+4}")
    a(f"v_cvt_pk_bf16_f32 v{TT+3}, v{TT+3}, v{TT+3}")
    a(f"v_lshlrev_b32 v{TT+3}, 16, v{TT+3}")
    a(f"v_mul_f32 v{TT+3}, 0xbfb8aa3b, v{TT+3}")
    a(f"v_exp_f32 v{TT+3}, v{TT+3}")
    a("s_nop 0")
    a(f"v_add_f32 v{TT+3}, 1.0, v{TT+3}")
    a(f"v_rcp_f32 v{TT+3}, v{TT+3}")
    a("s_nop 0")
    a(f"v_cvt_pk_bf16_f32 v{TT+3}, v{TT+3}, v{TT+3}")
    a(f"v_lshlrev_b32 v{TT+3}, 16, v{TT+3}")
    a(f"s_add_u32 s81, s80, s{S_WAVE}")
    a("s_lshl_b32 s81, s81, 2")
    a(f"v_mov_b32 v{TT+4}, s81")
    a(f"buffer_store_dword v{TT+3}, v{TT+4}, s[68:71], 0 offen")
    for j in range(11): a(f"v_lshlrev_b32 v{K+j}, 16, v{K+j}")
    for j in range(8): a(f"v_lshlrev_b32 v{V+j}, 16, v{V+j}")
    a("s_nop 0")
    a(f"v_lshlrev_b32 v{W}, 16, v{SK}")
    a(f"v_and_b32 v{W+1}, 0xffff0000, v{SK}")
    a(f"v_lshlrev_b32 v{W+2}, 16, v{SK+1}")
    a(f"v_and_b32 v{W+3}, 0xffff0000, v{SK+1}")
    for i in range(0, 8, 2):
        p0, p1, pk, c0, c1 = TT, TT + 1, TT + 2, TT + 3, TT + 4
        a(f"v_mul_f32 v{p0}, v{K+i}, v{W+3}")
        a(f"v_mul_f32 v{p1}, v{K+i+1}, v{W+3}")
        a(f"v_cvt_pk_bf16_f32 v{pk}, v{p0}, v{p1}")
        a(f"v_lshlrev_b32 v{c0}, 16, v{pk}")
        a(f"v_and_b32 v{c1}, 0xffff0000, v{pk}")
        for off, w in ((1, 2), (2, 1), (3, 0)):
            a(f"v_mul_f32 v{p0}, v{K+i+off}, v{W+w}")
            a(f"v_mul_f32 v{p1}, v{K+i+1+off}, v{W+w}")
            a(f"v_cvt_pk_bf16_f32 v{pk}, v{p0}, v{p1}")
            a(f"v_lshlrev_b32 v{p0}, 16, v{pk}")
            a(f"v_and_b32 v{p1}, 0xffff0000, v{pk}")
            a(f"v_add_f32 v{c0}, v{c0}, v{p0}")
            a(f"v_add_f32 v{c1}, v{c1}, v{p1}")
            a(f"v_cvt_pk_bf16_f32 v{pk}, v{c0}, v{c1}")
            a(f"v_lshlrev_b32 v{c0}, 16, v{pk}")
            a(f"v_and_b32 v{c1}, 0xffff0000, v{pk}")
        a(f"v_mul_f32 v{c0}, v{c0}, v{V+i}")
        a(f"v_mul_f32 v{c1}, v{c1}, v{V+i+1}")
        a(f"v_cvt_pk_bf16_f32 v{A0+3-i//2}, v{c1}, v{c0}")
    a(f"v_lshlrev_b32 v{TT+1}, 12, v0")
    a("s_lshl_b32 s81, s80, 1")
    a(f"buffer_store_dwordx4 {vr(A0,4)}, v{TT+1}, s[64:67], s81 offen")

def gen_proj(a, name="proj_kernel"):
    T = V_T
    a.raw(f".globl {name}\n.p2align 8\n.type {name},@function\n{name}:")
    a("s_cmp_ge_u32 s2, 256")
    a("s_cbranch_scc1 L_proj_end")
    a("s_load_dwordx2 s[4:5], s[0:1], 0")
    a("s_load_dwordx2 s[6:7], s[0:1], 56")
    a("s_load_dwordx2 s[20:21], s[0:1], 64")
    a("s_load_dwordx2 s[22:23], s[0:1], 72")
    a("s_load_dwordx2 s[24:25], s[0:1], 80")
    a("s_load_dwordx2 s[26:27], s[0:1], 120")
    a("s_load_dwordx2 s[56:57], s[0:1], 8")
    a("s_load_dwordx2 s[58:59], s[0:1], 16")
    a("s_load_dwordx2 s[60:61], s[0:1], 24")
    a("s_load_dwordx2 s[62:63], s[0:1], 96")
    a("s_load_dwordx2 s[86:87], s[0:1], 88")
    a(f"v_lshrrev_b32 v{T}, 6, v0")
    a(f"v_and_b32 v{V_LANE}, 63, v0")
    a(f"v_readfirstlane_b32 s{S_WAVE}, v{T}")
    a("s_nop 3")
    a(f"s_lshr_b32 s{S_WS_}, s{S_WAVE}, 2")
    if PRIO:
        a(f"s_cmp_eq_u32 s{S_WS_}, {PRIO-1}")
        a("s_cbranch_scc0 L_noprio")
        a("s_setprio 1")
        a.label("L_noprio")
    a(f"s_and_b32 s{S_WN_}, s{S_WAVE}, 3")
    a(f"s_lshl_b32 s{S_M0W}, s{S_WAVE}, 12")
    a("s_and_b32 s48, s2, 7")
    a("s_lshr_b32 s49, s2, 3")
    a("s_and_b32 s50, s49, 3")
    a("s_lshl_b32 s51, s48, 2")
    a("s_add_u32 s50, s50, s51")
    a("s_lshr_b32 s51, s49, 2")
    a("s_lshl_b32 s40, s51, 8")
    a("s_and_b32 s52, s50, 15")
    a("s_lshl_b32 s41, s52, 9")
    a(f"v_lshrrev_b32 v{T}, 5, v{V_LANE}")
    a(f"v_and_b32 v{T+1}, 31, v{V_LANE}")
    a(f"v_lshlrev_b32 v{T+2}, 2, v{T}")
    a(f"v_xor_b32 v{T+1}, v{T+1}, v{T+2}")
    a(f"v_lshlrev_b32 v{T+3}, 13, v{T}")
    a(f"v_lshl_add_u32 v{V_WOFF}, v{T+1}, 4, v{T+3}")
    a(f"v_xor_b32 v{T+1}, 8, v{T+1}")
    a(f"v_lshl_add_u32 v{V_WOFF+1}, v{T+1}, 4, v{T+3}")
    a(f"s_and_b32 s{S_TMP}, s{S_WAVE}, 1")
    a(f"s_lshl_b32 s{S_TMP}, s{S_TMP}, 5")
    a(f"v_xor_b32 v{V_WOFF}, s{S_TMP}, v{V_WOFF}")
    a(f"v_xor_b32 v{V_WOFF+1}, s{S_TMP}, v{V_WOFF+1}")
    a(f"v_lshrrev_b32 v{T+1}, 4, v{V_LANE}")
    a(f"v_bfe_u32 v{T}, v{V_LANE}, 2, 2")
    a(f"v_lshl_add_u32 v{T+2}, v{T+1}, 3, v{T}")
    a(f"v_lshlrev_b32 v{T+2}, 9, v{T+2}")
    a(f"v_and_b32 v{T+3}, 1, v{V_LANE}")
    a(f"v_lshl_add_u32 v{T+2}, v{T+3}, 3, v{T+2}")
    a(f"v_add_u32 v{T+2}, 0x8000, v{T+2}")
    a(f"v_bfe_u32 v{T+3}, v{V_LANE}, 1, 1")
    a(f"s_lshl_b32 s{S_TMP}, s{S_WN_}, 3")
    a(f"v_add_u32 v{T+3}, s{S_TMP}, v{T+3}")
    a(f"v_lshlrev_b32 v{T+4}, 2, v{T}")
    a(f"v_xor_b32 v{T+3}, v{T+3}, v{T+4}")
    a(f"v_bfe_u32 v{T+4}, v{V_LANE}, 4, 1")
    a(f"v_lshlrev_b32 v{T+4}, 1, v{T+4}")
    a(f"v_xor_b32 v{T+3}, v{T+3}, v{T+4}")
    a(f"v_lshl_add_u32 v{V_WA}, v{T+3}, 4, v{T+2}")
    for nb in range(1, 4): a(f"v_xor_b32 v{V_WA+nb}, {nb<<5}, v{V_WA}")
    for nb in range(4): a(f"v_add_u32 v{V_WA+4+nb}, 0x10000, v{V_WA+nb}")
    a("s_waitcnt lgkmcnt(0)")
    if STAMP: srd(a, 96, 26, 200 << 20, 1 << 20)
    stamp(a)
    srd(a, S_X, 6, 0, 2048 * 1024 * 2)
    a("s_and_b32 s53, s49, 1")
    a("s_lshl_b32 s54, s48, 1")
    a("s_add_u32 s53, s53, s54")
    a("s_lshr_b32 s54, s49, 1")
    a("s_lshl_b32 s54, s54, 7")
    a("s_lshl_b32 s55, s53, 9")
    jq = Job(a, 128, 7, 896, False, S_X, S_W, S_O)
    def q_prefetch():
        srd(a, S_X, 4, 0, 2048 * 448 * 2)
        srd(a, S_W, 20, 0, 448 * 4096 * 2)
        jq.setup_dma(54, 55)
        jq.dma(0, 0); jq.dma(1, 1)
    def q_l2pf(i):
        uid = a.newlabel("qp")
        a(f"s_lshr_b32 s81, s{S_WAVE}, 1")
        a(f"s_cmp_lg_u32 s81, {i}")
        a(f"s_cbranch_scc1 L_{uid}")
        if i < 3:
            pass
        a("s_and_b32 s81, s49, 1")
        a("s_lshl_b32 s81, s81, 6")
        a("s_add_u32 s81, s81, s54")
        a("s_mul_i32 s81, s81, 896")
        a(f"s_lshl_b32 s82, s{S_WAVE}, 7")
        a("s_add_u32 s81, s81, s82")
        a(f"v_mul_u32_u24 v{T}, 896, v{V_LANE}")
        if i == 3:
            a(f"s_cmp_eq_u32 s{S_WAVE}, 7")
            a(f"s_cbranch_scc1 L_{uid}_w")
        a(f"buffer_load_dword v{T+2}, v{T}, s[44:47], s81 offen")
        if i == 3:
            a(f"s_branch L_{uid}")
            a.label(f"L_{uid}_w")
            srd(a, 72, 20, 0, 448 * 4096 * 2)
            a("s_lshr_b32 s81, s49, 1")
            a("s_mul_i32 s81, s81, 28")
            a("s_lshl_b32 s81, s81, 13")
            a("s_add_u32 s81, s81, s55")
            a(f"v_lshrrev_b32 v{T+1}, 2, v{V_LANE}")
            a(f"v_lshlrev_b32 v{T+1}, 13, v{T+1}")
            a(f"v_and_b32 v{T+3}, 3, v{V_LANE}")
            a(f"v_lshl_add_u32 v{T+1}, v{T+3}, 7, v{T+1}")
            a(f"buffer_load_dword v{T+3}, v{T+1}, s[72:75], s81 offen")
            a(f"s_add_u32 s81, s81, {16*8192}")
            a(f"buffer_load_dword v{T+2}, v{T+1}, s[72:75], s81 offen")
        a.label(f"L_{uid}")
    def big_pf():
        a("s_mov_b32 s72, s6\ns_mov_b32 s73, s7\ns_mov_b32 s74, 4194304\ns_lshl_b32 s81, s2, 14")
        for lo, ptr, nb, sh in ((1, 22, 8388608, 32768), (3, 24, 8388608, 32768), (5, 20, 3670016, 14336), (6, 4, 1835008, 7168)):
            a(f"s_cmp_ge_u32 s{S_WAVE}, {lo}")
            a(f"s_cselect_b32 s72, s{ptr}, s72\ns_cselect_b32 s73, s{ptr+1}, s73\ns_cselect_b32 s74, {nb}, s74")
            a(f"s_mul_i32 s82, s2, {sh}")
            a("s_cselect_b32 s81, s82, s81")
        a("s_mov_b32 s75, 0x00020000")
        a(f"s_cmp_eq_u32 s{S_WAVE}, 2\ns_cselect_b32 s82, 16384, 0\ns_cmp_eq_u32 s{S_WAVE}, 4\ns_cselect_b32 s82, 16384, s82")
        a("s_add_u32 s81, s81, s82")
        a(f"v_lshlrev_b32 v{T}, 7, v{V_LANE}")
        a(f"buffer_load_dword v{T+2}, v{T}, s[72:75], s81 offen")
        a("s_add_u32 s81, s81, 8192")
        a(f"buffer_load_dword v{T+3}, v{T}, s[72:75], s81 offen")
    a("s_cmp_ge_u32 s50, 16")
    a("s_cbranch_scc1 L_proj_v")
    for vtype in (False, True):
        if vtype: a.label("L_proj_v")
        srd(a, S_W, 24 if vtype else 22, 0, 1024 * 4096 * 2)
        srd(a, S_O, 26, WS_VT if vtype else WS_K, 16 << 20)
        j = Job(a, 256, 16, 2048, vtype, S_X, S_W, S_O)
        j.setup_dma(40, 41)
        j.dma(0, 0)
        side_issue(a)
        j.setup_xa()
        ch = side_chunks(28)
        if BPF: big_pf()
        for t in range(16):
            pf = t + PFD if (PFD and t + PFD < 16) else None
            prev_pf = PFD and ((t - 1 + PFD < 16 and t > 0) or t == 0)
            w = (2 * (PFD - 1) if t == 0 else 2) if prev_pf else 0
            if BPF and t == 0: w += 2
            j.tile(t, w, t + 1 < 16, extras=ch, pf=pf, post_dma=((lambda i=t-QPF: q_l2pf(i)) if (QPF and QPF <= t < QPF + 4) else None))
        assert not ch
        a("s_barrier")
        if not vtype: stamp(a)
        q_prefetch()
        a("s_lshl_b32 s42, s52, 20")
        a(f"s_lshl_b32 s{S_TMP}, s{S_WS_}, 7")
        a(f"s_add_u32 s{S_TMP}, s{S_TMP}, s40")
        a(f"s_lshl_b32 s{S_TMP}, s{S_TMP}, 9")
        a(f"s_add_u32 s42, s42, s{S_TMP}")
        a(f"s_lshl_b32 s{S_TMP}, s{S_WN_}, {13 if vtype else 12}")
        a(f"s_add_u32 s42, s42, s{S_TMP}")
        for n, off in enumerate(kv_store_list(vtype, 42, S_O)):
            a(f"s_add_u32 s{56+n}, s42, {off}")
        pack_acc(a)
        if vtype:
            a("s_nop 1")
            for n in range(16):
                b = V_ACC + 64 + 4 * n
                a(f"v_permlane32_swap_b32 v{b}, v{b+2}")
                a(f"v_permlane32_swap_b32 v{b+1}, v{b+3}")
            vt_voff(a, V_PF)
        else:
            kt_voff(a, V_PF)
        if not vtype: a("s_branch L_proj_q")
    a.label("L_proj_q")
    stamp(a)
    jq.setup_xa()
    st = [f"buffer_store_dwordx4 {vr(V_ACC+64+4*n,4)}, v{V_PF}, s[{S_O}:{S_O+3}], s{56+n} offen" + (" sc1" if SC1 else "") for n in range(16)]
    plan = [3, 3, 3, 3, 2, 2, 0]
    prev = 0
    for t in range(7):
        ex = []
        for ks in range(4):
            ex.append(st.pop(0) if ks < plan[t] else "s_nop 0")
        jq.tile(t, 6 if t == 0 else prev, 1 <= t < 6, extras=ex)
        prev = plan[t]
    srd(a, S_O, 26, WS_Q, 16 << 20)
    a("s_lshl_b32 s42, s53, 20")
    a(f"s_lshl_b32 s{S_TMP}, s{S_WS_}, 6")
    a(f"s_add_u32 s{S_TMP}, s{S_TMP}, s54")
    a(f"s_lshl_b32 s{S_TMP}, s{S_TMP}, 9")
    a(f"s_add_u32 s42, s42, s{S_TMP}")
    a(f"s_lshl_b32 s{S_TMP}, s{S_WN_}, 12")
    a(f"s_add_u32 s42, s42, s{S_TMP}")
    a("s_nop 7")
    stamp(a)
    jq.epilogue(42)
    if STAMP:
        a("s_waitcnt vmcnt(0)")
        stamp(a)
    a.label("L_proj_end")
    a("s_endpgm")
```

```python
import sys
from asmlib import *
from k_proj3 import *
from k_attn4 import gen_attn
from k_out import gen_out

HDR = open("gated_mix__ssm_conv_h3__compressed_kv_cla__prompt.s.ref").read().split("; Override launch")[0]

def main(out):
    a = Asm()
    gen_proj(a)
    gen_attn(a)
    gen_out(a)
    s = HDR
    s += "; @launch kernel=proj_kernel grid=(256,1,1) block=(512,1,1) lds=147456\n"
    s += "; @launch kernel=attn_kernel grid=(256,1,1) block=(256,1,1) lds=163840\n"
    s += "; @launch kernel=out_kernel grid=(224,1,1) block=(256,1,1) lds=131072\n"
    s += '.amdgcn_target "amdgcn-amd-amdhsa--gfx950"\n.text\n'
    s += a.text()
    s += kernel_desc("proj_kernel", 256)
    s += kernel_desc("attn_kernel", 256 + 224, accum=256)
    s += kernel_desc("out_kernel", 320, accum=256)
    open(out, "w").write(s)

main(sys.argv[1] if len(sys.argv) > 1 else "k.s")
```

```python
import os
from asmlib import *

WS_Q = 0
WS_K = 16 << 20
WS_VT = 32 << 20
WS_CTX = 48 << 20
WS_Y2T = 64 << 20
WS_UT = WS_Y2T + (2 << 20)
WS_G = WS_Y2T + (4 << 20)
WS_WO = WS_Y2T + (5 << 20)
WS_PART = 76 << 20

V_LANE = 1; V_XOFF = 2; V_WOFF = 4; V_XA = 6; V_WA = 10; V_T = 18; V_FR = 32; V_SD = 96; V_PF = 28; V_ACC = 128
S_X = 8; S_W = 12; S_O = 16
S_WAVE = 30; S_M0X = 31; S_M0W = 32; S_XOFF = 33; S_WOFF = 34; S_TMP = 35; S_OB = 36; S_WS_ = 37; S_WN_ = 38
SC1 = int(os.environ.get("SC1", "2"))
QPF = int(os.environ.get("QPF", "11"))
BPF = int(os.environ.get("BPF", "0"))
DSP = int(os.environ.get("DSP", "2"))
DPOS = int(os.environ.get("DPOS", "0"))
PRIO = int(os.environ.get("PRIO", "0"))
M16 = int(os.environ.get("M16", "0"))
LPF = int(os.environ.get("LPF", "3"))
EARLY = int(os.environ.get("EARLY", "1"))
PFD = int(os.environ.get("PFD", "0"))
STAMP = int(os.environ.get("STAMP", "0"))
_stn = [0]
def stamp(a):
    if not STAMP: return
    i = _stn[0]; _stn[0] += 1
    a("s_memtime s[90:91]\ns_memrealtime s[92:93]\ns_waitcnt lgkmcnt(0)\nv_mov_b32 v26, s90\nv_mov_b32 v27, s92")
    a(f"s_lshl_b32 s94, s2, 8\ns_add_u32 s94, s94, {i*8}\nv_mov_b32 v127, s94")
    a(f"s_cmp_lg_u32 s{S_WAVE}, 0\ns_cbranch_scc1 L_st_{i}")
    a("buffer_store_dwordx2 v[26:27], v127, s[96:99], 0 offen")
    a.label(f"L_st_{i}")

class Job:
    def __init__(self, a, TS, KT, ldx, vtype, sx, sw, so):
        self.a = a; self.TS = TS; self.KT = KT; self.ldx = ldx; self.vtype = vtype
        self.cnt16 = 0; self.SB = TS // 64; self.sx = sx; self.sw = sw; self.so = so
    def setup_dma(self, s_m0, s_n0):
        a = self.a; T = V_T; TS = self.TS; ldx = self.ldx
        a(f"v_lshrrev_b32 v{T}, 3, v{V_LANE}")
        a(f"v_mul_u32_u24 v{T+1}, {ldx}, v{T}")
        a(f"v_lshrrev_b32 v{T+2}, 4, v{V_LANE}")
        a(f"v_and_b32 v{T+3}, 7, v{V_LANE}")
        a(f"v_xor_b32 v{T+4}, v{T+3}, v{T+2}")
        a(f"v_lshl_add_u32 v{V_XOFF}, v{T+4}, 4, v{T+1}")
        a(f"v_xor_b32 v{T+4}, 4, v{T+4}")
        a(f"v_lshl_add_u32 v{V_XOFF+1}, v{T+4}, 4, v{T+1}")
        a(f"s_mul_i32 s{S_M0X}, s{S_WAVE}, {TS//8*128}")
        a(f"s_mul_i32 s{S_XOFF}, s{S_WAVE}, {TS//8}")
        a(f"s_add_u32 s{S_XOFF}, s{S_XOFF}, s{s_m0}")
        a(f"s_mul_i32 s{S_XOFF}, s{S_XOFF}, {ldx}")
        a(f"s_lshl_b32 s{S_WOFF}, s{S_WAVE}, 16")
        a(f"s_add_u32 s{S_WOFF}, s{S_WOFF}, s{s_n0}")
    def dma(self, stage, kt, part=None):
        a = self.a
        if part is not None:
            b = Asm(); self.a = b; self.dma(stage, kt); self.a = a
            L = b.lines; n = len(L) // 3
            lo, hi = (part * n) // DSP, ((part + 1) * n) // DSP
            for l in L[3*lo:3*hi]: a(l)
            return
        for j in range(self.TS // 64):
            a(f"s_add_u32 m0, s{S_M0X}, {stage*65536 + j*1024}")
            a(f"s_add_u32 s{S_TMP}, s{S_XOFF}, {kt*128 + j*8*self.ldx}")
            a(f"buffer_load_dwordx4 v{V_XOFF+(j&1)}, s[{self.sx}:{self.sx+3}], s{S_TMP} offen lds")
        for j in range(4):
            a(f"s_add_u32 m0, s{S_M0W}, {stage*65536 + 32768 + j*1024}")
            a(f"s_add_u32 s{S_TMP}, s{S_WOFF}, {(kt*64 + 2*j)*8192}")
            a(f"buffer_load_dwordx4 v{V_WOFF+(j&1)}, s[{self.sw}:{self.sw+3}], s{S_TMP} offen lds")
    def setup_xa(self):
        a = self.a; T = V_T
        a(f"v_and_b32 v{T}, 15, v{V_LANE}")
        a(f"v_lshrrev_b32 v{T+1}, 4, v{V_LANE}")
        a(f"v_bfe_u32 v{T+2}, v{V_LANE}, 1, 3")
        a(f"v_xor_b32 v{T+2}, v{T+2}, v{T+1}")
        a(f"s_mul_i32 s{S_TMP}, s{S_WS_}, {self.TS//2*128}")
        a(f"v_lshlrev_b32 v{T+3}, 7, v{T}")
        a(f"v_add_u32 v{T+3}, s{S_TMP}, v{T+3}")
        a(f"v_lshl_add_u32 v{V_XA}, v{T+2}, 4, v{T+3}")
        a(f"v_xor_b32 v{V_XA+1}, 64, v{V_XA}")
        a(f"v_add_u32 v{V_XA+2}, 0x10000, v{V_XA}")
        a(f"v_add_u32 v{V_XA+3}, 0x10000, v{V_XA+1}")
    def fx(self, hs, i): return V_FR + 32 + hs * 16 + i * 4
    def fw(self, ws, nb): return V_FR + ws * 16 + nb * 4
    def acc(self, sb, nb): return V_ACC + (sb * 4 + nb) * 4
    def rd_w(self, stage, ks2):
        a = self.a
        for nb in range(4):
            a(f"ds_read_b64_tr_b16 {vr(self.fw(ks2,nb),2)}, v{V_WA+stage*4+nb} offset:{(32*ks2)*512}")
            a(f"ds_read_b64_tr_b16 {vr(self.fw(ks2,nb)+2,2)}, v{V_WA+stage*4+nb} offset:{(32*ks2+4)*512}")
    def rd_x(self, stage, ks2, half, hs):
        a = self.a
        for i in range(4):
            a(f"ds_read_b128 {vr(self.fx(hs,i),4)}, v{V_XA+stage*2+ks2} offset:{(half*4+i)*2048}")
    def mfmas(self, ks2, half, hs, first):
        a = self.a
        for i in range(4):
            for nb in range(4):
                d = vr(self.acc(half * 4 + i, nb), 4)
                A, B = (self.fx(hs, i), self.fw(ks2, nb)) if self.vtype else (self.fw(ks2, nb), self.fx(hs, i))
                a(f"v_mfma_f32_16x16x32_bf16 {d}, {vr(A,4)}, {vr(B,4)}, {'0' if first else d}")
    def tile(self, t, wait, do_dma, extras=None, pf=None, post_dma=None):
        a = self.a; stg = t & 1
        if LPF and self.TS == 256 and t - 1 + LPF < 16:
            uid = a.newlabel("lw")
            a(f"s_cmp_eq_u32 s{S_WAVE}, {(t-1)&7}")
            a(f"s_cbranch_scc1 L_{uid}")
            a(f"s_waitcnt vmcnt({wait})")
            a.label(f"L_{uid}")
            a(f"s_waitcnt vmcnt({wait+2})")
        else:
            a(f"s_waitcnt vmcnt({wait})")
        a("s_barrier")
        if not self.vtype and (t % 4 == 0): stamp(a)
        if do_dma and not (DSP and self.TS == 256): self.dma(stg ^ 1, t + 1)
        if pf is not None:
            a(f"s_add_u32 s{S_TMP}, s{S_XOFF}, {pf*128}")
            a(f"buffer_load_dword v{V_PF+2}, v{V_PF}, s[{self.sx}:{self.sx+3}], s{S_TMP} offen")
            a(f"s_add_u32 s{S_TMP}, s{S_WOFF}, {pf*64*8192}")
            a(f"buffer_load_dword v{V_PF+3}, v{V_PF+1}, s[{self.sw}:{self.sw+3}], s{S_TMP} offen")
        if post_dma: post_dma()
        NH = self.SB // 2
        groups = [(ks2, h) for ks2 in range(2) for h in range(NH)]
        self.rd_w(stg, 0); self.rd_x(stg, 0, 0, 0)
        for gi, (ks2, h) in enumerate(groups):
            n = 0
            if gi + 1 < len(groups):
                k2, h2 = groups[gi + 1]
                if k2 != ks2: self.rd_w(stg, k2); n += 8
                self.rd_x(stg, k2, h2, (gi + 1) & 1); n += 4
            a(f"s_waitcnt lgkmcnt({n})")
            if do_dma and DSP and self.TS == 256 and gi < DSP: self.dma(stg ^ 1, t + 1, part=gi)
            self.mfmas(ks2, h, gi & 1, t == 0 and ks2 == 0)
            for _ in range(4 // len(groups)):
                if extras: a(extras.pop(0))
        self.lpf(t)
    def lpf(self, t):
        a = self.a
        if LPF and self.TS == 256 and t + LPF < 16:
            uid = a.newlabel("lp")
            a(f"s_cmp_lg_u32 s{S_WAVE}, {t&7}")
            a(f"s_cbranch_scc1 L_{uid}")
            a(f"s_add_u32 s{S_TMP}, s83, {(t+LPF)*128}")
            a(f"buffer_load_dword v26, v115, s[{self.sx}:{self.sx+3}], s{S_TMP} offen")
            a(f"s_add_u32 s{S_TMP}, s88, {(t+LPF)*64*8192}")
            a(f"buffer_load_dword v27, v126, s[{self.sw}:{self.sw+3}], s{S_TMP} offen")
            a.label(f"L_{uid}")
    def epilogue(self, s_ob):
        a = self.a; T = V_T
        kt_voff(a, T)
        n = 0
        for sb in range(self.SB * 2):
            for j in range(2):
                r = V_ACC + sb * 16 + 8 * j
                p = V_FR + (n % 8) * 4; n += 1
                for u in range(4): a(f"v_cvt_pk_bf16_f32 v{p+u}, v{r+2*u}, v{r+2*u+1}")
                a(f"s_add_u32 s{S_TMP}, s{s_ob}, {(sb >> 1) * 16384 + 2 * j * 1024 + (sb & 1) * 256}")
                a(f"buffer_store_dwordx4 {vr(p,4)}, v{T}, s[{self.so}:{self.so+3}], s{S_TMP} offen" + (" sc1" if SC1 >= 2 else ""))

def kt_voff(a, d):
    a(f"v_and_b32 v{d}, 15, v{V_LANE}")
    a(f"v_lshlrev_b32 v{d}, 4, v{d}")
    a(f"v_bfe_u32 v{d+1}, v{V_LANE}, 4, 1")
    a(f"v_lshl_add_u32 v{d}, v{d+1}, 9, v{d}")
    a(f"v_lshrrev_b32 v{d+1}, 5, v{V_LANE}")
    a(f"v_lshl_add_u32 v{d}, v{d+1}, 10, v{d}")
def vt_voff(a, d):
    a(f"v_and_b32 v{d}, 15, v{V_LANE}")
    a(f"v_lshlrev_b32 v{d}, 4, v{d}")
    a(f"v_bfe_u32 v{d+1}, v{V_LANE}, 4, 1")
    a(f"v_lshl_add_u32 v{d}, v{d+1}, 9, v{d}")
    a(f"v_lshrrev_b32 v{d+1}, 5, v{V_LANE}")
    a(f"v_lshl_add_u32 v{d}, v{d+1}, 8, v{d}")

def pack_acc(a):
    for p in range(63, -1, -1):
        a(f"v_cvt_pk_bf16_f32 v{V_ACC+64+p}, v{V_ACC+2*p}, v{V_ACC+2*p+1}")
def kv_store_list(vtype, s_ob, so):
    L = []
    for sb in range(8):
        for j in range(2):
            L.append(((sb >> 2) * 32768 + (j * 4 + (sb & 3)) * 1024) if vtype else ((sb >> 1) * 16384 + 2 * j * 1024 + (sb & 1) * 256))
    return L

def side_issue(a):
    R = V_SD; K = R; V = R + 11; SK = R + 20; GX = R + 22; GW = R + 26; TT = V_T
    a("s_lshl_b32 s80, s2, 3")
    srd(a, 64, 56, 0, 2048 * 448 * 2)
    srd(a, 68, 58, 0, 2048 * 448 * 2)
    srd(a, 72, 60, 0, 448 * 8)
    srd(a, 76, 62, 0, 448 * 2)
    srd(a, 84, 86, 0, 4096 * 448 * 2)
    srd(a, 44, 4, 0, 2048 * 448 * 2)
    a(f"v_lshlrev_b32 v{TT}, 4, v{V_LANE}")
    a("s_mul_i32 s81, s2, 14336")
    a(f"s_lshl_b32 s82, s{S_WAVE}, 10")
    a("s_add_u32 s81, s81, s82")
    a("s_add_u32 m0, s82, 131072")
    a("s_nop 0")
    a(f"buffer_load_dwordx4 v{TT}, s[84:87], s81 offen lds")
    a(f"s_cmp_ge_u32 s{S_WAVE}, 6")
    a("s_cbranch_scc1 L_sd_now2_" + str(a.uid))
    a("s_add_u32 m0, s82, 139264")
    a("s_add_u32 s81, s81, 8192")
    a(f"buffer_load_dwordx4 v{TT}, s[84:87], s81 offen lds")
    a.label("L_sd_now2_" + str(a.uid))
    a(f"s_add_u32 s81, s80, s{S_WAVE}")
    a("s_mul_i32 s81, s81, 896")
    a(f"v_cmp_gt_u32 vcc, 56, v{V_LANE}")
    a(f"v_mov_b32 v{TT+1}, 0x7f000000")
    a("s_nop 0")
    a(f"v_cndmask_b32 v{TT+1}, v{TT+1}, v{TT}, vcc")
    a(f"buffer_load_dwordx4 {vr(GX,4)}, v{TT+1}, s[44:47], s81 offen")
    a(f"buffer_load_dwordx4 {vr(GW,4)}, v{TT+1}, s[76:79], 0 offen")
    a("s_mul_i32 s81, s80, 896")
    a("s_sub_u32 s82, s81, 2688")
    a(f"v_lshlrev_b32 v{TT}, 1, v0")
    a(f"v_add_u32 v{TT+1}, s82, v{TT}")
    for j in range(11):
        a(f"buffer_load_ushort v{K+j}, v{TT+1}, s[64:67], 0 offen")
        if j < 10: a(f"v_add_u32 v{TT+1}, 896, v{TT+1}")
    a(f"v_add_u32 v{TT+1}, s81, v{TT}")
    for j in range(8):
        a(f"buffer_load_ushort v{V+j}, v{TT+1}, s[68:71], 0 offen")
        if j < 7: a(f"v_add_u32 v{TT+1}, 896, v{TT+1}")
    a(f"v_lshlrev_b32 v{TT+2}, 3, v0")
    a(f"buffer_load_dwordx2 {vr(SK,2)}, v{TT+2}, s[72:75], 0 offen")
    a.uid += 1

def side_chunks(n):
    b = Asm(); b.uid = 9000
    side_compute(b)
    L = [l.strip() for l in b.lines]
    out = []; per = (len(L) + n - 1) // n; cur = []
    for i, l in enumerate(L):
        cur.append(l)
        nxt = L[i+1] if i + 1 < len(L) else ""
        ok = not (l.startswith(("s_nop", "v_exp", "v_rcp", "v_mov_b32", "ds_", "s_add_u32 s6", "s_addc", "s_mov_b32 s")) or nxt.startswith(("s_nop", "v_permlane", "s_waitcnt")))
        if len(cur) >= per and ok:
            out.append("\n".join(cur)); cur = []
    if cur: out.append("\n".join(cur))
    return out

def side_compute(a):
    R = V_SD; K = R; V = R + 11; SK = R + 20; GX = R + 22; GW = R + 26; W = GX; TT = V_T; A0 = V_PF; W2 = V_T + 4
    tag = a.uid; a.uid += 1
    srd(a, 64, 26, WS_UT, 448 * 4096)
    srd(a, 68, 26, WS_G, 2048 * 4)
    srd(a, 72, 26, WS_WO, 14 * 256 * 1024)
    a(f"v_lshrrev_b32 v{TT}, 5, v{V_LANE}")
    a(f"v_bfe_u32 v{TT+1}, v{V_LANE}, 2, 2")
    a(f"v_lshl_add_u32 v{TT}, v{TT}, 2, v{TT+1}")
    a(f"v_mul_u32_u24 v{TT}, 896, v{TT}")
    a(f"v_bfe_u32 v{TT+1}, v{V_LANE}, 4, 1")
    a(f"v_lshl_add_u32 v{TT}, v{TT+1}, 5, v{TT}")
    a(f"v_and_b32 v{TT+1}, 3, v{V_LANE}")
    a(f"v_lshl_add_u32 v{TT}, v{TT+1}, 3, v{TT}")
    a(f"s_lshl_b32 s81, s{S_WAVE}, 6")
    a("s_add_u32 s81, s81, 131072")
    a(f"v_add_u32 v{TT}, s81, v{TT}")
    a(f"ds_read_b64_tr_b16 {vr(A0,2)}, v{TT}")
    a(f"ds_read_b64_tr_b16 {vr(A0+2,2)}, v{TT} offset:{8*896}")
    a(f"ds_read_b64_tr_b16 {vr(W2,2)}, v{TT} offset:512")
    a(f"ds_read_b64_tr_b16 {vr(W2+2,2)}, v{TT} offset:{8*896+512}")
    a(f"v_lshlrev_b32 v{TT+1}, 4, v{V_LANE}")
    a(f"s_lshl_b32 s81, s{S_WAVE}, 18")
    a("s_lshl_b32 s82, s2, 10")
    a("s_add_u32 s81, s81, s82")
    a("s_waitcnt lgkmcnt(0)")
    a(f"buffer_store_dwordx4 {vr(A0,4)}, v{TT+1}, s[72:75], s81 offen")
    a(f"s_add_u32 s81, s81, {8<<18}")
    a(f"buffer_store_dwordx4 {vr(W2,4)}, v{TT+1}, s[72:75], s81 offen")
    a("s_nop 1")
    a(f"v_mov_b32 v{TT+3}, 0")
    for j in range(4):
        a(f"v_lshlrev_b32 v{TT+4}, 16, v{GX+j}")
        a(f"v_lshlrev_b32 v{TT+5}, 16, v{GW+j}")
        a(f"v_and_b32 v{TT+6}, 0xffff0000, v{GX+j}")
        a(f"v_and_b32 v{TT+7}, 0xffff0000, v{GW+j}")
        a(f"v_mul_f32 v{TT+4}, v{TT+4}, v{TT+5}")
        a(f"v_mul_f32 v{TT+6}, v{TT+6}, v{TT+7}")
        a(f"v_cvt_pk_bf16_f32 v{TT+4}, v{TT+4}, v{TT+6}")
        a(f"v_lshlrev_b32 v{TT+5}, 16, v{TT+4}")
        a(f"v_and_b32 v{TT+6}, 0xffff0000, v{TT+4}")
        a(f"v_add_f32 v{TT+3}, v{TT+3}, v{TT+5}")
        a(f"v_add_f32 v{TT+3}, v{TT+3}, v{TT+6}")
    for off in (0x041F, 0x081F, 0x101F, 0x201F, 0x401F):
        a(f"ds_swizzle_b32 v{TT+4}, v{TT+3} offset:{off}")
        a("s_waitcnt lgkmcnt(0)")
        a(f"v_add_f32 v{TT+3}, v{TT+3}, v{TT+4}")
    a(f"v_mov_b32 v{TT+4}, v{TT+3}")
    a("s_nop 1")
    a(f"v_permlane32_swap_b32 v{TT+3}, v{TT+4}")
    a(f"v_add_f32 v{TT+3}, v{TT+3}, v{TT+4}")
    a(f"v_cvt_pk_bf16_f32 v{TT+3}, v{TT+3}, v{TT+3}")
    a(f"v_lshlrev_b32 v{TT+3}, 16, v{TT+3}")
    a(f"v_mul_f32 v{TT+3}, 0xbfb8aa3b, v{TT+3}")
    a(f"v_exp_f32 v{TT+3}, v{TT+3}")
    a("s_nop 0")
    a(f"v_add_f32 v{TT+3}, 1.0, v{TT+3}")
    a(f"v_rcp_f32 v{TT+3}, v{TT+3}")
    a("s_nop 0")
    a(f"v_cvt_pk_bf16_f32 v{TT+3}, v{TT+3}, v{TT+3}")
    a(f"v_lshlrev_b32 v{TT+3}, 16, v{TT+3}")
    a(f"s_add_u32 s81, s80, s{S_WAVE}")
    a("s_lshl_b32 s81, s81, 2")
    a(f"v_mov_b32 v{TT+4}, s81")
    a(f"buffer_store_dword v{TT+3}, v{TT+4}, s[68:71], 0 offen")
    for j in range(11): a(f"v_lshlrev_b32 v{K+j}, 16, v{K+j}")
    for j in range(8): a(f"v_lshlrev_b32 v{V+j}, 16, v{V+j}")
    a("s_nop 0")
    a(f"v_lshlrev_b32 v{W}, 16, v{SK}")
    a(f"v_and_b32 v{W+1}, 0xffff0000, v{SK}")
    a(f"v_lshlrev_b32 v{W+2}, 16, v{SK+1}")
    a(f"v_and_b32 v{W+3}, 0xffff0000, v{SK+1}")
    for i in range(0, 8, 2):
        p0, p1, pk, c0, c1 = TT, TT + 1, TT + 2, TT + 3, TT + 4
        a(f"v_mul_f32 v{p0}, v{K+i}, v{W+3}")
        a(f"v_mul_f32 v{p1}, v{K+i+1}, v{W+3}")
        a(f"v_cvt_pk_bf16_f32 v{pk}, v{p0}, v{p1}")
        a(f"v_lshlrev_b32 v{c0}, 16, v{pk}")
        a(f"v_and_b32 v{c1}, 0xffff0000, v{pk}")
        for off, w in ((1, 2), (2, 1), (3, 0)):
            a(f"v_mul_f32 v{p0}, v{K+i+off}, v{W+w}")
            a(f"v_mul_f32 v{p1}, v{K+i+1+off}, v{W+w}")
            a(f"v_cvt_pk_bf16_f32 v{pk}, v{p0}, v{p1}")
            a(f"v_lshlrev_b32 v{p0}, 16, v{pk}")
            a(f"v_and_b32 v{p1}, 0xffff0000, v{pk}")
            a(f"v_add_f32 v{c0}, v{c0}, v{p0}")
            a(f"v_add_f32 v{c1}, v{c1}, v{p1}")
            a(f"v_cvt_pk_bf16_f32 v{pk}, v{c0}, v{c1}")
            a(f"v_lshlrev_b32 v{c0}, 16, v{pk}")
            a(f"v_and_b32 v{c1}, 0xffff0000, v{pk}")
        a(f"v_mul_f32 v{c0}, v{c0}, v{V+i}")
        a(f"v_mul_f32 v{c1}, v{c1}, v{V+i+1}")
        a(f"v_cvt_pk_bf16_f32 v{A0+3-i//2}, v{c1}, v{c0}")
    a(f"v_lshlrev_b32 v{TT+1}, 12, v0")
    a("s_lshl_b32 s81, s80, 1")
    a(f"buffer_store_dwordx4 {vr(A0,4)}, v{TT+1}, s[64:67], s81 offen")

def gen_proj(a, name="proj_kernel"):
    T = V_T
    a.raw(f".globl {name}\n.p2align 8\n.type {name},@function\n{name}:")
    a("s_cmp_ge_u32 s2, 256")
    a("s_cbranch_scc1 L_proj_end")
    a("s_load_dwordx2 s[4:5], s[0:1], 0")
    a("s_load_dwordx2 s[6:7], s[0:1], 56")
    a("s_load_dwordx2 s[20:21], s[0:1], 64")
    a("s_load_dwordx2 s[22:23], s[0:1], 72")
    a("s_load_dwordx2 s[24:25], s[0:1], 80")
    a("s_load_dwordx2 s[26:27], s[0:1], 120")
    a("s_load_dwordx2 s[56:57], s[0:1], 8")
    a("s_load_dwordx2 s[58:59], s[0:1], 16")
    a("s_load_dwordx2 s[60:61], s[0:1], 24")
    a("s_load_dwordx2 s[62:63], s[0:1], 96")
    a("s_load_dwordx2 s[86:87], s[0:1], 88")
    a(f"v_lshrrev_b32 v{T}, 6, v0")
    a(f"v_and_b32 v{V_LANE}, 63, v0")
    a(f"v_readfirstlane_b32 s{S_WAVE}, v{T}")
    a("s_nop 3")
    a(f"s_lshr_b32 s{S_WS_}, s{S_WAVE}, 2")
    if PRIO:
        a(f"s_cmp_eq_u32 s{S_WS_}, {PRIO-1}")
        a("s_cbranch_scc0 L_noprio")
        a("s_setprio 1")
        a.label("L_noprio")
    a(f"s_and_b32 s{S_WN_}, s{S_WAVE}, 3")
    a(f"s_lshl_b32 s{S_M0W}, s{S_WAVE}, 12")
    a("s_and_b32 s48, s2, 7")
    a("s_lshr_b32 s49, s2, 3")
    a("s_and_b32 s50, s49, 3")
    a("s_lshl_b32 s51, s48, 2")
    a("s_add_u32 s50, s50, s51")
    a("s_lshr_b32 s51, s49, 2")
    a("s_lshl_b32 s40, s51, 8")
    a("s_and_b32 s52, s50, 15")
    a("s_lshl_b32 s41, s52, 9")
    a(f"v_lshrrev_b32 v{T}, 5, v{V_LANE}")
    a(f"v_and_b32 v{T+1}, 31, v{V_LANE}")
    a(f"v_lshlrev_b32 v{T+2}, 2, v{T}")
    a(f"v_xor_b32 v{T+1}, v{T+1}, v{T+2}")
    a(f"v_lshlrev_b32 v{T+3}, 13, v{T}")
    a(f"v_lshl_add_u32 v{V_WOFF}, v{T+1}, 4, v{T+3}")
    a(f"v_xor_b32 v{T+1}, 8, v{T+1}")
    a(f"v_lshl_add_u32 v{V_WOFF+1}, v{T+1}, 4, v{T+3}")
    a(f"s_and_b32 s{S_TMP}, s{S_WAVE}, 1")
    a(f"s_lshl_b32 s{S_TMP}, s{S_TMP}, 5")
    a(f"v_xor_b32 v{V_WOFF}, s{S_TMP}, v{V_WOFF}")
    a(f"v_xor_b32 v{V_WOFF+1}, s{S_TMP}, v{V_WOFF+1}")
    a(f"v_lshrrev_b32 v{T+1}, 4, v{V_LANE}")
    a(f"v_bfe_u32 v{T}, v{V_LANE}, 2, 2")
    a(f"v_lshl_add_u32 v{T+2}, v{T+1}, 3, v{T}")
    a(f"v_lshlrev_b32 v{T+2}, 9, v{T+2}")
    a(f"v_and_b32 v{T+3}, 1, v{V_LANE}")
    a(f"v_lshl_add_u32 v{T+2}, v{T+3}, 3, v{T+2}")
    a(f"v_add_u32 v{T+2}, 0x8000, v{T+2}")
    a(f"v_bfe_u32 v{T+3}, v{V_LANE}, 1, 1")
    a(f"s_lshl_b32 s{S_TMP}, s{S_WN_}, 3")
    a(f"v_add_u32 v{T+3}, s{S_TMP}, v{T+3}")
    a(f"v_lshlrev_b32 v{T+4}, 2, v{T}")
    a(f"v_xor_b32 v{T+3}, v{T+3}, v{T+4}")
    a(f"v_bfe_u32 v{T+4}, v{V_LANE}, 4, 1")
    a(f"v_lshlrev_b32 v{T+4}, 1, v{T+4}")
    a(f"v_xor_b32 v{T+3}, v{T+3}, v{T+4}")
    a(f"v_lshl_add_u32 v{V_WA}, v{T+3}, 4, v{T+2}")
    for nb in range(1, 4): a(f"v_xor_b32 v{V_WA+nb}, {nb<<5}, v{V_WA}")
    for nb in range(4): a(f"v_add_u32 v{V_WA+4+nb}, 0x10000, v{V_WA+nb}")
    a("s_waitcnt lgkmcnt(0)")
    if STAMP: srd(a, 96, 26, 200 << 20, 1 << 20)
    stamp(a)
    srd(a, S_X, 6, 0, 2048 * 1024 * 2)
    a("s_and_b32 s53, s49, 1")
    a("s_lshl_b32 s54, s48, 1")
    a("s_add_u32 s53, s53, s54")
    a("s_lshr_b32 s54, s49, 1")
    a("s_lshl_b32 s54, s54, 7")
    a("s_lshl_b32 s55, s53, 9")
    jq = Job(a, 128, 7, 896, False, S_X, S_W, S_O)
    def q_prefetch():
        srd(a, S_X, 4, 0, 2048 * 448 * 2)
        srd(a, S_W, 20, 0, 448 * 4096 * 2)
        jq.setup_dma(54, 55)
        jq.dma(0, 0); jq.dma(1, 1)
    def q_l2pf(i):
        uid = a.newlabel("qp")
        a(f"s_lshr_b32 s81, s{S_WAVE}, 1")
        a(f"s_cmp_lg_u32 s81, {i}")
        a(f"s_cbranch_scc1 L_{uid}")
        if i < 3:
            pass
        a("s_and_b32 s81, s49, 1")
        a("s_lshl_b32 s81, s81, 6")
        a("s_add_u32 s81, s81, s54")
        a("s_mul_i32 s81, s81, 896")
        a(f"s_lshl_b32 s82, s{S_WAVE}, 7")
        a("s_add_u32 s81, s81, s82")
        a(f"v_mul_u32_u24 v{T}, 896, v{V_LANE}")
        if i == 3:
            a(f"s_cmp_eq_u32 s{S_WAVE}, 7")
            a(f"s_cbranch_scc1 L_{uid}_w")
        a(f"buffer_load_dword v{T+2}, v{T}, s[44:47], s81 offen")
        if i == 3:
            a(f"s_branch L_{uid}")
            a.label(f"L_{uid}_w")
            srd(a, 72, 20, 0, 448 * 4096 * 2)
            a("s_lshr_b32 s81, s49, 1")
            a("s_mul_i32 s81, s81, 28")
            a("s_lshl_b32 s81, s81, 13")
            a("s_add_u32 s81, s81, s55")
            a(f"v_lshrrev_b32 v{T+1}, 2, v{V_LANE}")
            a(f"v_lshlrev_b32 v{T+1}, 13, v{T+1}")
            a(f"v_and_b32 v{T+3}, 3, v{V_LANE}")
            a(f"v_lshl_add_u32 v{T+1}, v{T+3}, 7, v{T+1}")
            a(f"buffer_load_dword v{T+3}, v{T+1}, s[72:75], s81 offen")
            a(f"s_add_u32 s81, s81, {16*8192}")
            a(f"buffer_load_dword v{T+2}, v{T+1}, s[72:75], s81 offen")
        a.label(f"L_{uid}")
    def big_pf():
        a("s_mov_b32 s72, s6\ns_mov_b32 s73, s7\ns_mov_b32 s74, 4194304\ns_lshl_b32 s81, s2, 14")
        for lo, ptr, nb, sh in ((1, 22, 8388608, 32768), (3, 24, 8388608, 32768), (5, 20, 3670016, 14336), (6, 4, 1835008, 7168)):
            a(f"s_cmp_ge_u32 s{S_WAVE}, {lo}")
            a(f"s_cselect_b32 s72, s{ptr}, s72\ns_cselect_b32 s73, s{ptr+1}, s73\ns_cselect_b32 s74, {nb}, s74")
            a(f"s_mul_i32 s82, s2, {sh}")
            a("s_cselect_b32 s81, s82, s81")
        a("s_mov_b32 s75, 0x00020000")
        a(f"s_cmp_eq_u32 s{S_WAVE}, 2\ns_cselect_b32 s82, 16384, 0\ns_cmp_eq_u32 s{S_WAVE}, 4\ns_cselect_b32 s82, 16384, s82")
        a("s_add_u32 s81, s81, s82")
        a(f"v_lshlrev_b32 v{T}, 7, v{V_LANE}")
        a(f"buffer_load_dword v{T+2}, v{T}, s[72:75], s81 offen")
        a("s_add_u32 s81, s81, 8192")
        a(f"buffer_load_dword v{T+3}, v{T}, s[72:75], s81 offen")
    a("s_cmp_ge_u32 s50, 16")
    a("s_cbranch_scc1 L_proj_v")
    for vtype in (False, True):
        if vtype: a.label("L_proj_v")
        srd(a, S_W, 24 if vtype else 22, 0, 1024 * 4096 * 2)
        srd(a, S_O, 26, WS_VT if vtype else WS_K, 16 << 20)
        j = Job(a, 256, 16, 2048, vtype, S_X, S_W, S_O)
        j.setup_dma(40, 41)
        j.dma(0, 0)
        side_issue(a)
        j.setup_xa()
        if LPF:
            a("s_and_b32 s83, s49, 3\ns_lshl_b32 s83, s83, 6\ns_add_u32 s83, s83, s40\ns_lshl_b32 s83, s83, 11")
            a("s_lshr_b32 s88, s49, 2\ns_lshl_b32 s88, s88, 16\ns_add_u32 s88, s88, s41")
            a(f"v_lshlrev_b32 v115, 11, v{V_LANE}")
            a(f"v_bfe_u32 v126, v{V_LANE}, 2, 3\nv_lshlrev_b32 v126, 13, v126\nv_and_b32 v127, 3, v{V_LANE}\nv_lshl_add_u32 v126, v127, 7, v126")
        j.lpf(-1)
        ch = side_chunks(28)
        if BPF: big_pf()
        for t in range(16):
            pf = t + PFD if (PFD and t + PFD < 16) else None
            prev_pf = PFD and ((t - 1 + PFD < 16 and t > 0) or t == 0)
            w = (2 * (PFD - 1) if t == 0 else 2) if prev_pf else 0
            if BPF and t == 0: w += 2
            if t == 0 and EARLY: w += 23
            j.tile(t, w, t + 1 < 16, extras=(None if (t == 0 and EARLY) else ch), pf=pf, post_dma=((lambda i=t-QPF: q_l2pf(i)) if (QPF and QPF <= t < QPF + 4) else None))
        assert not ch
        a("s_barrier")
        if not vtype: stamp(a)
        q_prefetch()
        a("s_lshl_b32 s42, s52, 20")
        a(f"s_lshl_b32 s{S_TMP}, s{S_WS_}, 7")
        a(f"s_add_u32 s{S_TMP}, s{S_TMP}, s40")
        a(f"s_lshl_b32 s{S_TMP}, s{S_TMP}, 9")
        a(f"s_add_u32 s42, s42, s{S_TMP}")
        a(f"s_lshl_b32 s{S_TMP}, s{S_WN_}, {13 if vtype else 12}")
        a(f"s_add_u32 s42, s42, s{S_TMP}")
        for n, off in enumerate(kv_store_list(vtype, 42, S_O)):
            a(f"s_add_u32 s{56+n}, s42, {off}")
        pack_acc(a)
        if vtype:
            a("s_nop 1")
            for n in range(16):
                b = V_ACC + 64 + 4 * n
                a(f"v_permlane32_swap_b32 v{b}, v{b+2}")
                a(f"v_permlane32_swap_b32 v{b+1}, v{b+3}")
            vt_voff(a, V_PF)
        else:
            kt_voff(a, V_PF)
        if not vtype: a("s_branch L_proj_q")
    a.label("L_proj_q")
    stamp(a)
    jq.setup_xa()
    st = [f"buffer_store_dwordx4 {vr(V_ACC+64+4*n,4)}, v{V_PF}, s[{S_O}:{S_O+3}], s{56+n} offen" + (" sc1" if SC1 else "") for n in range(16)]
    plan = [3, 3, 3, 3, 2, 2, 0]
    prev = 0
    for t in range(7):
        ex = []
        for ks in range(4):
            ex.append(st.pop(0) if ks < plan[t] else "s_nop 0")
        jq.tile(t, 6 if t == 0 else prev, 1 <= t < 6, extras=ex)
        prev = plan[t]
    srd(a, S_O, 26, WS_Q, 16 << 20)
    a("s_lshl_b32 s42, s53, 20")
    a(f"s_lshl_b32 s{S_TMP}, s{S_WS_}, 6")
    a(f"s_add_u32 s{S_TMP}, s{S_TMP}, s54")
    a(f"s_lshl_b32 s{S_TMP}, s{S_TMP}, 9")
    a(f"s_add_u32 s42, s42, s{S_TMP}")
    a(f"s_lshl_b32 s{S_TMP}, s{S_WN_}, 12")
    a(f"s_add_u32 s42, s42, s{S_TMP}")
    a("s_nop 7")
    stamp(a)
    jq.epilogue(42)
    if STAMP:
        a("s_waitcnt vmcnt(0)")
        stamp(a)
    a.label("L_proj_end")
    a("s_endpgm")
```
